```python
import torch

def _softmax(x, axis=-1):
    return torch.softmax(x, dim=axis)
def _gelu(x):
    return torch.nn.functional.gelu(x, approximate="tanh")
def _silu(x):
    return torch.nn.functional.silu(x)
def _sigmoid(x):
    return torch.sigmoid(x)
def _layernorm(x, axis=-1, eps=1e-5):
    m = x.mean(dim=axis, keepdim=True)
    v = x.var(dim=axis, keepdim=True, unbiased=False)
    return (x - m) / torch.sqrt(v + eps)
def _scatter_add(tgt, idx, src, axis=0):
    return tgt.clone().index_add_(axis, idx, src)
def _segment_sum(src, seg, n):
    out = torch.zeros((n,) + src.shape[1:], dtype=src.dtype)
    return out.index_add_(0, seg, src)
def _pad(x, pw):
    flat = tuple(v for pair in reversed(pw) for v in pair)
    return torch.nn.functional.pad(x, flat)

kernel_name = 'standalone__mha_block_cached__near_ridge'

def setup_inputs():

    _w = (lambda a: (lambda t: t.to(torch.bfloat16) if t.is_floating_point() else t)(torch.as_tensor(a)))
    B, Sq, D = 16, 144, 1024
    H, Sk, Dh = 32, 512, 128
    return {
        "x": _w((lambda *s: torch.randn(*s, dtype=torch.bfloat16) * 0.8)(B, Sq, D)),
        "k_cache": _w((lambda *s: torch.randn(*s, dtype=torch.bfloat16) * 0.8)(B, H, Sk, Dh)),
        "v_cache": _w((lambda *s: torch.randn(*s, dtype=torch.bfloat16) * 0.05)(B, H, Sk, Dh)),
        "wq": _w((lambda *s: torch.randn(*s, dtype=torch.bfloat16) * 0.8)(D, H * Dh) * (D ** -0.5)),
        "wo": _w((lambda *s: torch.randn(*s, dtype=torch.bfloat16) * 0.05)(H * Dh, D) * ((H * Dh) ** -0.5)),
    }

def reference(x, k_cache, v_cache, wq, wo):
    B, Sq, D = x.shape
    H, Dh = 32, 128
    q = (lambda x, *d: x.permute(*d))((x @ wq).reshape(B, Sq, H, Dh), 0, 2, 1, 3)
    scores = torch.einsum("bhqd,bhkd->bhqk", q, k_cache) * (Dh ** -0.5)
    p = _softmax(scores, axis=-1)
    o = torch.einsum("bhqk,bhkd->bhqd", p, v_cache)
    return (lambda x, *d: x.permute(*d))(o, 0, 2, 1, 3).reshape(B, Sq, H * Dh) @ wo
```

```python
class Asm:
    def __init__(self):
        self.lines = []
        self.nlabel = 0
    def __call__(self, s):
        for l in s.split("\n"):
            l = l.strip()
            if l: self.lines.append(("" if l.endswith(":") else "    ") + l)
    def label(self, name): self.lines.append(name + ":")
    def newlabel(self, p="L"):
        self.nlabel += 1
        return "%s_%d" % (p, self.nlabel)
    def text(self): return "\n".join(self.lines) + "\n"

def kernel_header(name):
    return (".text\n.globl %s\n.p2align 8\n.type %s,@function\n%s:\n" % (name, name, name))

def kernel_desc(name, vgpr, sgpr=102, accum=None, extra=""):
    if accum is None: accum = min(256, (vgpr + 3) // 4 * 4)
    return ('.amdhsa_kernel %s\n  .amdhsa_next_free_vgpr %d\n  .amdhsa_next_free_sgpr %d\n'
            '  .amdhsa_accum_offset %d\n  .amdhsa_group_segment_fixed_size 0\n  .amdhsa_kernarg_size 64\n'
            '  .amdhsa_user_sgpr_count 2\n  .amdhsa_user_sgpr_kernarg_segment_ptr 1\n'
            '  .amdhsa_system_sgpr_workgroup_id_x 1\n%s.end_amdhsa_kernel\n' % (name, vgpr, sgpr, accum, extra))

def whole_file(launches, kernels):
    out = []
    for (n, g, b, l) in launches:
        out.append("; @launch kernel=%s grid=(%d,1,1) block=(%d,1,1) lds=%d" % (n, g, b, l))
    out.append('.amdgcn_target "amdgcn-amd-amdhsa--gfx950"')
    s = "\n".join(out) + "\n"
    for (n, body, vgpr, sgpr, accum) in kernels:
        s += kernel_header(n) + body
    s += '.section .rodata,"a"\n'
    for (n, body, vgpr, sgpr, accum) in kernels:
        s += ".p2align 6\n" + kernel_desc(n, vgpr, sgpr, accum)
    return s
```

```python
import re

def R(kind, lo, n=1):
    return [(kind, lo + i) for i in range(n)]
def rs(kind, lo, n=1):
    return "%s%d" % (kind, lo) if n == 1 else "%s[%d:%d]" % (kind, lo, lo + n - 1)

class Reg:
    def __init__(self, kind, lo, n=1):
        self.kind, self.lo, self.n = kind, lo, n
    def __str__(self): return rs(self.kind, self.lo, self.n)
    def set(self): return set(R(self.kind, self.lo, self.n))
    def __getitem__(self, i):
        if isinstance(i, slice):
            st = i.start or 0; en = i.stop if i.stop is not None else self.n
            return Reg(self.kind, self.lo + st, en - st)
        assert 0 <= i < self.n
        return Reg(self.kind, self.lo + i, 1)
def V(lo, n=1): return Reg("v", lo, n)
def A(lo, n=1): return Reg("a", lo, n)
def S(lo, n=1): return Reg("s", lo, n)
M0 = Reg("m", 0); M0.__class__ = type("M0R", (Reg,), {"__str__": lambda s: "m0"})
VCC = Reg("vcc", 0); VCC.__class__ = type("VCCR", (Reg,), {"__str__": lambda s: "vcc"})
EXEC = Reg("exec", 0); EXEC.__class__ = type("EXR", (Reg,), {"__str__": lambda s: "exec"})

def regs_of(*ops):
    s = set()
    for o in ops:
        if isinstance(o, Reg): s |= o.set()
    return s

class I:
    __slots__ = ("text", "kind", "rd", "wr", "tag", "srcc", "ab", "cost", "lds_rd", "lds_wr", "data", "wide", "note")
    def __init__(self, text, kind, rd=(), wr=(), tag=None, srcc=(), ab=(), lds_rd=None, lds_wr=None, data=(), wide=False):
        self.text, self.kind = text, kind
        self.rd, self.wr = set(rd), set(wr)
        self.tag = tag; self.srcc = set(srcc); self.ab = set(ab)
        self.lds_rd, self.lds_wr = lds_rd, lds_wr
        self.data = set(data); self.wide = wide
        self.cost = {"mfma": 8, "trans": 8}.get(kind, 4)

TRANS = ("v_exp_f32", "v_rcp_f32", "v_log_f32", "v_rsq_f32", "v_sqrt_f32")

def fmt(o):
    if isinstance(o, Reg): return str(o)
    if isinstance(o, float): return repr(o)
    if isinstance(o, int): return str(o) if -16 <= o <= 64 else hex(o & 0xffffffff)
    return str(o)

def valu(op, dst, *src, extra_rd=(), extra_wr=(), mods=""):
    kind = "trans" if op in TRANS else "valu"
    rd = regs_of(*src) | regs_of(*extra_rd)
    wr = regs_of(dst) | regs_of(*extra_wr)
    if op in ("v_fmac_f32",): rd |= regs_of(dst)
    if op.startswith("v_permlane") or op == "v_swap_b32":
        rd |= regs_of(dst); wr |= regs_of(*src); kind = "perml" if op.startswith("v_permlane") else "valu"
    if op.startswith("v_readfirstlane") or op.startswith("v_readlane"): kind = "rdlane"
    return I("%s %s%s" % (op, ", ".join(fmt(x) for x in (dst,) + src), mods), kind, rd, wr)
def salu(op, dst, *src, scc=True):
    rd = regs_of(*src); wr = regs_of(dst)
    return I("%s %s" % (op, ", ".join(fmt(x) for x in (dst,) + src)), "salu", rd, wr)
def scmp(op, a, b):
    return I("%s %s, %s" % (op, fmt(a), fmt(b)), "salu", regs_of(a, b), ())
def mfma(d, a, b, c=None):
    c = d if c is None else c
    return I("v_mfma_f32_16x16x32_bf16 %s, %s, %s, %s" % (d, a, b, fmt(c)), "mfma",
             regs_of(a, b, c), regs_of(d), srcc=regs_of(c), ab=regs_of(a, b))
def ds_read(op, dst, addr, off=0, region=None):
    assert 0 <= off < 65536, off
    return I("%s %s, %s%s" % (op, dst, addr, (" offset:%d" % off) if off else ""), "ds", regs_of(addr), regs_of(dst), lds_rd=region)
def ds_write(op, addr, src, off=0, region=None):
    assert 0 <= off < 65536, off
    return I("%s %s, %s%s" % (op, addr, src, (" offset:%d" % off) if off else ""), "ds", regs_of(addr, src), (), lds_wr=region, data=regs_of(src))
def dma(voff, srd, soff, off=0, flags="", tag=None, region=None):
    assert 0 <= off < 4096
    t = "buffer_load_dwordx4 %s, %s, %s offen%s%s lds" % (voff, srd, fmt(soff), (" offset:%d" % off) if off else "", (" " + flags) if flags else "")
    return I(t, "dma", regs_of(voff, srd, soff, M0), (), tag=tag, lds_wr=region)
def vload(dst, voff, srd, soff, off=0, flags="", tag=None):
    assert 0 <= off < 4096
    op = {1: "buffer_load_dword", 2: "buffer_load_dwordx2", 4: "buffer_load_dwordx4"}[dst.n]
    t = "%s %s, %s, %s, %s offen%s%s" % (op, dst, voff, srd, fmt(soff), (" offset:%d" % off) if off else "", (" " + flags) if flags else "")
    return I(t, "vload", regs_of(voff, srd, soff), regs_of(dst), tag=tag)
def vstore(src, voff, srd, soff, off=0, flags="", tag=None, op=None):
    assert 0 <= off < 4096
    op = op or {1: "buffer_store_dword", 2: "buffer_store_dwordx2", 4: "buffer_store_dwordx4"}[src.n]
    t = "%s %s, %s, %s, %s offen%s%s" % (op, src, voff, srd, fmt(soff), (" offset:%d" % off) if off else "", (" " + flags) if flags else "")
    return I(t, "vstore", regs_of(src, voff, srd, soff), (), tag=tag, data=regs_of(src), wide=(src.n >= 3))
def raw(text, kind="salu", rd=(), wr=()):
    return I(text, kind, regs_of(*rd), regs_of(*wr))
def wait_vm(tags):
    return I("", "wait_vm", tag=list(tags))
def wait_all_vm(): return I("s_waitcnt vmcnt(0)", "wait0vm")
def wait_lgkm0(): return I("s_waitcnt lgkmcnt(0)", "wait0lgkm")
def barrier(): return I("s_barrier", "barrier")
def nop(n): return I("s_nop %d" % n, "nop", tag=n)
def label(name): return I(name + ":", "label")

VM = ("dma", "vload", "vstore")
ISVALU = ("valu", "trans", "perml", "rdlane")

class Prog:
    def __init__(self, name):
        self.name = name
        self.static = []
        self.trace = []
        self.nl = 0
        self.hoist = True
    def emit(self, *ins):
        for x in ins:
            if isinstance(x, (list, tuple)): self.emit(*x); continue
            self.static.append(x); self.trace.append((len(self.static) - 1, x))
    def loop(self, n, body, counter):
        self.nl += 1
        lab = "%s_loop%d" % (self.name, self.nl)
        self.emit(salu("s_mov_b32", counter, n))
        base = len(self.static)
        tail = lambda: [salu("s_sub_u32", counter, counter, 1), scmp("s_cmp_lg_u32", counter, 0), raw("s_cbranch_scc1 " + lab, "branch")]
        first = None
        for it in range(n):
            b = [label(lab)] + flatten(body(it))
            k = [i for i, x in enumerate(b) if x.kind == "loopctl"]
            t = tail()
            if k:
                b[k[0]:k[0] + 1] = t[:1]; b += t[1:]
            else:
                b += t
            if first is None:
                first = b; self.static += b
            else:
                assert len(b) == len(first), (len(b), len(first))
                for x, y in zip(b, first): assert x.text == y.text and x.kind == y.kind, (x.text, y.text)
            self.trace += [(base + i, x) for i, x in enumerate(b)]

    def resolve(self):
        need_vm = {}; need_lg = {}
        vmq = []; lgq = []
        vm_issued = 0
        pend = {}
        seq = {"vm": 0, "lg": 0}; done = {"vm": 0, "lg": 0}
        tagpos = {}
        for (si, x) in self.trace:
            req = {"vm": None, "lg": None}
            def need(cn, s):
                if s >= done[cn]:
                    n = seq[cn] - s - 1
                    req[cn] = n if req[cn] is None else min(req[cn], n)
            if x.kind == "wait_vm":
                for t in x.tag:
                    assert t in tagpos, ("unknown tag", t)
                    need("vm", tagpos[t])
            elif x.kind == "wait0vm": done["vm"] = seq["vm"]
            elif x.kind == "wait0lgkm": done["lg"] = seq["lg"]
            else:
                for r in (x.rd | x.wr):
                    if r in pend:
                        cn, s = pend[r]
                        need(cn, s)
            for cn, tbl, mx in (("vm", need_vm, 62), ("lg", need_lg, 14)):
                if req[cn] is not None:
                    n = req[cn]; pos = si; k = 0
                    if x.kind == "mfma" and self.hoist:
                        j = si - 1; kk = 0; ok = False
                        while j >= 0 and si - j <= 6:
                            y = self.static[j]
                            if y.kind == "mfma": ok = True; break
                            if y.kind in ("label", "branch", "barrier"): break
                            if (cn == "vm" and y.kind in VM) or (cn == "lg" and y.kind == "ds"): kk += 1
                            j -= 1
                        if ok and n - kk >= 0: pos = j + 1; k = kk
                    n = min(n - k, mx)
                    tbl[pos] = min(tbl.get(pos, 99), n)
                    done[cn] = max(done[cn], seq[cn] - k - n)
            if x.kind in VM:
                if x.tag is not None: tagpos[x.tag] = seq["vm"]
                for r in x.wr: pend[r] = ("vm", seq["vm"])
                seq["vm"] += 1
                assert seq["vm"] - done["vm"] <= 63 or True
            elif x.kind == "ds":
                for r in x.wr: pend[r] = ("lg", seq["lg"])
                seq["lg"] += 1
        self.need_vm, self.need_lg = need_vm, need_lg

    def expanded(self, trace):
        out = []
        for (si, x) in trace:
            w = []
            if si in self.need_vm: w.append("vmcnt(%d)" % self.need_vm[si])
            if si in self.need_lg: w.append("lgkmcnt(%d)" % self.need_lg[si])
            if w:
                wi = I("s_waitcnt " + " ".join(w), "wait"); wi.tag = (self.need_vm.get(si), self.need_lg.get(si))
                out.append(((si, "w"), wi))
            if x.kind != "wait_vm": out.append(((si, "i"), x))
        return out

    def hazards(self):
        pads = {}
        ex = self.expanded(self.trace)
        LOOK = 12
        changed = True
        while changed:
            changed = False
            hist = []
            for (key, x) in ex:
                if x.kind == "label": continue
                dist = pads.get(key, 0)
                reqpad = 0
                for (p, st) in reversed(hist[-LOOK:]):
                    n = self.req(p, x)
                    if n > dist: reqpad = max(reqpad, n - dist)
                    dist += st
                    if dist >= 10: break
                if reqpad:
                    pads[key] = pads.get(key, 0) + reqpad; changed = True
                if pads.get(key, 0): hist.append((I("", "nop"), pads[key]))
                hist.append((x, x.tag + 1 if x.kind == "nop" else 1))
        self.pads = pads
    @staticmethod
    def req(p, c):
        n = 0
        pv = p.kind in ISVALU
        if pv:
            vw = {r for r in p.wr if r[0] in "va"}
            sw = {r for r in p.wr if r[0] in ("s", "vcc")}
            if c.kind == "mfma" and vw & c.rd: n = max(n, 2)
            if c.kind == "perml" and vw & c.rd: n = max(n, 2)
            if c.kind == "rdlane" and vw & c.rd: n = max(n, 1)
            if p.kind == "trans" and c.kind in ISVALU and vw & c.rd: n = max(n, 1)
            if sw & c.rd:
                if c.kind in ISVALU: n = max(n, 2)
                elif c.kind in VM: n = max(n, 5)
                else: n = max(n, 1)
        if p.kind == "mfma":
            if c.kind == "mfma":
                if p.wr & c.ab: n = max(n, 8)
                if p.wr & c.srcc and p.wr != c.srcc: n = max(n, 6)
                if p.wr & c.wr and not (p.wr == c.srcc): n = max(n, 0)
            elif c.kind in ISVALU or c.kind in VM or c.kind == "ds":
                if p.wr & (c.rd | c.wr): n = max(n, 8)
            if c.kind in ISVALU and p.srcc & c.wr: n = max(n, 3)
        if p.kind == "salu" and ("m", 0) in p.wr and c.kind == "dma": n = max(n, 1)
        if p.kind == "vstore" and p.wide and p.data & c.wr:
            n = max(n, 2 if c.kind in ISVALU else 1)
        return n

    def ldscheck(self):
        ex = self.expanded(self.trace)
        seq = {"vm": 0, "lg": 0}; done = {"vm": 0, "lg": 0}
        bar_done = {"vm": 0, "lg": 0}
        writes = {}
        reads = {}
        errs = []
        for (key, x) in ex:
            if x.kind == "wait":
                if x.tag[0] is not None: done["vm"] = max(done["vm"], seq["vm"] - x.tag[0])
                if x.tag[1] is not None: done["lg"] = max(done["lg"], seq["lg"] - x.tag[1])
            elif x.kind == "wait0vm": done["vm"] = seq["vm"]
            elif x.kind == "wait0lgkm": done["lg"] = seq["lg"]
            elif x.kind == "barrier": bar_done = dict(done)
            if x.lds_rd is not None:
                slots, tag, shared = x.lds_rd
                for slot in slots:
                    w = writes.get(slot)
                    if w is None or w["tag"] != tag: errs.append(("read of wrong content", slot, tag, w and w["tag"], x.text)); continue
                    for cn, s in w["last"].items():
                        lim = bar_done[cn] if shared else done[cn]
                        if cn == "lg" and not shared: continue
                        if s >= lim: errs.append(("read before data visible", slot, tag, x.text))
                    reads[slot] = (seq["lg"], shared)
            if x.lds_wr is not None:
                slots, tag, shared = x.lds_wr
                cn = "vm" if x.kind == "dma" else "lg"
                for slot in slots:
                    w = writes.get(slot)
                    if w is None or w["tag"] != tag:
                        if slot in reads:
                            s, sh = reads[slot]
                            lim = bar_done["lg"] if (sh or shared) else done["lg"]
                            if s >= lim and not (cn == "lg" and not (sh or shared)): errs.append(("write while old data may be read", slot, tag, x.text))
                        if w is not None:
                            for c2, s in w["last"].items():
                                lim = bar_done[c2] if shared else done[c2]
                                if s >= lim and not (c2 == cn and not shared): errs.append(("write overlaps older write", slot, tag, x.text))
                        w = writes[slot] = {"tag": tag, "last": {}}
                    w["last"][cn] = seq[cn]
            if x.kind in VM: seq["vm"] += 1
            elif x.kind == "ds": seq["lg"] += 1
            if seq["vm"] - done["vm"] > 63: errs.append(("more than 63 vm outstanding", x.text))
        return errs

    def text(self):
        self.resolve(); self.hazards()
        errs = self.ldscheck()
        seen = set()
        for e in errs:
            if e[:3] not in seen:
                seen.add(e[:3]); print("LDSCHECK", self.name, e)
        out = []
        for (key, x) in self.expanded(list(enumerate(self.static))):
            p = self.pads.get(key, 0)
            while p > 0:
                k = min(p, 16); out.append("    s_nop %d" % (k - 1)); p -= k
            out.append(x.text if x.kind == "label" else "    " + x.text)
        return "\n".join(out) + "\n"
    def stats(self):
        from collections import Counter
        c = Counter(x.kind for _, x in self.trace)
        return dict(c), sum(self.pads.values())

def flatten(l):
    out = []
    for x in l:
        if isinstance(x, (list, tuple)): out += flatten(x)
        elif x is not None: out.append(x)
    return out
def loopctl(): return I("", "loopctl")

NONVEC = ("salu", "wait_vm", "wait0lgkm", "wait0vm", "barrier", "loopctl", "nop")
class F:
    def __init__(self, ins, e, d, deps=()):
        self.grp = flatten([ins]); self.e = e; self.d = d; self.deps = list(deps); self.placed = None
def interleave(mfmas, fillers, budget=8, margin=0):
    n = len(mfmas)
    gaps = [[] for _ in range(n + 1)]
    ptr = {k: 0 for k in fillers}
    total = sum(x.cost for lst in fillers.values() for it in lst for x in it.grp if x.kind not in NONVEC)
    over = max(0, total + margin - budget * n)
    for _ in range(4):
        for lst in fillers.values():
            for i in range(len(lst) - 1, -1, -1):
                if i + 1 < len(lst): lst[i].d = min(lst[i].d, lst[i + 1].d)
                for p in lst[i].deps: p.d = min(p.d, lst[i].d)
    for k, lst in fillers.items():
        for it in lst: assert it.e <= it.d, (k, it.e, it.d, it.grp[0].text)
    acc = 0.0
    def ready(it, g): return it.e <= g and all(p.placed is not None for p in it.deps)
    for g in range(-1, n):
        vec = budget if g >= 0 else 0
        if g >= 0:
            acc += over / n
            while acc >= 4: vec += 4; acc -= 4
            cand = [(lst[ptr[k]].d, k) for k, lst in fillers.items()
                    if ptr[k] < len(lst) and ready(lst[ptr[k]], g) and len(lst[ptr[k]].grp) == 1 and lst[ptr[k]].grp[0].kind in NONVEC]
            if cand:
                k = min(cand)[1]; it = fillers[k][ptr[k]]
                gaps[g + 1] += it.grp; it.placed = g; ptr[k] += 1
        while True:
            cand = sorted((lst[ptr[k]].d, k) for k, lst in fillers.items() if ptr[k] < len(lst) and ready(lst[ptr[k]], g))
            placed = False
            for dd, k in cand:
                it = fillers[k][ptr[k]]
                tot = sum(x.cost for x in it.grp)
                pure_s = all(x.kind in NONVEC for x in it.grp)
                if ((tot <= vec or (vec >= budget and g >= 0)) and not (pure_s and len(it.grp) == 1 and dd > g + 1)) or dd <= g or g == n - 1:
                    gaps[g + 1] += it.grp; vec -= tot; it.placed = g; ptr[k] += 1; placed = True
                    break
            if not placed: break
    for k in fillers: assert ptr[k] == len(fillers[k]), (k, ptr[k], len(fillers[k]))
    out = list(gaps[0])
    for i, m in enumerate(mfmas):
        out.append(m); out += gaps[i + 1]
    return out

def est_cycles(ins):
    t = 0; vec_free = 0; mf_free = 0
    for x in ins:
        if x.kind in ("label", "wait_vm", "loopctl"): continue
        if x.kind == "mfma":
            t = max(t, vec_free, mf_free); mf_free = t + 16; vec_free = t + 8; t += 4
        elif x.kind in NONVEC or x.kind in ("wait", "branch"):
            t += 4 * (x.tag + 1) if x.kind == "nop" else 4
        else:
            t = max(t, vec_free); vec_free = t + x.cost; t += x.cost
    return t
```

```python
import struct, sys
from fw import *
from asmlib import kernel_desc

def f32(x): return struct.unpack("<I", struct.pack("<f", x))[0]
CSCALE = f32(1.4426950408889634 / (128 ** 0.5))

sWG = S(2)
SRD_X, SRD_WQ, SRD_K, SRD_V = S(4, 4), S(8, 4), S(12, 4), S(16, 4)
SRD_WS, SRD_WO, SRD_OUT, SRD_DBG = S(20, 4), S(24, 4), S(28, 4), S(32, 4)
PTR = S(36, 16)
SRD_2 = S(52, 4)
sW, sHD, sQH, sB, sHP = S(56), S(57), S(58), S(59), S(60)
sCNT = S(61)
sT0, sT1, sT2, sT3 = S(62), S(63), S(64), S(65)
sEX9 = S(66, 2)
sXoff, sX9off, sWoff = S(68), S(69), S(70)
sCx, sCx9, sCw = S(71), S(72), S(73)
sSlotR, sSlotW, sDelta = S(74), S(75), S(76)
sKVbase, sCkv = S(77), S(78)
sKs, sVs, sWa, sWb, sDk, sDv = S(79), S(80), S(81), S(82), S(83), S(84)
sOffA, sOffB = S(85), S(86)
sOb0, sOb1 = S(87), S(88)
sSC = S(89)
sEP = S(90)
sSO = S(91)
sOoff, sWOoff, sCT, sLw = S(92), S(93), S(94), S(95)
sC1 = S(96)

OOB = 0x10000000
ASLOT = 51200
XBYTES = 18432
KVFLAGS = "nt"

vLane = V(0)
vOffX, vOffW, vOffKV, vL16 = V(1), V(2), V(3), V(4)
vXa = [V(5), V(6), V(7), V(8)]
vWb = V(9)
vT = [V(10), V(11), V(12), V(13), V(14), V(15)]
def accA(t, j):
    if j < 4: return V(16 + (t * 4 + j) * 4, 4)
    return V(144 + {0: 0, 1: 1, 4: 2, 5: 3}[t] * 4, 4)
def Bf(buf, j, s): return A(buf * 40 + (j * 2 + s) * 4, 4)
def Af(t, s): return A(80 + (t % 4) * 8 + s * 4, 4)
def Qf(j, s): return V(160 + (j * 4 + s) * 4, 4)
def St(kt, j): return V(16 + (kt % 2) * 20 + j * 4, 4)
def Pf(buf, u, j): return V(56 + buf * 36 + (u * 5 + j) * 4, 4)
def Cb(j): return V(128 + 4 * j, 4)
def vL(j): return V(148 + j)
def vMin(j): return V(153 + j)
def Oa(t, j): return A((t * 5 + j) * 4, 4)
def Kf(kt, s): return A(160 + (kt % 2) * 16 + s * 4, 4)
def Vf(t, u): return A(192 + (t % 4) * 8 + u * 4, 4)
def vKa(s0, u): return V(240 + s0 * 2 + u)
def vVa(t2, u): return V(244 + t2 * 2 + u)

NINTH_T = (0, 1, 4, 5)

def srd(dst, ptr_idx, nbytes):
    return [salu("s_mov_b32", dst[0], PTR[2 * ptr_idx]), salu("s_mov_b32", dst[1], PTR[2 * ptr_idx + 1]),
            salu("s_mov_b32", dst[2], nbytes), salu("s_mov_b32", dst[3], 0x20000)]

def common_setup(p, endlabel):
    p.emit(scmp("s_cmp_ge_u32", sWG, 256), raw("s_cbranch_scc1 " + endlabel, "branch"))
    p.emit(raw("s_load_dwordx16 %s, s[0:1], 0" % PTR, wr=[PTR]))
    p.emit(valu("v_lshrrev_b32", vT[0], 6, V(0)), valu("v_and_b32", vLane, 63, V(0)))
    p.emit(valu("v_readfirstlane_b32", sW, vT[0]))
    p.emit(valu("v_lshlrev_b32", vL16, 4, vLane))
    p.emit(valu("v_lshrrev_b32", vT[2], 4, vLane), valu("v_lshlrev_b32", vT[3], 1, vT[2]),
           valu("v_and_b32", vT[1], 7, vLane), valu("v_xor_b32", vT[1], vT[1], vT[3]), valu("v_lshlrev_b32", vT[1], 4, vT[1]))
    p.emit(valu("v_lshrrev_b32", vT[4], 3, vLane))
    p.emit(valu("v_lshl_add_u32", vOffX, vT[4], 11, vT[1]), valu("v_lshl_add_u32", vOffKV, vT[4], 8, vT[1]))
    p.emit(salu("s_lshr_b32", sHD, sW, 1), salu("s_and_b32", sQH, sW, 1))
    p.emit(wait_lgkm0())

def gran(lo, n): return list(range(lo // 2048, (lo + n + 2047) // 2048))
def regA(st): return (gran((st % 3) * ASLOT, ASLOT), ("A", st), True)
def regB(n): return (gran(((n + 2) % 5) * 32768, 32768), ("B", n), True)

def dma_batchA(st):
    reg = regA(st)
    tag = ("A", st)
    g = []
    rows = [0, 4, 16, 20, 32, 36, 48, 52]
    def wq(i):
        pi = rows[i] // 4
        m = salu("s_add_u32", M0, sSlotW, sCw) if i == 0 else salu("s_add_u32", M0, M0, (pi - rows[i - 1] // 4) * 1024)
        return [m, salu("s_add_u32", sSO, sWoff, rows[i] * 8192), dma(vOffW, SRD_WQ, sSO, tag=tag, region=reg)]
    def xx(i):
        m = salu("s_add_u32", M0, sSlotW, sCx) if i == 0 else salu("s_add_u32", M0, M0, 1024)
        return [m, salu("s_add_u32", sSO, sXoff, i * 16384), dma(vOffX, SRD_X, sSO, tag=tag, region=reg)]
    for i in range(4): g.append(xx(i))
    g.append([salu("s_add_u32", M0, sSlotW, sCx9),
              [salu("s_mov_b64", EXEC, sEX9), dma(vOffX, SRD_X, sX9off, tag=tag, region=reg), salu("s_mov_b64", EXEC, -1)]])
    for i in range(8): g.append(wq(i))
    adv = [salu("s_add_u32", sXoff, sXoff, 128), salu("s_add_u32", sX9off, sX9off, 128), salu("s_add_u32", sWoff, sWoff, 64 * 8192)]
    return g, adv

def kv_batch(n, srd_, soff, ldsbase, dummy=False):
    g = []
    for i in range(8):
        reg = regB(n)
        m = salu("s_add_u32", M0, sCkv, ldsbase) if i == 0 else salu("s_add_u32", M0, M0, 1024)
        g.append([m, salu("s_add_u32", sSO, soff, (i >> 1) * 2048 + (i & 1) * 128),
                  dma(vOffKV, srd_, sSO, flags=KVFLAGS, tag=("B", n), region=reg)])
    return g

def groups_to_fillers(groups, g0, g1, dl):
    out = []
    n = len(groups)
    for i, grp in enumerate(groups):
        e = g0 + (g1 - g0) * i // max(1, n)
        for k, x in enumerate(grp):
            out.append(F(x, min(e + max(0, k - 1), dl), dl))
    return out

def blockA(t, buf, rev, s_first):
    js = [0, 1, 2, 3] + ([4] if t in NINTH_T else [])
    if rev: js = js[::-1]
    out = []; s = s_first
    for j in js:
        for k in (s, 1 - s): out.append(mfma(accA(t, j), Af(t, k), Bf(buf, j, k)))
        s = 1 - s
    return out, s

def epochA(e, groups, adv, last=False):
    buf = e % 2
    mf = []; start = {}; end = {}
    s = 0
    for key, t, b in [("L6", 6, 1 - buf), ("L7", 7, 1 - buf)] + [(t, t, buf) for t in range(6)]:
        start[key] = len(mf)
        blk, s = blockA(t, b, rev=(t % 2 == 1), s_first=s)
        mf += blk; end[key] = len(mf) - 1
    reg = regA(e)
    lds = []
    rot = [salu("s_mov_b32", sSlotW, sSlotR), scmp("s_cmp_eq_u32", sSlotR, 2 * ASLOT), salu("s_cselect_b32", sDelta, -2 * ASLOT, sC1),
           salu("s_add_u32", sSlotR, sSlotR, sDelta)]
    head = rot + [valu("v_add_u32", vWb, sDelta, vWb), valu("v_add_u32", vXa[0], sDelta, vXa[0]), valu("v_add_u32", vXa[1], sDelta, vXa[1])]
    def rdA(t, e_, d_):
        tmp = vT[t % 2]
        o = []
        if t == 0: tmp = vWb
        else: o.append(F(valu("v_xor_b32", tmp, t << 5, vWb), e_, d_))
        for s_ in range(2):
            for h in range(2):
                o.append(F(ds_read("ds_read_b64_tr_b16", Af(t, s_)[2 * h:2 * h + 2], tmp, s_ * 8192 + h * 1024, reg), e_, d_))
        return o
    def rdB(j, s_, e_, d_):
        ad = vXa[s_] if j < 4 else vXa[2 + s_]
        return F(ds_read("ds_read_b128", Bf(buf, j, s_), ad, (j * 2048) if j < 4 else 0, reg), e_, d_)
    d0 = start[0] - 5
    lds += rdA(0, 0, d0)
    for j in range(4): lds += [rdB(j, 0, 0, d0), rdB(j, 1, 0, d0)]
    lds += [F(valu("v_add_u32", vXa[2], sDelta, vXa[2]), 0, d0 + 4), F(valu("v_add_u32", vXa[3], sDelta, vXa[3]), 0, d0 + 4)]
    lds += [rdB(4, 0, 0, d0 + 4), rdB(4, 1, 0, d0 + 4)]
    lds += rdA(1, 0, start[1] - 6)
    prev = {2: "L6", 3: "L7", 4: 0, 5: 1, 6: 2, 7: 3}
    for t in range(2, 8):
        dl = (start[t] - 6) if t < 6 else (len(mf) - 8)
        lds += rdA(t, end[prev[t]], dl)
    fl = {"lds": lds}
    if groups:
        fl["dma"] = groups_to_fillers(groups, 8, len(mf) - 10, len(mf) - 2) + [F(x, len(mf) - 10, len(mf) - 1) for x in adv]
    body = head + interleave(mf, fl)
    return body

def phaseA(p):
    p.emit(salu("s_and_b32", sT0, sWG, 7), salu("s_lshr_b32", sT1, sWG, 3))
    p.emit(salu("s_and_b32", sB, sT0, 1), salu("s_lshl_b32", sB, sB, 3), salu("s_and_b32", sT2, sT1, 7), salu("s_add_u32", sB, sB, sT2))
    p.emit(salu("s_lshr_b32", sHP, sT0, 1), salu("s_lshl_b32", sHP, sHP, 2), salu("s_lshr_b32", sT2, sT1, 3), salu("s_add_u32", sHP, sHP, sT2))
    p.emit(srd(SRD_X, 0, 16 * 144 * 2048), srd(SRD_WQ, 3, 1024 * 8192))
    p.emit(salu("s_mul_i32", sT0, sB, 294912))
    p.emit(salu("s_lshl_b32", sT1, sW, 16), salu("s_add_u32", sXoff, sT0, sT1))
    p.emit(salu("s_add_u32", sT1, sHD, 16), salu("s_lshl_b32", sCx9, sT1, 10), salu("s_lshl_b32", sT1, sT1, 14), salu("s_add_u32", sX9off, sT0, sT1))
    p.emit(salu("s_lshl_b32", sCx, sW, 12))
    p.emit(salu("s_lshl_b32", sWoff, sQH, 16), salu("s_lshl_b32", sT1, sHP, 9), salu("s_add_u32", sWoff, sWoff, sT1),
           salu("s_lshl_b32", sT1, sHD, 8), salu("s_add_u32", sWoff, sWoff, sT1))
    p.emit(salu("s_lshl_b32", sCw, sHD, 14), salu("s_lshl_b32", sT1, sQH, 11), salu("s_add_u32", sCw, sCw, sT1), salu("s_add_u32", sCw, sCw, XBYTES))
    p.emit(scmp("s_cmp_eq_u32", sQH, 0), salu("s_cselect_b32", sEX9[0], -1, 0), salu("s_cselect_b32", sEX9[1], 0, -1))
    p.emit(salu("s_lshl_b32", sT1, sQH, 2), valu("v_or_b32", vT[3], sT1, vT[2]), valu("v_lshlrev_b32", vT[3], 1, vT[3]),
           valu("v_and_b32", vT[4], 15, vLane), valu("v_xor_b32", vT[3], vT[3], vT[4]), valu("v_lshlrev_b32", vT[3], 4, vT[3]),
           valu("v_lshl_add_u32", vOffW, vT[2], 13, vT[3]))
    for st in range(2):
        p.emit(salu("s_mov_b32", sSlotW, st * ASLOT))
        g, adv = dma_batchA(st)
        p.emit(g, adv)
    p.emit(srd(SRD_K, 1, 1 << 26), srd(SRD_V, 2, 1 << 26), srd(SRD_2, 1, 1 << 26), srd(SRD_WS, 7, 16 * 128 * 9216))
    p.emit(valu("v_lshrrev_b32", vT[3], 1, vT[4]), valu("v_and_b32", vT[3], 3, vT[3]), valu("v_lshlrev_b32", vT[3], 1, vT[3]),
           valu("v_xor_b32", vT[3], vT[3], vT[2]), valu("v_lshlrev_b32", vT[3], 4, vT[3]))
    p.emit(valu("v_lshrrev_b32", vT[5], 3, vT[4]), valu("v_lshlrev_b32", vT[5], 11, vT[5]), valu("v_and_b32", vT[0], 7, vT[4]),
           valu("v_lshl_add_u32", vT[5], vT[0], 7, vT[5]), valu("v_add_u32", vT[5], vT[5], vT[3]))
    p.emit(salu("s_lshl_b32", sT0, sHD, 14), salu("s_add_u32", sT0, sT0, 2 * 32768), valu("v_add_u32", vT[5], sT0, vT[5]))
    p.emit(salu("s_mul_i32", sT1, sQH, 8192 + 64), valu("v_xor_b32", vKa(0, 0), sT1, vT[5]))
    p.emit(valu("v_xor_b32", vKa(0, 1), 8192, vKa(0, 0)), valu("v_xor_b32", vKa(1, 0), 64, vKa(0, 0)), valu("v_xor_b32", vKa(1, 1), 64, vKa(0, 1)))
    p.emit(valu("v_lshl_add_u32", vT[3], vT[4], 7, vT[3]))
    p.emit(salu("s_lshl_b32", sT1, sQH, 13), salu("s_add_u32", sT1, sT1, 2 * ASLOT), valu("v_add_u32", vXa[0], sT1, vT[3]),
           valu("v_xor_b32", vXa[1], 64, vXa[0]), valu("v_add_u32", vXa[2], 2 * ASLOT + 128 * 128, vT[3]), valu("v_xor_b32", vXa[3], 64, vXa[2]))
    r_, cp = vT[0], vT[1]
    p.emit(valu("v_bfe_u32", r_, vLane, 2, 2), valu("v_and_b32", cp, 3, vLane))
    p.emit(valu("v_and_b32", vT[3], 1, vT[2]), valu("v_lshl_add_u32", vT[3], vT[3], 2, r_))
    p.emit(salu("s_lshl_b32", sT1, sQH, 1), valu("v_xor_b32", vT[5], sT1, vT[3]), valu("v_lshlrev_b32", vT[5], 5, vT[5]),
           valu("v_lshl_add_u32", vT[5], cp, 3, vT[5]), valu("v_lshl_add_u32", vT[4], vT[2], 3, r_), valu("v_lshl_add_u32", vT[5], vT[4], 8, vT[5]))
    p.emit(salu("s_lshl_b32", sT0, sHD, 14), salu("s_add_u32", sT0, sT0, XBYTES + 2 * ASLOT), valu("v_add_u32", vWb, sT0, vT[5]))
    p.emit(valu("v_lshrrev_b32", vT[4], 1, vT[3]), valu("v_xor_b32", vT[4], sT1, vT[4]), valu("v_lshlrev_b32", vT[4], 5, vT[4]),
           valu("v_lshl_add_u32", vT[4], cp, 3, vT[4]), valu("v_lshl_add_u32", vT[4], vT[3], 7, vT[4]),
           valu("v_lshrrev_b32", vT[5], 1, vT[2]), valu("v_lshl_add_u32", vT[4], vT[5], 11, vT[4]))
    p.emit(salu("s_lshl_b32", sT0, sHD, 14), salu("s_lshl_b32", sT1, sQH, 13), salu("s_add_u32", sT0, sT0, sT1),
           salu("s_add_u32", sT0, sT0, 4 * 32768), valu("v_add_u32", vVa(0, 0), sT0, vT[4]))
    for t2 in range(4):
        if t2: p.emit(valu("v_xor_b32", vVa(t2, 0), t2 << 5, vVa(0, 0)))
        p.emit(valu("v_xor_b32", vVa(t2, 1), 8192, vVa(t2, 0)))
    p.emit(salu("s_lshl_b32", sT0, sB, 5), salu("s_lshl_b32", sT1, sHP, 1), salu("s_add_u32", sT0, sT0, sT1), salu("s_add_u32", sT0, sT0, sHD))
    p.emit(salu("s_lshl_b32", sKVbase, sT0, 17), salu("s_lshl_b32", sT1, sQH, 13), salu("s_add_u32", sKVbase, sKVbase, sT1))
    p.emit(salu("s_lshl_b32", sCkv, sW, 13))
    p.emit(salu("s_lshl_b32", sT0, sT0, 2), salu("s_add_u32", sT1, sT0, sQH), salu("s_mul_i32", sOb0, sT1, 9216),
           salu("s_xor_b32", sT1, sT1, 1), salu("s_mul_i32", sOb1, sT1, 9216))
    p.emit(salu("s_mov_b32", sSC, CSCALE), salu("s_mov_b32", sSlotR, 2 * ASLOT), salu("s_mov_b32", sC1, ASLOT))
    for i in range(16, 160): p.emit(valu("v_mov_b32", V(i), 0))
    for i in list(range(40, 72)) + list(range(96, 112)): p.emit(valu("v_accvgpr_write_b32", A(i), 0))
    p.emit(wait_vm([("A", 0)]), barrier())
    def body(it):
        out = []
        for e in (2 * it, 2 * it + 1):
            g, adv = dma_batchA(e + 2)
            out += epochA(e, g, adv)
            out += [wait_lgkm0(), wait_vm([("A", e + 1)]), barrier()]
        return out
    p.loop(7, body, sCNT)
    p.emit(epochA(14, kv_batch(0, SRD_K, sKVbase, 2 * 32768), []))
    p.emit(wait_lgkm0(), wait_vm([("A", 15)]), barrier())
    p.emit(salu("s_add_u32", sOffB, sKVbase, 16384))
    p.emit(epochA(15, kv_batch(1, SRD_K, sOffB, 3 * 32768) + kv_batch(2, SRD_V, sKVbase, 4 * 32768), []))
    p.emit(wait_lgkm0(), barrier())
    mf = []; s = 0
    for t in (6, 7):
        blk, s = blockA(t, 1, rev=(t % 2 == 1), s_first=s); mf += blk
    p.emit(salu("s_add_u32", sOffB, sKVbase, 2 * 16384))
    p.emit(interleave(mf, {"dma": groups_to_fillers(kv_batch(3, SRD_K, sOffB, 0), 0, 15, 15)}))

def q_convert(j, s, t0, t1):
    a0, a1, q = accA(t0, j), accA(t1, j), Qf(j, s)
    o = []
    for a_ in (a0, a1):
        for r in range(4): o.append(valu("v_mul_f32", a_[r], sSC, a_[r]))
    o += [valu("v_cvt_pk_bf16_f32", q[0], a0[0], a0[1]), valu("v_cvt_pk_bf16_f32", q[2], a1[0], a1[1]),
          valu("v_cvt_pk_bf16_f32", q[1], a0[2], a0[3]), valu("v_cvt_pk_bf16_f32", q[3], a1[2], a1[3])]
    sw1 = [valu("v_permlane32_swap_b32", q[0], q[2]), valu("v_permlane32_swap_b32", q[1], q[3])]
    sw2 = [valu("v_permlane16_swap_b32", q[0], q[2]), valu("v_permlane16_swap_b32", q[1], q[3])]
    return o, sw1, sw2

XCH = 53248
def transitionAB(p):
    items = [(4, 0, 0, 1), (4, 2, 4, 5)] + [(j, s, 2 * s, 2 * s + 1) for s in range(4) for j in range(4)]
    p.emit(salu("s_lshl_b32", sT0, sW, 11), salu("s_add_u32", sT0, sT0, XCH), valu("v_add_u32", vT[0], sT0, vL16),
           valu("v_xor_b32", vT[1], 2048, vT[0]))
    pend1 = pend2 = None
    for idx, it in enumerate(items):
        o, s1, s2 = q_convert(*it)
        p.emit(o[:6])
        if pend2: p.emit(pend2)
        pend2 = None
        p.emit(o[6:])
        if pend1: p.emit(pend1[0]); pend2 = pend1[1]
        pend1 = (s1, s2)
        if idx == 3:
            reg = (gran(XCH, 8192), "X", True)
            p.emit(ds_write("ds_write_b128", vT[0], Qf(4, 0), 0, reg), ds_write("ds_write_b128", vT[0], Qf(4, 2), 1024, reg))
    if pend2: p.emit(pend2)
    p.emit(pend1[0], pend1[1])
    p.emit(wait_lgkm0(), wait_vm([("B", 0)]), barrier())
    reg = (gran(XCH, 8192), "X", True)
    p.emit(ds_read("ds_read_b128", Qf(4, 1), vT[1], 0, reg), ds_read("ds_read_b128", Qf(4, 3), vT[1], 1024, reg))

def blockQ(kt, czero=False):
    js = [0, 1, 2, 3] + ([4] if kt < 2 else [])
    out = []; last = {}; first = {}; fwd = True
    for j in js:
        ss = [0, 1, 2, 3] if fwd else [3, 2, 1, 0]
        first[j] = len(out)
        for i, s in enumerate(ss):
            c = None if i else (0 if czero else Cb(j))
            out.append(mfma(St(kt, j), Kf(kt, s), Qf(j, s), c))
        last[j] = len(out) - 1
        fwd = not fwd
    return out, first, last

def blockP(b, buf, zero=False):
    out = []
    for t in (2 * b, 2 * b + 1):
        if t % 2 == 0:
            u = 0
            for j in range(4):
                for i, k in enumerate((u, 1 - u)): out.append(mfma(Oa(t, j), Vf(t, k), Pf(buf, k, j), 0 if (zero and i == 0) else None))
                u = 1 - u
            out.append(mfma(Oa(t, 4), Vf(t, 0), Pf(buf, 0, 4), 0 if zero else None))
        else:
            out.append(mfma(Oa(t, 4), Vf(t, 0), Pf(buf, 0, 4), 0 if zero else None))
            u = 0
            for j in (3, 2, 1, 0):
                for i, k in enumerate((u, 1 - u)): out.append(mfma(Oa(t, j), Vf(t, k), Pf(buf, k, j), 0 if (zero and i == 0) else None))
                u = 1 - u
    return out

def softmax_tile(kt, j, buf, e, d, ex, rest, sub=False):
    s = St(kt, j); pf = Pf(buf, kt // 2, j)[2 * (kt % 2):2 * (kt % 2) + 2]
    E = []
    for r in range(4):
        ins = [valu("v_exp_f32", s[r], s[r])]
        if sub: ins = [valu("v_add_f32", s[r], s[r], Cb(j)[0])] + ins
        E.append(F(ins, e, d))
    ex += E
    rest += [F(valu("v_add_f32", vL(j), vL(j), s[0]), e, d, [E[1]]), F(valu("v_cvt_pk_bf16_f32", pf[0], s[0], s[1]), e, d, [E[2]]),
             F(valu("v_add_f32", vL(j), vL(j), s[1]), e, d), F(valu("v_add_f32", vL(j), vL(j), s[2]), e, d, [E[3]]),
             F(valu("v_cvt_pk_bf16_f32", pf[1], s[2], s[3]), e, d), F(valu("v_add_f32", vL(j), vL(j), s[3]), e, d)]

def rdK(kt, n, e, d):
    reg = regB(n)
    return [F(ds_read("ds_read_b128", Kf(kt, s), vKa(s & 1, kt >> 1), (kt & 1) * 4096 + (s >> 1) * 1024, reg), e, d) for s in range(4)]
def rdV(t, n, e, d):
    reg = regB(n)
    return [F(ds_read("ds_read_b64_tr_b16", Vf(t, u)[2 * h:2 * h + 2], vVa(t & 3, u), h * 4096 + (t >> 2) * 1024, reg), e, d)
            for u in range(2) for h in range(2)]

def rowmax(j):
    s = St(0, j); m, t = vT[2], vT[3]
    o = [valu("v_max3_f32", m, s[0], s[1], s[2]), valu("v_max3_f32", m, m, s[3], vMin(j)),
         valu("v_mov_b32", t, m), valu("v_permlane32_swap_b32", m, t), valu("v_max_f32", m, m, t),
         valu("v_mov_b32", t, m), valu("v_permlane16_swap_b32", m, t), valu("v_max_f32", m, m, t)]
    o += [valu("v_sub_f32", Cb(j)[r], 0, m) for r in range(4)]
    return o

def prologueB(p):
    for f in rdK(0, 0, 0, 0) + rdK(1, 0, 0, 0): p.emit(f.grp)
    for j in range(5): p.emit(valu("v_mov_b32", vL(j), 0), valu("v_mov_b32", vMin(j), 0xff800000))
    q0, f0, l0 = blockQ(0, czero=True)
    p.emit(interleave(q0, {"mx": [F(x, l0[j] + 3, len(q0) - 1) for j in range(4) for x in rowmax(j)]}))
    for f in rdK(2, 0, 0, 0): p.emit(f.grp)
    p.emit(rowmax(4))
    mf = []; st = {}; fi = {}; la = {}
    for kt in (1, 2, 3):
        q, f_, l_ = blockQ(kt)
        st[kt] = len(mf); fi[kt] = {j: v + len(mf) for j, v in f_.items()}; la[kt] = {j: v + len(mf) for j, v in l_.items()}
        mf += q
    n = len(mf)
    ex, rest = [], []
    for j in range(5): softmax_tile(0, j, 0, -1, (fi[2][j] - 1) if j < 4 else n - 1, ex, rest, sub=True)
    for j in range(5): softmax_tile(1, j, 0, la[1][j] + 3, (fi[3][j] - 1) if j < 4 else n - 1, ex, rest)
    for j in range(4): softmax_tile(2, j, 0, la[2][j] + 3, n - 1, ex, rest)
    lds = rdK(3, 0, st[2] - 1, st[3] - 6)
    p.emit(interleave(mf, {"ex": ex, "rest": rest, "lds": lds}))
    p.emit(salu("s_mov_b32", sKs, 1 * 32768), salu("s_mov_b32", sVs, 2 * 32768))
    p.emit(salu("s_add_u32", sOffA, sKVbase, 16384), salu("s_add_u32", sOffB, sKVbase, 3 * 16384), salu("s_mov_b32", sEP, 0), salu("s_mov_b32", sC1, 2 * 32768))
    p.emit(wait_lgkm0(), wait_vm([("B", 1), ("B", 2)]), barrier())

def epochB(e):
    final = (e == 7)
    bufc, bufn = e % 2, (e + 1) % 2
    nK, nV = 2 * e + 1, (2 * e + 2 if e < 7 else 15)
    mf = []; st = {}; en = {}; fi = {}; la = {}
    if e > 0:
        st["L"] = 0; mf += blockP(3, bufn, zero=(e == 1 and False)); en["L"] = len(mf) - 1
    for b in range(4):
        if not final:
            q, f_, l_ = blockQ(b)
            st["Q%d" % b] = len(mf); fi[b] = {j: v + len(mf) for j, v in f_.items()}; la[b] = {j: v + len(mf) for j, v in l_.items()}
            mf += q; en["Q%d" % b] = len(mf) - 1
        if b < 3 or final:
            st["P%d" % b] = len(mf); mf += blockP(b, bufc, zero=(e == 0)); en["P%d" % b] = len(mf) - 1
    n = len(mf)
    head = []
    if e == 0:
        head += [salu("s_mov_b32", sWa, sKs), salu("s_mov_b32", sWb, sVs), salu("s_mov_b32", sKs, 3 * 32768), salu("s_mov_b32", sVs, 4 * 32768),
                 salu("s_mov_b32", sDk, 32768), salu("s_mov_b32", sDv, 0)]
    elif not final:
        head += [salu("s_mov_b32", sWa, sKs), salu("s_mov_b32", sWb, sVs),
                 scmp("s_cmp_ge_u32", sKs, 3 * 32768), salu("s_cselect_b32", sDk, -3 * 32768, sC1), salu("s_add_u32", sKs, sKs, sDk),
                 scmp("s_cmp_ge_u32", sVs, 3 * 32768), salu("s_cselect_b32", sDv, -3 * 32768, sC1), salu("s_add_u32", sVs, sVs, sDv)]
    else:
        head += [salu("s_mov_b32", sDv, 32768)]
    lds = []
    first_e = -1 if e == 0 else 0
    if not final:
        dq = max(st["Q0"] - 6, first_e)
        lds += [F(valu("v_add_u32", vKa(s0, 0), sDk, vKa(s0, 0)), first_e, dq) for s0 in range(2)]
        lds += rdK(0, nK, first_e, dq)
    dv = st["P0"] - 6
    for t in (0, 1):
        lds += [F(valu("v_add_u32", vVa(t, u), sDv, vVa(t, u)), first_e, dv) for u in range(2)]
        lds += rdV(t, nV, first_e, dv)
    if not final:
        lds += rdK(1, nK, first_e, st["Q1"] - 6)
    eL = en["L"] if e > 0 else first_e
    for t in (2, 3):
        lds += [F(valu("v_add_u32", vVa(t, u), sDv, vVa(t, u)), eL, st["P1"] - 6) for u in range(2)]
        lds += rdV(t, nV, eL, st["P1"] - 6)
    if not final:
        lds += [F(valu("v_add_u32", vKa(s0, 1), sDk, vKa(s0, 1)), en["Q0"], st["Q2"] - 6) for s0 in range(2)]
        lds += rdK(2, nK, en["Q0"], st["Q2"] - 6)
    for t in (4, 5): lds += rdV(t, nV, en["P0"], st["P2"] - 6)
    if not final: lds += rdK(3, nK, en["Q1"], st["Q3"] - 6)
    for t in (6, 7): lds += rdV(t, nV, en["P1"], (n - 8) if not final else st["P3"] - 6)
    ex, rest = [], []
    for j in range(4): softmax_tile(3, j, bufc, first_e, st["P0"] - 2, ex, rest)
    if not final:
        for j in range(5): softmax_tile(0, j, bufn, la[0][j] + 3, (fi[2][j] - 1) if j < 4 else n - 1, ex, rest)
        for j in range(5): softmax_tile(1, j, bufn, la[1][j] + 3, (fi[3][j] - 1) if j < 4 else n - 1, ex, rest)
        for j in range(4): softmax_tile(2, j, bufn, la[2][j] + 3, n - 1, ex, rest)
    fl = {"lds": lds, "ex": ex, "rest": rest}
    if not final:
        na, nb = 2 * e + 4, 2 * e + 5
        g = kv_batch(na, SRD_V, sOffA, sWa) + kv_batch(nb, SRD_2, sOffB, sWb)
        adv = [salu("s_add_u32", sEP, sEP, 1), salu("s_add_u32", sOffA, sOffA, 16384), salu("s_add_u32", sOffB, sOffB, 16384),
               salu("s_add_u32", sT0, sKVbase, 7 * 16384),
               [scmp("s_cmp_eq_u32", sEP, 5), salu("s_cselect_b32", sOffB, sT0, sOffB), salu("s_cselect_b32", SRD_2[0], SRD_V[0], SRD_2[0]),
                salu("s_cselect_b32", SRD_2[1], SRD_V[1], SRD_2[1])],
               [scmp("s_cmp_eq_u32", sEP, 6), salu("s_cselect_b32", sOffA, OOB, sOffA), salu("s_cselect_b32", sOffB, OOB, sOffB)]]
        fl["dma"] = groups_to_fillers(g, 2, 100, n - 12) + [F(x, 100, n - 1) for x in adv]
    body = head + interleave(mf, fl, margin=24)
    if not final:
        w = [("B", 2 * e + 3), ("B", 2 * e + 4)] if e < 6 else [("B", 15)]
        body += [wait_lgkm0(), wait_vm(w), barrier()]
    return body

def lsum(j):
    l, t = vL(j), vT[2]
    return [valu("v_mov_b32", t, l), valu("v_permlane32_swap_b32", l, t), valu("v_add_f32", l, l, t),
            valu("v_mov_b32", t, l), valu("v_permlane16_swap_b32", l, t), valu("v_add_f32", l, l, t)]

def epilogueB(p, store_flags=""):
    for j in range(5): p.emit(lsum(j))
    reg = (gran(0, 20480), "M", True)
    p.emit(salu("s_mul_i32", sT0, sW, 5120), valu("v_add_u32", vT[0], sT0, vL16),
           salu("s_xor_b32", sT1, sW, 1), salu("s_mul_i32", sT1, sT1, 5120), valu("v_add_u32", vT[1], sT1, vL16))
    p.emit(valu("v_mov_b32", Cb(4)[1], vL(4)))
    for i, t in enumerate((2, 3, 6, 7)): p.emit(ds_write("ds_write_b128", vT[0], Oa(t, 4), i * 1024, reg))
    p.emit(ds_write("ds_write_b64", vT[0], Cb(4)[0:2], 4096, reg))
    for j in range(4): p.emit(valu("v_rcp_f32", vL(j), vL(j)))
    p.emit(wait_lgkm0(), barrier())
    X = V(16, 16); ML = V(32, 2)
    for i in range(4): p.emit(ds_read("ds_read_b128", X[4 * i:4 * i + 4], vT[1], i * 1024, reg))
    p.emit(ds_read("ds_read_b64", ML, vT[1], 4096, reg))
    p.emit(salu("s_lshl_b32", sT2, sQH, 12))
    k = 0
    for s in range(4):
        p.emit(salu("s_add_u32", sT0, sOb0 if s % 2 == 0 else sOb1, (s >> 1) * 18432), salu("s_add_u32", sT0, sT0, sT2))
        for j in range(4):
            T = V(40 + (k % 4) * 8, 8); Pk = V(72 + (k % 8) * 4, 4); k += 1
            for h in range(2):
                for r in range(4): p.emit(valu("v_accvgpr_read_b32", T[4 * h + r], Oa(2 * s + h, j)[r]))
            for r in range(8): p.emit(valu("v_mul_f32", T[r], T[r], vL(j)))
            for r in range(4): p.emit(valu("v_cvt_pk_bf16_f32", Pk[r], T[2 * r], T[2 * r + 1]))
            p.emit(vstore(Pk, vL16, SRD_WS, sT0, j * 1024, flags=store_flags))
    na, la_, nb, lb = Cb(4)[0], vL(4), ML[0], ML[1]
    mn, fa, fb = vT[2], vT[3], vT[4]
    p.emit(valu("v_min_f32", mn, na, nb), valu("v_sub_f32", fa, mn, na), valu("v_sub_f32", fb, mn, nb),
           valu("v_exp_f32", fa, fa), valu("v_exp_f32", fb, fb), valu("v_mul_f32", la_, la_, fa), valu("v_fmac_f32", la_, lb, fb),
           valu("v_rcp_f32", la_, la_), valu("v_mul_f32", fa, fa, la_), valu("v_mul_f32", fb, fb, la_))
    for i, s in enumerate((0, 2)):
        T = V(40 + i * 8, 8); Pk = V(112 + i * 4, 4)
        for h in range(2):
            for r in range(4): p.emit(valu("v_accvgpr_read_b32", T[4 * h + r], Oa(2 * s + h, 4)[r]))
        for r in range(8): p.emit(valu("v_mul_f32", T[r], T[r], fa))
        for r in range(8): p.emit(valu("v_fmac_f32", T[r], X[8 * i + r], fb))
        for r in range(4): p.emit(valu("v_cvt_pk_bf16_f32", Pk[r], T[2 * r], T[2 * r + 1]))
        p.emit(salu("s_add_u32", sT0, sOb0, (s >> 1) * 18432 + 8192))
        p.emit(vstore(Pk, vL16, SRD_WS, sT0, 0, flags=store_flags))

def phaseB(p):
    prologueB(p)
    p.emit(epochB(0))
    p.loop(3, lambda it: epochB(2 * it + 1) + epochB(2 * it + 2), sCNT)
    p.emit(epochB(7))

def accD(j, t): return V(16 + (j * 4 + t) * 4, 4)
def Of(buf, j, s): return A(buf * 72 + (j * 2 + s) * 4, 4)
def Wf(buf, t, s): return A(144 + buf * 32 + (t * 2 + s) * 4, 4)
vO = [V(160 + i) for i in range(5)]
vWa = [V(165 + i) for i in range(4)]
OFLAGS = ""

def wo_batch(t):
    reg = (["W%d" % (t % 4)], ("W", t), False)
    g = []
    for i in range(8):
        m = salu("s_add_u32", M0, sLw, (t % 2) * 8192) if i == 0 else salu("s_add_u32", M0, M0, 1024)
        g.append([m, salu("s_add_u32", sSO, sWOoff, i * 16384), dma(vOffX, SRD_WO, sSO, tag=("W", t), region=reg)])
    return g
def o_load(buf, j, s):
    o = s * 9216 + j * 1024
    return vload(Of(buf, j, s), vO[o >> 12], SRD_WS, sOoff, o & 4095, flags=OFLAGS)
def rdW(t, tt):
    reg = (["W%d" % (t % 4)], ("W", t), False)
    return [ds_read("ds_read_b64_tr_b16", Wf(t % 2, tt, s)[2 * h:2 * h + 2], vWa[tt], (t % 2) * 8192 + s * 4096 + h * 2048, reg)
            for s in range(2) for h in range(2)]

def stepD(t, loads=True):
    buf = t % 2
    mf = []; en = {}; s = 0
    for j in range(9):
        for tt in (range(4) if j % 2 == 0 else range(3, -1, -1)):
            for k in (s, 1 - s): mf.append(mfma(accD(j, tt), Wf(buf, tt, k), Of(buf, j, k)))
            s = 1 - s
        en[j] = len(mf) - 1
    n = len(mf)
    fl = {}
    if t < 15:
        lds = []
        if t % 2 == 1: lds += [F(valu("v_xor_b32", vWa[i], 16384, vWa[i]), 20, n - 8) for i in range(4)]
        lds += [F(wait_vm([("W", t + 1)]), 24, n - 8)]
        for tt in range(4): lds += [F(x, 24 + 8 * tt, n - 8) for x in rdW(t + 1, tt)]
        fl["lds"] = lds
    if loads:
        g = wo_batch(t + 3)
        vm = []
        if t % 2 == 1: vm.append(F(salu("s_xor_b32", sLw, sLw, 16384), 0, n - 1))
        for j in range(9):
            if j < 8:
                e = 8 * j + 1
                vm += [F(g[j][0], e, n - 1), F(g[j][1], e + 1, n - 1), F(g[j][2], e + 2, n - 1)]
            vm += [F(o_load(buf, j, 0), en[j], n - 1), F(o_load(buf, j, 1), min(en[j] + 1, n - 1), n - 1)]
        vm += [F(salu("s_add_u32", sOoff, sOoff, 18432), n - 1, n - 1), F(salu("s_add_u32", sWOoff, sWOoff, 64 * 2048), n - 1, n - 1)]
        if t % 2 == 0:
            vm += [F([scmp("s_cmp_eq_u32", sCNT, 1), salu("s_cselect_b32", sWOoff, OOB, sWOoff)], n - 1, n - 1)]
        fl["vm"] = vm
    return interleave(mf, fl)

def phaseD_setup(p):
    p.emit(salu("s_and_b32", sT0, sWG, 7), salu("s_lshr_b32", sT1, sWG, 3))
    p.emit(salu("s_and_b32", sB, sT0, 3), salu("s_lshl_b32", sB, sB, 2), salu("s_and_b32", sT2, sT1, 3), salu("s_add_u32", sB, sB, sT2))
    p.emit(salu("s_lshr_b32", sCT, sT0, 2), salu("s_lshl_b32", sCT, sCT, 3), salu("s_lshr_b32", sT2, sT1, 2), salu("s_add_u32", sCT, sCT, sT2))
    p.emit(srd(SRD_WO, 4, 4096 * 2048), srd(SRD_WS, 7, 16 * 128 * 9216), srd(SRD_OUT, 5, 16 * 144 * 2048))
    p.emit(salu("s_lshl_b32", sWOoff, sW, 21), salu("s_lshl_b32", sT0, sCT, 7), salu("s_add_u32", sWOoff, sWOoff, sT0))
    p.emit(salu("s_lshl_b32", sT0, sB, 7), salu("s_lshl_b32", sT1, sW, 5), salu("s_add_u32", sT0, sT0, sT1), salu("s_mul_i32", sOoff, sT0, 9216))
    p.emit(salu("s_lshl_b32", sLw, sW, 15))
    for i in range(5): p.emit(valu("v_add_u32", vO[i], i * 4096, vL16))

def phaseD(p):
    for t in range(3):
        if t == 2: p.emit(salu("s_xor_b32", sLw, sLw, 16384))
        p.emit(wo_batch(t), salu("s_add_u32", sWOoff, sWOoff, 64 * 2048))
        if t < 2:
            for j in range(9): p.emit(o_load(t, j, 0), o_load(t, j, 1))
            p.emit(salu("s_add_u32", sOoff, sOoff, 18432))
    g_, r_, cp, r8 = vT[2], vT[0], vT[1], vT[3]
    p.emit(valu("v_lshrrev_b32", g_, 4, vLane), valu("v_bfe_u32", r_, vLane, 2, 2), valu("v_and_b32", cp, 3, vLane))
    p.emit(valu("v_and_b32", r8, 1, g_), valu("v_lshl_add_u32", r8, r8, 2, r_))
    p.emit(valu("v_lshrrev_b32", vT[4], 1, r8), valu("v_lshlrev_b32", vT[4], 5, vT[4]), valu("v_lshl_add_u32", vT[4], cp, 3, vT[4]),
           valu("v_lshl_add_u32", vT[4], r8, 7, vT[4]), valu("v_lshrrev_b32", vT[5], 1, g_), valu("v_lshl_add_u32", vT[4], vT[5], 10, vT[4]))
    p.emit(salu("s_lshl_b32", sT0, sW, 15), valu("v_add_u32", vWa[0], sT0, vT[4]))
    for i in range(1, 4): p.emit(valu("v_xor_b32", vWa[i], i << 5, vWa[0]))
    for i in range(16, 160): p.emit(valu("v_mov_b32", V(i), 0))
    p.emit(wait_vm([("W", 0)]))
    for tt in range(4): p.emit(rdW(0, tt))
    p.loop(7, lambda it: stepD(2 * it) + stepD(2 * it + 1), sCNT)
    p.emit(stepD(14, loads=False), stepD(15, loads=False))
    RS = 272; WB = 144 * RS
    p.emit(wait_all_vm(), barrier())
    p.emit(valu("v_and_b32", vT[0], 15, vLane), valu("v_mul_u32_u24", vT[0], RS, vT[0]), valu("v_lshrrev_b32", vT[1], 4, vLane),
           valu("v_lshl_add_u32", vT[0], vT[1], 4, vT[0]), salu("s_mul_i32", sT0, sW, WB), valu("v_add_u32", vT[0], sT0, vT[0]))
    reg = (["W0", "W1", "W2", "W3"], "R", True)
    for j in range(9):
        for tt in range(4): p.emit(ds_write("ds_write_b128", vT[0], accD(j, tt), j * 16 * RS + tt * 64, reg))
    p.emit(valu("v_lshrrev_b32", vT[1], 3, vLane), salu("s_mul_i32", sT0, sW, 36), valu("v_add_u32", vT[1], sT0, vT[1]),
           valu("v_mul_u32_u24", vT[2], RS, vT[1]), valu("v_and_b32", vT[3], 7, vLane), valu("v_lshl_add_u32", vT[2], vT[3], 5, vT[2]))
    for i in range(1, 4): p.emit(valu("v_add_u32", V(170 + i), i * WB, vT[2]))
    rda = [vT[2], V(171), V(172), V(173)]
    p.emit(valu("v_lshlrev_b32", vT[4], 11, vT[1]), valu("v_lshl_add_u32", vT[4], vT[3], 4, vT[4]))
    p.emit(salu("s_mul_i32", sT0, sB, 294912), salu("s_lshl_b32", sT1, sCT, 7), salu("s_add_u32", sT0, sT0, sT1))
    p.emit(wait_lgkm0(), barrier())
    def buf(rd, i, h): return V(16 + (rd % 4) * 32 + i * 8 + h * 4, 4)
    def reads(rd):
        return [ds_read("ds_read_b128", buf(rd, i, h), rda[i], rd * 8 * RS + h * 16, reg) for i in range(4) for h in range(2)]
    p.emit(reads(0))
    for rd in range(5):
        if rd + 1 < 5: p.emit(reads(rd + 1))
        b0 = V(16 + (rd % 4) * 32, 32)
        for r in range(8): p.emit(valu("v_add_f32", b0[r], b0[r], b0[8 + r]))
        for r in range(8): p.emit(valu("v_add_f32", b0[16 + r], b0[16 + r], b0[24 + r]))
        for r in range(8): p.emit(valu("v_add_f32", b0[r], b0[r], b0[16 + r]))
        Pk = V(176 + rd * 4, 4)
        for r in range(4): p.emit(valu("v_cvt_pk_bf16_f32", Pk[r], b0[2 * r], b0[2 * r + 1]))
        if rd == 4: p.emit(raw("s_mov_b32 exec_hi, 0", wr=[EXEC]))
        p.emit(vstore(Pk, vT[4], SRD_OUT, sT0))
        if rd < 4: p.emit(salu("s_add_u32", sT0, sT0, 8 * 2048))

def build():
    k1 = Prog("mha_qa"); common_setup(k1, "mha_qa_end")
    phaseA(k1); transitionAB(k1)
    for t in (6, 7):
        for j in range(5):
            for r in range(4): k1.emit(valu("v_accvgpr_write_b32", Oa(t, j)[r], 0))
    phaseB(k1); epilogueB(k1)
    k1.emit(label("mha_qa_end"), raw("s_endpgm"))
    k2 = Prog("mha_o"); common_setup(k2, "mha_o_end")
    phaseD_setup(k2); phaseD(k2)
    k2.emit(label("mha_o_end"), raw("s_endpgm"))
    hdr = open("standalone__mha_block_cached__near_ridge.s.ref").read().split("; Override launch")[0]
    out = hdr
    out += "; @launch kernel=mha_qa_kernel grid=(256,1,1) block=(256,1,1) lds=163840\n"
    out += "; @launch kernel=mha_o_kernel grid=(256,1,1) block=(256,1,1) lds=163840\n"
    out += '.amdgcn_target "amdgcn-amd-amdhsa--gfx950"\n.text\n'
    for nm, k in (("mha_qa_kernel", k1), ("mha_o_kernel", k2)):
        t = k.text()
        print(nm, k.stats(), "est cycles", est_cycles([x for _, x in k.expanded(k.trace)]))
        out += ".globl %s\n.p2align 8\n.type %s,@function\n%s:\n%s" % (nm, nm, nm, t)
    out += '.section .rodata,"a"\n'
    for nm in ("mha_qa_kernel", "mha_o_kernel"):
        out += ".p2align 6\n" + kernel_desc(nm, 512, 102, 256)
    return out

if __name__ == "__main__":
    dst = sys.argv[1] if len(sys.argv) > 1 else "standalone__mha_block_cached__near_ridge.s"
    open(dst, "w").write(build())
```

```python
import re

def R(kind, lo, n=1):
    return [(kind, lo + i) for i in range(n)]
def rs(kind, lo, n=1):
    return "%s%d" % (kind, lo) if n == 1 else "%s[%d:%d]" % (kind, lo, lo + n - 1)

class Reg:
    def __init__(self, kind, lo, n=1):
        self.kind, self.lo, self.n = kind, lo, n
    def __str__(self): return rs(self.kind, self.lo, self.n)
    def set(self): return set(R(self.kind, self.lo, self.n))
    def __getitem__(self, i):
        if isinstance(i, slice):
            st = i.start or 0; en = i.stop if i.stop is not None else self.n
            return Reg(self.kind, self.lo + st, en - st)
        assert 0 <= i < self.n
        return Reg(self.kind, self.lo + i, 1)
def V(lo, n=1): return Reg("v", lo, n)
def A(lo, n=1): return Reg("a", lo, n)
def S(lo, n=1): return Reg("s", lo, n)
M0 = Reg("m", 0); M0.__class__ = type("M0R", (Reg,), {"__str__": lambda s: "m0"})
VCC = Reg("vcc", 0); VCC.__class__ = type("VCCR", (Reg,), {"__str__": lambda s: "vcc"})
EXEC = Reg("exec", 0); EXEC.__class__ = type("EXR", (Reg,), {"__str__": lambda s: "exec"})

def regs_of(*ops):
    s = set()
    for o in ops:
        if isinstance(o, Reg): s |= o.set()
    return s

class I:
    __slots__ = ("text", "kind", "rd", "wr", "tag", "srcc", "ab", "cost", "lds_rd", "lds_wr", "data", "wide", "note")
    def __init__(self, text, kind, rd=(), wr=(), tag=None, srcc=(), ab=(), lds_rd=None, lds_wr=None, data=(), wide=False):
        self.text, self.kind = text, kind
        self.rd, self.wr = set(rd), set(wr)
        self.tag = tag; self.srcc = set(srcc); self.ab = set(ab)
        self.lds_rd, self.lds_wr = lds_rd, lds_wr
        self.data = set(data); self.wide = wide
        self.cost = {"mfma": 8, "trans": 8, "perml": 8}.get(kind, 4)
        if text.startswith("ds_write_b128"): self.cost = 20

TRANS = ("v_exp_f32", "v_rcp_f32", "v_log_f32", "v_rsq_f32", "v_sqrt_f32")

def fmt(o):
    if isinstance(o, Reg): return str(o)
    if isinstance(o, float): return repr(o)
    if isinstance(o, int): return str(o) if -16 <= o <= 64 else hex(o & 0xffffffff)
    return str(o)

def valu(op, dst, *src, extra_rd=(), extra_wr=(), mods=""):
    kind = "trans" if op in TRANS else "valu"
    rd = regs_of(*src) | regs_of(*extra_rd)
    wr = regs_of(dst) | regs_of(*extra_wr)
    if op in ("v_fmac_f32",): rd |= regs_of(dst)
    if op.startswith("v_permlane") or op == "v_swap_b32":
        rd |= regs_of(dst); wr |= regs_of(*src); kind = "perml" if op.startswith("v_permlane") else "valu"
    if op.startswith("v_readfirstlane") or op.startswith("v_readlane"): kind = "rdlane"
    return I("%s %s%s" % (op, ", ".join(fmt(x) for x in (dst,) + src), mods), kind, rd, wr)
def salu(op, dst, *src, scc=True):
    rd = regs_of(*src); wr = regs_of(dst)
    return I("%s %s" % (op, ", ".join(fmt(x) for x in (dst,) + src)), "salu", rd, wr)
def scmp(op, a, b):
    return I("%s %s, %s" % (op, fmt(a), fmt(b)), "salu", regs_of(a, b), ())
def mfma(d, a, b, c=None):
    c = d if c is None else c
    return I("v_mfma_f32_16x16x32_bf16 %s, %s, %s, %s" % (d, a, b, fmt(c)), "mfma",
             regs_of(a, b, c), regs_of(d), srcc=regs_of(c), ab=regs_of(a, b))
def ds_read(op, dst, addr, off=0, region=None):
    assert 0 <= off < 65536, off
    return I("%s %s, %s%s" % (op, dst, addr, (" offset:%d" % off) if off else ""), "ds", regs_of(addr), regs_of(dst), lds_rd=region)
def ds_write(op, addr, src, off=0, region=None):
    assert 0 <= off < 65536, off
    return I("%s %s, %s%s" % (op, addr, src, (" offset:%d" % off) if off else ""), "ds", regs_of(addr, src), (), lds_wr=region, data=regs_of(src))
def dma(voff, srd, soff, off=0, flags="", tag=None, region=None):
    assert 0 <= off < 4096
    t = "buffer_load_dwordx4 %s, %s, %s offen%s%s lds" % (voff, srd, fmt(soff), (" offset:%d" % off) if off else "", (" " + flags) if flags else "")
    return I(t, "dma", regs_of(voff, srd, soff, M0), (), tag=tag, lds_wr=region)
def vload(dst, voff, srd, soff, off=0, flags="", tag=None):
    assert 0 <= off < 4096
    op = {1: "buffer_load_dword", 2: "buffer_load_dwordx2", 4: "buffer_load_dwordx4"}[dst.n]
    t = "%s %s, %s, %s, %s offen%s%s" % (op, dst, voff, srd, fmt(soff), (" offset:%d" % off) if off else "", (" " + flags) if flags else "")
    return I(t, "vload", regs_of(voff, srd, soff), regs_of(dst), tag=tag)
def vstore(src, voff, srd, soff, off=0, flags="", tag=None, op=None):
    assert 0 <= off < 4096
    op = op or {1: "buffer_store_dword", 2: "buffer_store_dwordx2", 4: "buffer_store_dwordx4"}[src.n]
    t = "%s %s, %s, %s, %s offen%s%s" % (op, src, voff, srd, fmt(soff), (" offset:%d" % off) if off else "", (" " + flags) if flags else "")
    return I(t, "vstore", regs_of(src, voff, srd, soff), (), tag=tag, data=regs_of(src), wide=(src.n >= 3))
def raw(text, kind="salu", rd=(), wr=()):
    return I(text, kind, regs_of(*rd), regs_of(*wr))
def wait_vm(tags):
    return I("", "wait_vm", tag=list(tags))
def wait_both(tags, lg=0):
    x = I("", "wait_both", tag=list(tags)); x.note = lg
    return x
def wait_all_vm(): return I("s_waitcnt vmcnt(0)", "wait0vm")
def wait_lgkm0(): return I("s_waitcnt lgkmcnt(0)", "wait0lgkm")
def barrier(): return I("s_barrier", "barrier")
def nop(n): return I("s_nop %d" % n, "nop", tag=n)
def label(name): return I(name + ":", "label")

VM = ("dma", "vload", "vstore")
ISVALU = ("valu", "trans", "perml", "rdlane")

class Prog:
    def __init__(self, name):
        self.name = name
        self.static = []
        self.trace = []
        self.nl = 0
        self.subs = {}
        self.substatic = []
        self.hoist = True
    def emit(self, *ins):
        for x in ins:
            if isinstance(x, (list, tuple)): self.emit(*x); continue
            self.static.append(x); self.trace.append((len(self.static) - 1, x))
    def loop(self, n, body, counter):
        self.nl += 1
        lab = "%s_loop%d" % (self.name, self.nl)
        self.emit(salu("s_mov_b32", counter, n))
        base = len(self.static)
        tail = lambda: [salu("s_sub_u32", counter, counter, 1), scmp("s_cmp_lg_u32", counter, 0), raw("s_cbranch_scc1 " + lab, "branch")]
        first = None
        for it in range(n):
            b = [label(lab)] + flatten(body(it))
            k = [i for i, x in enumerate(b) if x.kind == "loopctl"]
            t = tail()
            k2 = [i for i, x in enumerate(b) if x.kind == "loopcmp"]
            if k and k2:
                b[k[0]] = t[0]; b[k2[0]] = t[1]; b.append(t[2])
                for x in b[k2[0] + 1:-1]: assert x.kind != "salu", ("SCC clobber before the loop branch", x.text)
            elif k:
                b[k[0]:k[0] + 1] = t[:1]; b += t[1:]
            else:
                b += t
            if first is None:
                first = b; self.static += b
            else:
                assert len(b) == len(first), (len(b), len(first))
                for x, y in zip(b, first): assert x.text == y.text and x.kind == y.kind, (x.text, y.text)
            self.trace += [(base + i, x) for i, x in enumerate(b)]

    SUBBASE = 1000000
    def st(self, si): return self.static[si] if si < self.SUBBASE else self.substatic[si - self.SUBBASE]
    def call(self, name, ins, link):
        b = [label(name)] + flatten(ins) + [raw("s_setpc_b64 %s" % link, "branch", rd=[link])]
        self.emit(raw("s_call_b64 %s, %s" % (link, name), "branch", wr=[link]))
        if name not in self.subs:
            self.subs[name] = (self.SUBBASE + len(self.substatic), b); self.substatic += b
        base, first = self.subs[name]
        assert len(b) == len(first), (len(b), len(first))
        for x, y in zip(b, first): assert x.text == y.text and x.kind == y.kind, (x.text, y.text)
        self.trace += [(base + i, x) for i, x in enumerate(b)]

    def resolve(self):
        need_vm = {}; need_lg = {}
        vmq = []; lgq = []
        vm_issued = 0
        pend = {}
        seq = {"vm": 0, "lg": 0}; done = {"vm": 0, "lg": 0}
        tagpos = {}
        for (si, x) in self.trace:
            req = {"vm": None, "lg": None}
            def need(cn, s):
                if s >= done[cn]:
                    n = seq[cn] - s - 1
                    req[cn] = n if req[cn] is None else min(req[cn], n)
            if x.kind in ("wait_vm", "wait_both"):
                for t in x.tag:
                    assert t in tagpos, ("unknown tag", t)
                    need("vm", tagpos[t])
                if x.kind == "wait_both": req["lg"] = x.note
            elif x.kind == "wait0vm": done["vm"] = seq["vm"]
            elif x.kind == "wait0lgkm": done["lg"] = seq["lg"]
            else:
                for r in (x.rd | x.wr):
                    if r in pend:
                        cn, s = pend[r]
                        need(cn, s)
            for cn, tbl, mx in (("vm", need_vm, 62), ("lg", need_lg, 14)):
                if req[cn] is not None:
                    n = req[cn]; pos = si; k = 0
                    if x.kind == "mfma" and self.hoist:
                        j = si - 1; kk = 0; ok = False
                        while j >= 0 and j != self.SUBBASE - 1 and si - j <= 6:
                            y = self.st(j)
                            if y.kind == "mfma": ok = True; break
                            if y.kind in ("label", "branch", "barrier"): break
                            if (cn == "vm" and y.kind in VM) or (cn == "lg" and y.kind == "ds"): kk += 1
                            j -= 1
                        if ok and n - kk >= 0: pos = j + 1; k = kk
                    n = min(n - k, mx)
                    tbl[pos] = min(tbl.get(pos, 99), n)
                    done[cn] = max(done[cn], seq[cn] - k - n)
            if x.kind in VM:
                if x.tag is not None: tagpos[x.tag] = seq["vm"]
                for r in x.wr: pend[r] = ("vm", seq["vm"])
                seq["vm"] += 1
                assert seq["vm"] - done["vm"] <= 63 or True
            elif x.kind == "ds":
                for r in x.wr: pend[r] = ("lg", seq["lg"])
                seq["lg"] += 1
        self.need_vm, self.need_lg = need_vm, need_lg

    def expanded(self, trace):
        out = []
        for (si, x) in trace:
            w = []
            if si in self.need_vm: w.append("vmcnt(%d)" % self.need_vm[si])
            if si in self.need_lg: w.append("lgkmcnt(%d)" % self.need_lg[si])
            if w:
                wi = I("s_waitcnt " + " ".join(w), "wait"); wi.tag = (self.need_vm.get(si), self.need_lg.get(si))
                out.append(((si, "w"), wi))
            if x.kind not in ("wait_vm", "wait_both"): out.append(((si, "i"), x))
        return out

    def hazards(self):
        pads = {}
        ex = self.expanded(self.trace)
        LOOK = 12
        changed = True
        while changed:
            changed = False
            hist = []
            for (key, x) in ex:
                if x.kind == "label": continue
                dist = pads.get(key, 0)
                reqpad = 0
                for (p, st) in reversed(hist[-LOOK:]):
                    n = self.req(p, x)
                    if n > dist: reqpad = max(reqpad, n - dist)
                    dist += st
                    if dist >= 10: break
                if reqpad:
                    pads[key] = pads.get(key, 0) + reqpad; changed = True
                if pads.get(key, 0): hist.append((I("", "nop"), pads[key]))
                hist.append((x, x.tag + 1 if x.kind == "nop" else 1))
        self.pads = pads
    @staticmethod
    def req(p, c):
        n = 0
        pv = p.kind in ISVALU
        if pv:
            vw = {r for r in p.wr if r[0] in "va"}
            sw = {r for r in p.wr if r[0] in ("s", "vcc")}
            if c.kind == "mfma" and vw & c.rd: n = max(n, 2)
            if c.kind == "perml" and vw & c.rd: n = max(n, 2)
            if c.kind == "rdlane" and vw & c.rd: n = max(n, 1)
            if p.kind == "trans" and c.kind in ISVALU and vw & c.rd: n = max(n, 1)
            if sw & c.rd:
                if c.kind in ISVALU: n = max(n, 2)
                elif c.kind in VM: n = max(n, 5)
                else: n = max(n, 1)
        if p.kind == "mfma":
            if c.kind == "mfma":
                if p.wr & c.ab: n = max(n, 8)
                if p.wr & c.srcc and p.wr != c.srcc: n = max(n, 6)
                if p.wr & c.wr and not (p.wr == c.srcc): n = max(n, 0)
            elif c.kind in ISVALU or c.kind in VM or c.kind == "ds":
                if p.wr & (c.rd | c.wr): n = max(n, 8)
            if c.kind in ISVALU and p.srcc & c.wr: n = max(n, 3)
        if p.kind == "salu" and ("m", 0) in p.wr and c.kind == "dma": n = max(n, 1)
        if p.kind == "vstore" and p.wide and p.data & c.wr:
            n = max(n, 2 if c.kind in ISVALU else 1)
        return n

    def ldscheck(self):
        ex = self.expanded(self.trace)
        seq = {"vm": 0, "lg": 0}; done = {"vm": 0, "lg": 0}
        bar_done = {"vm": 0, "lg": 0}
        writes = {}
        reads = {}
        errs = []
        for (key, x) in ex:
            if x.kind == "wait":
                if x.tag[0] is not None: done["vm"] = max(done["vm"], seq["vm"] - x.tag[0])
                if x.tag[1] is not None: done["lg"] = max(done["lg"], seq["lg"] - x.tag[1])
            elif x.kind == "wait0vm": done["vm"] = seq["vm"]
            elif x.kind == "wait0lgkm": done["lg"] = seq["lg"]
            elif x.kind == "barrier": bar_done = dict(done)
            if x.lds_rd is not None:
                slots, tag, shared = x.lds_rd[:3]
                own = len(x.lds_rd) > 3
                for slot in slots:
                    w = writes.get(slot)
                    if w is None or w["tag"] != tag: errs.append(("read of wrong content", slot, tag, w and w["tag"], x.text)); continue
                    for cn, s in w["last"].items():
                        lim = bar_done[cn] if shared else done[cn]
                        if cn == "lg" and not shared: continue
                        if s >= lim: errs.append(("read before data visible", slot, tag, x.text))
                    reads.setdefault(slot, {})[shared and not own] = seq["lg"]
            if x.lds_wr is not None:
                slots, tag, shared = x.lds_wr[:3]
                ownw = (not shared) or len(x.lds_wr) > 3
                cn = "vm" if x.kind == "dma" else "lg"
                for slot in slots:
                    w = writes.get(slot)
                    if w is None or w["tag"] != tag:
                        for sh, s in reads.get(slot, {}).items():
                            priv = ownw and not sh
                            lim = done["lg"] if priv else bar_done["lg"]
                            if s >= lim and not (cn == "lg" and priv): errs.append(("write while old data may be read", slot, tag, x.text))
                        if w is not None:
                            for c2, s in w["last"].items():
                                priv = ownw and w["own"]
                                lim = done[c2] if priv else bar_done[c2]
                                if s >= lim and not (c2 == cn and priv): errs.append(("write overlaps older write", slot, tag, x.text))
                        w = writes[slot] = {"tag": tag, "last": {}, "own": ownw}
                        reads.pop(slot, None)
                    w["last"][cn] = seq[cn]
            if x.kind in VM: seq["vm"] += 1
            elif x.kind == "ds": seq["lg"] += 1
            if seq["vm"] - done["vm"] > 63: errs.append(("more than 63 vm outstanding", x.text))
        return errs

    def text(self):
        self.resolve(); self.hazards()
        errs = self.ldscheck()
        seen = set()
        for e in errs:
            k = (e[0], e[2]) if len(e) > 2 else e[0]
            if k not in seen:
                seen.add(k); print("LDSCHECK", self.name, e)
        out = []
        for (key, x) in self.expanded(list(enumerate(self.static)) + [(self.SUBBASE + i, y) for i, y in enumerate(self.substatic)]):
            p = self.pads.get(key, 0)
            while p > 0:
                k = min(p, 16); out.append("    s_nop %d" % (k - 1)); p -= k
            out.append(x.text if x.kind == "label" else "    " + x.text)
        return "\n".join(out) + "\n"
    def stats(self):
        from collections import Counter
        c = Counter(x.kind for _, x in self.trace)
        return dict(c), sum(self.pads.values())

def flatten(l):
    out = []
    for x in l:
        if isinstance(x, (list, tuple)): out += flatten(x)
        elif x is not None: out.append(x)
    return out
def loopctl(): return I("", "loopctl")
def loopcmp(): return I("", "loopcmp")
def mark(name): return I("", "mark", tag=name)

NONVEC = ("salu", "wait_vm", "wait0lgkm", "wait0vm", "barrier", "loopctl", "loopcmp", "nop", "wait_both")
class F:
    def __init__(self, ins, e, d, deps=()):
        self.grp = flatten([ins]); self.e = e; self.d = d; self.deps = list(deps); self.placed = None
def interleave(mfmas, fillers, budget=8, margin=0):
    n = len(mfmas)
    gaps = [[] for _ in range(n + 1)]
    ptr = {k: 0 for k in fillers}
    total = sum(x.cost for lst in fillers.values() for it in lst for x in it.grp if x.kind not in NONVEC)
    over = max(0, total + margin - budget * n)
    for _ in range(4):
        for lst in fillers.values():
            for i in range(len(lst) - 1, -1, -1):
                if i + 1 < len(lst): lst[i].d = min(lst[i].d, lst[i + 1].d)
                for p in lst[i].deps: p.d = min(p.d, lst[i].d)
    for k, lst in fillers.items():
        for it in lst: assert it.e <= it.d, (k, it.e, it.d, it.grp[0].text)
    acc = 0.0
    def ready(it, g): return it.e <= g and all(p.placed is not None for p in it.deps)
    for g in range(-1, n):
        vec = budget if g >= 0 else 0
        if g >= 0:
            acc += over / n
            while acc >= 4: vec += 4; acc -= 4
            cand = [(lst[ptr[k]].d, k) for k, lst in fillers.items()
                    if ptr[k] < len(lst) and ready(lst[ptr[k]], g) and len(lst[ptr[k]].grp) == 1 and lst[ptr[k]].grp[0].kind in NONVEC]
            if cand:
                k = min(cand)[1]; it = fillers[k][ptr[k]]
                gaps[g + 1] += it.grp; it.placed = g; ptr[k] += 1
        while True:
            cand = sorted((lst[ptr[k]].d, k) for k, lst in fillers.items() if ptr[k] < len(lst) and ready(lst[ptr[k]], g))
            placed = False
            for dd, k in cand:
                it = fillers[k][ptr[k]]
                tot = sum(x.cost for x in it.grp)
                pure_s = all(x.kind in NONVEC for x in it.grp)
                if ((tot <= vec or (vec >= budget and g >= 0)) and not (pure_s and len(it.grp) == 1 and dd > g + 1)) or dd <= g or g == n - 1:
                    gaps[g + 1] += it.grp; vec -= tot; it.placed = g; ptr[k] += 1; placed = True
                    break
            if not placed: break
    for k in fillers: assert ptr[k] == len(fillers[k]), (k, ptr[k], len(fillers[k]))
    out = list(gaps[0])
    for i, m in enumerate(mfmas):
        out.append(m); out += gaps[i + 1]
    return out

def est_cycles(ins):
    t = 0; vec_free = 0; mf_free = 0
    for x in ins:
        if x.kind in ("label", "wait_vm", "loopctl"): continue
        if x.kind == "mfma":
            t = max(t, vec_free, mf_free); mf_free = t + 16; vec_free = t + 8; t += 4
        elif x.kind in NONVEC or x.kind in ("wait", "branch"):
            t += 4 * (x.tag + 1) if x.kind == "nop" else 4
        else:
            t = max(t, vec_free); vec_free = t + x.cost; t += x.cost
    return t

def spread(items, e, d, slack=2, deps=()):
    out = []; m = len(items)
    for i, x in enumerate(items):
        t = e + (d - e) * i // max(1, m)
        out.append(F(x, t, min(d, t + slack), deps))
    return out
```

```python
import struct, sys, os
from fw import *
from asmlib import kernel_desc
OPT = lambda k, d="": os.environ.get(k, d)

def f32(x): return struct.unpack("<I", struct.pack("<f", x))[0]
CSCALE = f32(1.4426950408889634 / (128 ** 0.5))

sWG = S(2)
sB2 = S(3)
SRD_X, SRD_WQ, SRD_K, SRD_V = S(4, 4), S(8, 4), S(12, 4), S(16, 4)
SRD_WS, SRD_WO, SRD_OUT, SRD_DBG = S(20, 4), S(24, 4), S(28, 4), S(32, 4)
PTR = S(36, 16)
sLINK = S(52, 2)
sTG, sKVend = S(54), S(55)
sW, sHD, sQH, sB, sHP = S(56), S(57), S(58), S(59), S(60)
sCNT = S(61)
sT0, sT1, sT2, sT3 = S(62), S(63), S(64), S(65)
sEX9 = S(66, 2)
sXoff, sX9off, sWoff = S(68), S(69), S(70)
sCx, sCx9, sCw = S(71), S(72), S(73)
sSlotR, sSlotW, sDelta = S(74), S(75), S(76)
sKVbase, sCkv = S(77), S(78)
sKs, sVs, sWa, sWb, sDk, sDv = S(79), S(80), S(81), S(82), S(83), S(84)
sOffA, sOffB = S(85), S(86)
sOb0, sOb1 = S(87), S(88)
sSC = S(89)
sSP = S(90)
sSO = S(91)
sOoff, sWOoff, sCT, sLw = S(92), S(93), S(94), S(95)
sC1 = S(96)
sFl = S(46)
sRot = S(47)
sRetry, sWOend, sPoll, sDw = S(66), S(67), S(68), S(69)

OOB = 0x10000000
ASLOT = 51200
XBYTES = 18432
SG = 32768
FLG = 24 << 20
KVFLAGS = OPT("KVF", "nt")
NPF = int(OPT("NPF", "4"))
OSF = OPT("OSF", "sc1")

vLane = V(0)
vOffX, vOffW, vOffKV, vL16 = V(1), V(2), V(3), V(4)
vXa = [V(5), V(6), V(7), V(8)]
vWb = V(9)
vT = [V(10), V(11), V(12), V(13), V(14), V(15)]
vPW, vTch = V(254), V(255)
vOffKV1 = V(15)
def accA(t, j):
    if j < 4: return V(16 + (t * 4 + j) * 4, 4)
    return V(144 + {0: 0, 1: 1, 4: 2, 5: 3}[t] * 4, 4)
def Bf(buf, j, s): return A(buf * 40 + (j * 2 + s) * 4, 4)
def Af(t, s): return A(80 + (t % 4) * 8 + s * 4, 4)
def Qf(j, s): return V(160 + (j * 4 + s) * 4, 4)
PFR = {1: A(224, 32), 2: A(120, 32), 3: A(152, 32), 4: A(184, 32)}
def St(kt, j): return V(16 + (kt % 2) * 20 + j * 4, 4)
def Pf(buf, u, j): return V(56 + buf * 36 + (u * 5 + j) * 4, 4)
def Cb(j): return V(128 + 4 * j, 4)
def vL(j): return V(148 + j)
def vMin(j): return V(153 + j)
def Oa(t, j): return A((t * 5 + j) * 4, 4)
def Kf(kt, s): return A(160 + (kt % 2) * 16 + s * 4, 4)
def Vf(t, u): return A(192 + (t % 4) * 8 + u * 4, 4)
def vKa(s0, u): return V(240 + s0 * 2 + u)
def vVa(t2, u): return V(244 + t2 * 2 + u)
NINTH_T = (0, 1, 4, 5)

STAMPS = False
def stamp():
    if not STAMPS: return []
    return [raw("s_memrealtime s[100:101]"), raw("s_memtime s[98:99]"), wait_lgkm0(), raw("s_mov_b32 m0, s97"),
            raw("v_writelane_b32 v252, s100, m0", "valu"), raw("v_writelane_b32 v253, s98, m0", "valu"), raw("s_add_u32 s97, s97, 1")]
def stamp_init():
    if not STAMPS: return []
    return [raw("s_mov_b32 s97, 0"), raw("v_mov_b32 v252, 0", "valu"), raw("v_mov_b32 v253, 0", "valu")] + stamp()
def stamp_store(base):
    if not STAMPS: return []
    o = [raw("s_mov_b64 exec, -1"), wait_all_vm()] + stamp()
    o += srd(SRD_DBG, 7, 1 << 28)
    o += [salu("s_lshl_b32", sT0, sWG, 2), salu("s_add_u32", sT0, sT0, sW), salu("s_lshl_b32", sT0, sT0, 9), salu("s_add_u32", sT0, sT0, base),
          valu("v_lshlrev_b32", vT[0], 3, vLane), raw("s_nop 4"), vstore(V(252, 2), vT[0], SRD_DBG, sT0)]
    return o

def srd(dst, ptr_idx, nbytes):
    return [salu("s_mov_b32", dst[0], PTR[2 * ptr_idx]), salu("s_mov_b32", dst[1], PTR[2 * ptr_idx + 1]),
            salu("s_mov_b32", dst[2], nbytes), salu("s_mov_b32", dst[3], 0x20000)]

def gran(lo, n): return list(range(lo // 2048, (lo + n + 2047) // 2048))
def regA(st): return (gran((st % 3) * ASLOT, ASLOT), ("A", st), True)
def sigB(n): return (n + 2) % 5
def regB(n): return (gran(sigB(n) * SG, SG), ("B", n), True)
def regBw(n): return regB(n) + ("own",)

def vm_fillers(groups, g0, g1, slack=2):
    out = []; n = len(groups)
    for i, grp in enumerate(groups):
        t = g0 + (g1 - g0) * i // max(1, n)
        isv = [any(y.kind in VM for y in flatten([x])) for x in grp]
        k = isv.index(True) if True in isv else len(grp) - 1
        for q, x in enumerate(grp):
            e = max(0, t + q - k)
            out.append(F(x, e, max(e, t) + slack))
    return out

def end_stream(n, tags, loop=False, lg=0):
    o = []
    if loop: o += [F(loopctl(), n - 5, n - 5)] + ([] if STAMPS else [F(loopcmp(), n - 4, n - 4)])
    o += [F(wait_both(tags, lg), n - 3, n - 3), F([barrier()] + stamp(), n - 2, n - 2)]
    return o

def setup(p):
    p.emit(scmp("s_cmp_ge_u32", sWG, 256), raw("s_cbranch_scc1 mha_end", "branch"))
    p.emit(raw("s_load_dwordx16 %s, s[0:1], 0" % PTR, wr=[PTR]))
    p.emit(valu("v_lshrrev_b32", vT[0], 6, V(0)), valu("v_and_b32", vLane, 63, V(0)))
    p.emit(valu("v_readfirstlane_b32", sW, vT[0]))
    p.emit(valu("v_lshlrev_b32", vL16, 4, vLane))
    p.emit(valu("v_lshrrev_b32", vT[2], 4, vLane), valu("v_lshlrev_b32", vT[3], 1, vT[2]),
           valu("v_and_b32", vT[1], 7, vLane), valu("v_xor_b32", vT[1], vT[1], vT[3]), valu("v_lshlrev_b32", vT[1], 4, vT[1]))
    p.emit(valu("v_lshrrev_b32", vT[4], 3, vLane))
    p.emit(valu("v_lshl_add_u32", vOffX, vT[4], 11, vT[1]))
    p.emit(salu("s_lshr_b32", sHD, sW, 1), salu("s_and_b32", sQH, sW, 1))
    p.emit(salu("s_and_b32", sT0, sWG, 7), salu("s_lshr_b32", sT1, sWG, 3))
    p.emit(salu("s_and_b32", sB, sT0, 1), salu("s_lshl_b32", sB, sB, 3), salu("s_and_b32", sT2, sT1, 7), salu("s_add_u32", sB, sB, sT2))
    p.emit(salu("s_lshr_b32", sHP, sT0, 1), salu("s_lshl_b32", sHP, sHP, 2), salu("s_lshr_b32", sT2, sT1, 3), salu("s_add_u32", sHP, sHP, sT2))
    p.emit(salu("s_mul_i32", sT0, sB, 294912))
    p.emit(salu("s_lshl_b32", sT1, sW, 16), salu("s_add_u32", sXoff, sT0, sT1))
    p.emit(salu("s_add_u32", sT1, sHD, 16), salu("s_lshl_b32", sCx9, sT1, 10), salu("s_lshl_b32", sT1, sT1, 14), salu("s_add_u32", sX9off, sT0, sT1))
    p.emit(salu("s_lshl_b32", sCx, sW, 12))
    p.emit(salu("s_lshl_b32", sWoff, sQH, 16), salu("s_lshl_b32", sT1, sHP, 9), salu("s_add_u32", sWoff, sWoff, sT1),
           salu("s_lshl_b32", sT1, sHD, 8), salu("s_add_u32", sWoff, sWoff, sT1))
    p.emit(salu("s_lshl_b32", sCw, sHD, 14), salu("s_lshl_b32", sT1, sQH, 11), salu("s_add_u32", sCw, sCw, sT1), salu("s_add_u32", sCw, sCw, XBYTES))
    SK = OPT("SKEW", "1")
    if SK != "0":
        if SK == "1":
            p.emit(salu("s_lshl_b32", sT1, sB, 1), salu("s_lshl_b32", sT2, sHP, 2), salu("s_xor_b32", sT1, sT1, sT2))
        elif SK == "2":
            p.emit(salu("s_lshl_b32", sT1, sB, 1), salu("s_lshr_b32", sT2, sB, 3), salu("s_or_b32", sT1, sT1, sT2),
                   salu("s_lshl_b32", sT2, sHP, 2), salu("s_xor_b32", sT1, sT1, sT2), salu("s_lshr_b32", sT2, sHP, 2), salu("s_xor_b32", sT1, sT1, sT2))
        elif SK == "3":
            p.emit(salu("s_lshl_b32", sT2, sHP, 1), salu("s_xor_b32", sT1, sB, sT2), salu("s_and_b32", sT1, sT1, 7))
        p.emit(salu("s_and_b32", sT1, sT1, 15), salu("s_lshl_b32", sT2, sT1, 7), salu("s_add_u32", sXoff, sXoff, sT2), salu("s_add_u32", sX9off, sX9off, sT2),
               salu("s_lshl_b32", sT2, sT1, 19), salu("s_add_u32", sWoff, sWoff, sT2))
    p.emit(scmp("s_cmp_eq_u32", sQH, 0), salu("s_cselect_b32", sEX9[0], -1, 0), salu("s_cselect_b32", sEX9[1], 0, -1))
    p.emit(salu("s_lshl_b32", sT1, sQH, 2), valu("v_or_b32", vT[3], sT1, vT[2]), valu("v_lshlrev_b32", vT[3], 1, vT[3]),
           valu("v_and_b32", vT[4], 15, vLane), valu("v_xor_b32", vT[3], vT[3], vT[4]), valu("v_lshlrev_b32", vT[3], 4, vT[3]),
           valu("v_lshl_add_u32", vOffW, vT[2], 13, vT[3]))
    p.emit(wait_lgkm0(), stamp_init())
    p.emit(srd(SRD_X, 0, 16 * 144 * 2048), srd(SRD_WQ, 3, 1024 * 8192))

def setup2(p):
    p.emit(srd(SRD_K, 1, 1 << 26), srd(SRD_V, 2, 1 << 26), srd(SRD_WS, 7, FLG + 65536))
    p.emit(srd(SRD_WO, 4, 4096 * 2048), srd(SRD_OUT, 5, 16 * 144 * 2048), srd(SRD_DBG, 6, 256))
    p.emit(valu("v_lshrrev_b32", vT[3], 1, vT[4]), valu("v_and_b32", vT[3], 3, vT[3]), valu("v_lshlrev_b32", vT[3], 1, vT[3]),
           valu("v_xor_b32", vT[3], vT[3], vT[2]), valu("v_lshlrev_b32", vT[3], 4, vT[3]))
    p.emit(valu("v_lshrrev_b32", vT[5], 2, vT[4]), valu("v_lshlrev_b32", vT[5], 10, vT[5]), valu("v_and_b32", vT[0], 3, vT[4]),
           valu("v_lshl_add_u32", vT[5], vT[0], 7, vT[5]), valu("v_add_u32", vT[5], vT[5], vT[3]))
    p.emit(salu("s_lshl_b32", sT0, sHD, 14), salu("s_add_u32", sT0, sT0, 2 * SG), valu("v_add_u32", vT[5], sT0, vT[5]))
    p.emit(salu("s_mul_i32", sT1, sQH, 8192 + 64), valu("v_xor_b32", vKa(0, 0), sT1, vT[5]))
    p.emit(valu("v_xor_b32", vKa(0, 1), 8192, vKa(0, 0)), valu("v_xor_b32", vKa(1, 0), 64, vKa(0, 0)), valu("v_xor_b32", vKa(1, 1), 64, vKa(0, 1)))
    p.emit(valu("v_lshl_add_u32", vT[3], vT[4], 7, vT[3]))
    p.emit(salu("s_lshl_b32", sT1, sQH, 13), valu("v_add_u32", vXa[0], sT1, vT[3]),
           valu("v_xor_b32", vXa[1], 64, vXa[0]), valu("v_add_u32", vXa[2], 128 * 128, vT[3]), valu("v_xor_b32", vXa[3], 64, vXa[2]))
    r_, cp = vT[0], vT[1]
    p.emit(valu("v_bfe_u32", r_, vLane, 2, 2), valu("v_and_b32", cp, 3, vLane))
    p.emit(valu("v_and_b32", vT[3], 1, vT[2]), valu("v_lshl_add_u32", vT[3], vT[3], 2, r_))
    p.emit(salu("s_lshl_b32", sT1, sQH, 1), valu("v_xor_b32", vT[5], sT1, vT[3]), valu("v_lshlrev_b32", vT[5], 5, vT[5]),
           valu("v_lshl_add_u32", vT[5], cp, 3, vT[5]), valu("v_lshl_add_u32", vT[4], vT[2], 3, r_), valu("v_lshl_add_u32", vT[5], vT[4], 8, vT[5]))
    p.emit(salu("s_lshl_b32", sT0, sHD, 14), salu("s_add_u32", sT0, sT0, XBYTES), valu("v_add_u32", vWb, sT0, vT[5]))
    p.emit(valu("v_lshrrev_b32", vT[4], 1, vT[3]), valu("v_xor_b32", vT[4], sT1, vT[4]), valu("v_lshlrev_b32", vT[4], 5, vT[4]),
           valu("v_lshl_add_u32", vT[4], cp, 3, vT[4]), valu("v_lshl_add_u32", vT[4], r_, 7, vT[4]),
           valu("v_lshl_add_u32", vT[4], vT[2], 10, vT[4]))
    p.emit(salu("s_lshl_b32", sCkv, sW, 13), salu("s_add_u32", sT0, sCkv, 4 * SG), valu("v_add_u32", vVa(0, 0), sT0, vT[4]))
    for t2 in range(4):
        if t2: p.emit(valu("v_xor_b32", vVa(t2, 0), t2 << 5, vVa(0, 0)))
        p.emit(valu("v_xor_b32", vVa(t2, 1), 8192, vVa(t2, 0)))
    p.emit(salu("s_lshl_b32", sT0, sB, 5), salu("s_lshl_b32", sT1, sHP, 1), salu("s_add_u32", sT0, sT0, sT1), salu("s_add_u32", sT0, sT0, sHD))
    p.emit(salu("s_lshl_b32", sKVbase, sT0, 17), salu("s_lshl_b32", sT1, sQH, 13), salu("s_add_u32", sKVbase, sKVbase, sT1),
           salu("s_add_u32", sKVend, sKVbase, 8 * 16384))
    p.emit(salu("s_lshl_b32", sT0, sT0, 2), salu("s_add_u32", sT1, sT0, sQH), salu("s_mul_i32", sOb0, sT1, 9216),
           salu("s_xor_b32", sT1, sT1, 1), salu("s_mul_i32", sOb1, sT1, 9216))
    p.emit(salu("s_and_b32", sT0, sWG, 7), salu("s_lshr_b32", sT1, sWG, 3))
    p.emit(salu("s_and_b32", sB2, sT0, 3), salu("s_lshl_b32", sB2, sB2, 2), salu("s_and_b32", sT2, sT1, 3), salu("s_add_u32", sB2, sB2, sT2))
    p.emit(salu("s_lshr_b32", sCT, sT0, 2), salu("s_lshl_b32", sCT, sCT, 3), salu("s_lshr_b32", sT2, sT1, 2), salu("s_add_u32", sCT, sCT, sT2))
    p.emit(salu("s_lshl_b32", sTG, sWG, 15), salu("s_add_u32", sTG, sTG, sCkv))
    p.emit(valu("v_add_u32", vPW, sCkv, vL16))
    p.emit(valu("v_bfe_u32", vT[0], vLane, 3, 2), valu("v_and_b32", vT[1], 2, vT[0]), valu("v_and_b32", vT[3], 7, vLane),
           valu("v_xor_b32", vT[1], vT[1], vT[3]), valu("v_lshlrev_b32", vT[1], 4, vT[1]), valu("v_lshl_add_u32", vT[1], vT[0], 8, vT[1]),
           valu("v_lshrrev_b32", vT[0], 5, vLane), valu("v_lshl_add_u32", vOffKV, vT[0], 7, vT[1]), valu("v_xor_b32", vOffKV1, 64, vOffKV))
    if OPT("ROT", "1") == "1": p.emit(salu("s_add_u32", sRot, sT1, sWG), salu("s_and_b32", sRot, sRot, 7), salu("s_lshl_b32", sRot, sRot, 14))
    else: p.emit(salu("s_mov_b32", sRot, 0))
    p.emit(salu("s_mov_b32", sSC, CSCALE), salu("s_mov_b32", sSlotR, 0), salu("s_mov_b32", sSlotW, 2 * ASLOT), salu("s_mov_b32", sC1, ASLOT))
    for i in range(16, 160): p.emit(valu("v_mov_b32", V(i), 0))
    for i in list(range(40, 72)) + list(range(96, 112)): p.emit(valu("v_accvgpr_write_b32", A(i), 0))

def dma_batchA(st):
    reg = regA(st); tag = ("A", st)
    g = []
    rows = [0, 4, 16, 20, 32, 36, 48, 52]
    def wq(i):
        pi = rows[i] // 4
        m = salu("s_add_u32", M0, sSlotW, sCw) if i == 0 else salu("s_add_u32", M0, M0, (pi - rows[i - 1] // 4) * 1024)
        return [m, salu("s_add_u32", sSO, sWoff, rows[i] * 8192), dma(vOffW, SRD_WQ, sSO, flags=OPT("WQF"), tag=tag, region=reg)]
    def xx(i):
        m = salu("s_add_u32", M0, sSlotW, sCx) if i == 0 else salu("s_add_u32", M0, M0, 1024)
        return [m, salu("s_add_u32", sSO, sXoff, i * 16384), dma(vOffX, SRD_X, sSO, flags=OPT("XF"), tag=tag, region=reg)]
    for i in range(4): g.append(xx(i))
    g.append([salu("s_add_u32", M0, sSlotW, sCx9),
              [salu("s_mov_b64", EXEC, sEX9), dma(vOffX, SRD_X, sX9off, flags=OPT("XF"), tag=tag, region=reg), salu("s_mov_b64", EXEC, -1)]])
    for i in range(8): g.append(wq(i))
    dl = (st ^ (st + 1)) & 15
    adv = [salu("s_xor_b32", sXoff, sXoff, dl * 128), salu("s_xor_b32", sX9off, sX9off, dl * 128), salu("s_xor_b32", sWoff, sWoff, dl * 64 * 8192)]
    return g, adv

def entry_src(n):
    if n == 0: return SRD_K, 0
    return (SRD_K, (n + 1) // 2) if n % 2 else (SRD_V, n // 2 - 1)

def kv_batch(n, srd_=None, soff=None, ldsbase=None):
    const = 0
    if srd_ is None:
        srd_, ch = entry_src(n); soff = sKVbase; const = ch * 16384; ldsbase = sigB(n) * SG
    g = []
    KVCL = int(OPT("KVCL", "1"))
    for i in range(8):
        grp = []
        if i % 4 == 0:
            m = salu("s_add_u32", M0, sCkv, ldsbase) if i == 0 else salu("s_add_u32", M0, M0, 4096)
            grp += [m, salu("s_add_u32", sSO, soff, const + i * 1024), salu("s_xor_b32", sSO, sSO, sRot)]
        grp.append(dma(vOffKV1 if i % 2 else vOffKV, srd_, sSO, (i % 4) * 1024, flags=KVFLAGS, tag=("B", n), region=regBw(n)))
        if i % KVCL == 0: g.append(grp)
        else: g[-1] += grp
    return g

def pf_load(n, i):
    srd_, ch = entry_src(n)
    return [salu("s_add_u32", sSP, sKVbase, ch * 16384 + (i >> 2) * 4096), salu("s_xor_b32", sSP, sSP, sRot),
            vload(PFR[n][4 * i:4 * i + 4], vOffKV1 if i % 2 else vOffKV, srd_, sSP, (i % 4) * 1024, flags=KVFLAGS)]
def pf_write(n, tmp):
    base = sigB(n) * SG
    o = [valu("v_add_u32", tmp, base, vPW)] if base else []
    ad = tmp if base else vPW
    return o + [ds_write("ds_write_b128", ad, PFR[n][4 * i:4 * i + 4], i * 1024, regBw(n)) for i in range(8)]

def blockA(t, buf, rev, s_first):
    js = [0, 1, 2, 3] + ([4] if t in NINTH_T else [])
    if rev: js = js[::-1]
    out = []; s = s_first
    for j in js:
        for k in (s, 1 - s): out.append(mfma(accA(t, j), Af(t, k), Bf(buf, j, k)))
        s = 1 - s
    return out, s

XINL = 22
def epochA(e, groups, adv, g0, g1, endtags, extra=None, ndum=0):
    buf = e % 2
    mf = []; start = {}; end = {}
    s = 0
    for key, t, b in [("L6", 6, 1 - buf), ("L7", 7, 1 - buf)] + [(t, t, buf) for t in range(6)]:
        start[key] = len(mf)
        blk, s = blockA(t, b, rev=(t % 2 == 1), s_first=s)
        mf += blk; end[key] = len(mf) - 1
    n = len(mf)
    reg = regA(e)
    def rdA(t):
        tmp = vWb if t == 0 else vT[t % 2]
        o = [] if t == 0 else [valu("v_xor_b32", tmp, t << 5, vWb)]
        return o + [ds_read("ds_read_b64_tr_b16", Af(t, s_)[2 * h:2 * h + 2], tmp, s_ * 8192 + h * 1024, reg) for s_ in range(2) for h in range(2)]
    def rdB(j, s_):
        ad = vXa[s_] if j < 4 else vXa[2 + s_]
        return ds_read("ds_read_b128", Bf(buf, j, s_), ad, (j * 2048) if j < 4 else 0, reg)
    a0 = rdA(0)
    first = [rdB(0, 0), a0[0], a0[1], rdB(0, 1), a0[2], a0[3], rdB(1, 1), rdB(1, 0), rdB(2, 0), rdB(2, 1), rdB(3, 1), rdB(3, 0), rdB(4, 0), rdB(4, 1)]
    lds = spread(first, -1, 15, slack=1)
    lds += spread(rdA(1), 15, 20, slack=1)
    prev = {2: "L6", 3: "L7", 4: 0, 5: 1, 6: 2, 7: 3}
    pos = 20
    for t in range(2, 8):
        lo = max(end[prev[t]], pos)
        lds += spread(rdA(t), lo, lo + 6, slack=1); pos = lo + 6
        assert t >= 6 or pos + 1 <= start[t] - 4, (t, pos, start[t])
    if ndum:
        lds += spread([ds_read("ds_read_b32", V(161 + i), vL16) for i in range(ndum)], pos + 1, pos + 1 + ndum // 2, slack=1)
    fl = {"lds": lds, "end": end_stream(n, endtags, lg=ndum)}
    vm = vm_fillers(groups, g0, g1) if groups else []
    vm += [F(x, g1, n - 6) for x in adv]
    if e < 15:
        sel = F([scmp("s_cmp_eq_u32", sSlotR, 2 * ASLOT), salu("s_cselect_b32", sDelta, -2 * ASLOT, sC1)], g1, n - 6)
        vm += [F(salu("s_mov_b32", sSlotW, sSlotR), g1, n - 6), sel, F(salu("s_add_u32", sSlotR, sSlotR, sDelta), g1, n - 5)]
        lds += [F(valu("v_add_u32", r, sDelta, r), pos + 1, n - 1, [sel]) for r in [vWb] + vXa]
    fl["vm"] = vm
    if extra: fl.update(extra(start, end, n))
    return interleave(mf, fl)

def split_at_mfma(ins, k):
    idx = [i for i, x in enumerate(ins) if x.kind == "mfma"][k]
    return ins[:idx], ins[idx:]

def q_convert(j, s, pk=False):
    t0, t1 = 2 * s, 2 * s + 1
    a0, a1, q = accA(t0, j), accA(t1, j), Qf(j, s)
    o = []
    for a_ in (a0, a1):
        for r in range(4): o.append(valu("v_mul_f32", a_[r], sSC, a_[r]))
    o += [valu("v_cvt_pk_bf16_f32", q[0], a0[0], a0[1]), valu("v_cvt_pk_bf16_f32", q[2], a1[0], a1[1]),
          valu("v_cvt_pk_bf16_f32", q[1], a0[2], a0[3]), valu("v_cvt_pk_bf16_f32", q[3], a1[2], a1[3])]
    sw1 = [valu("v_permlane32_swap_b32", q[0], q[2]), valu("v_permlane32_swap_b32", q[1], q[3])]
    sw2 = [valu("v_permlane16_swap_b32", q[0], q[2]), valu("v_permlane16_swap_b32", q[1], q[3])]
    return o, sw1, sw2
def q_convert_seq(items):
    out = []; pend1 = pend2 = None
    for it in items:
        o, s1, s2 = q_convert(*it)
        out += o[:6]
        if pend2: out += pend2
        pend2 = None
        out += o[6:]
        if pend1: out += pend1[0]; pend2 = pend1[1]
        pend1 = (s1, s2)
    if pend2: out += pend2
    out += pend1[0] + pend1[1]
    return out

def phaseA(p):
    for st in range(2):
        p.emit(salu("s_mov_b32", sSlotW, st * ASLOT))
        g, adv = dma_batchA(st)
        p.emit(g, adv)
    if OPT("CW", "1") == "1":
        p.emit(raw("s_getpc_b64 s[16:17]", wr=[S(16, 2)]), label("mha_pc"), salu("s_and_b32", S(17), S(17), 0xffff),
               raw("s_mov_b32 s18, mha_code_end-mha_pc", wr=[S(18)]), salu("s_mov_b32", S(19), 0x20000))
        p.emit(salu("s_lshr_b32", sT0, sWG, 3), salu("s_lshl_b32", sT0, sT0, 2), salu("s_add_u32", sT0, sT0, sW), salu("s_lshl_b32", sT0, sT0, 7),
               valu("v_lshlrev_b32", vT[0], 14, vLane), vload(V(200), vT[0], S(16, 4), sT0))
    setup2(p)
    p.emit(salu("s_lshl_b32", sT0, sB2, 4), salu("s_add_u32", sT0, sT0, sCT), salu("s_lshl_b32", sT0, sT0, 8), salu("s_add_u32", sFl, sT0, FLG),
           scmp("s_cmp_eq_u32", sW, 0), salu("s_cselect_b32", sT0, sFl, OOB), salu("s_mov_b64", EXEC, 1),
           vstore(V(16), V(17), SRD_WS, sT0, flags="sc0 sc1", tag="ZF"), salu("s_mov_b64", EXEC, -1))
    p.emit(wait_vm([("A", 0)]), barrier(), stamp())
    pf = [pf_load(n, i) for n in range(1, NPF + 1) for i in range(8)]
    if OPT("TWO", "1") == "1":
        tw = [[salu("s_add_u32", sSP, sTG, (i >> 2) * 4096), vload(V(160 + 4 * i, 4), vL16, SRD_WO, sSP, (i & 3) * 1024)] for i in range(8)]
        m = len(pf) + len(tw); mix = []
        if OPT("TWP", "mix") == "mix":
            for k in range(m):
                mix.append(tw.pop(0) if (tw and ((k + 1) * 8 // m > k * 8 // m)) else pf.pop(0))
        else: mix = tw + pf
        pf = mix
    if OPT("PRE", "0") == "1":
        pre = []
        for s_ in range(4):
            for j in range(4):
                pre.append([salu("s_lshl_b32", sSP, sQH, 12), salu("s_add_u32", sSP, sSP, sOb0 if s_ % 2 == 0 else sOb1),
                            salu("s_add_u32", sSP, sSP, (s_ >> 1) * 18432), vstore(V(240, 4), vL16, SRD_WS, sSP, j * 1024, flags=OSF)])
        for i in range(2): pre.append([salu("s_add_u32", sSP, sOb0, 8192 + i * 18432), vstore(V(240, 4), vL16, SRD_WS, sSP, 0, flags=OSF)])
        m = len(pf) + len(pre); mix = []; np_ = len(pre)
        for k in range(m):
            mix.append(pre.pop(0) if (pre and ((k + 1) * np_ // m > k * np_ // m)) else pf.pop(0))
        pf = mix
    PF0 = int(OPT("PF0", "1"))
    pos = [PF0 * 72 + (14 - PF0) * 72 * (2 * k + 1) // (2 * len(pf)) for k in range(len(pf))]
    for e in range(14):
        g, adv = dma_batchA(e + 2)
        def extra(start, end, n):
            o = []
            for k, x in enumerate(pf):
                if pos[k] // 72 == e:
                    t = min(max(pos[k] % 72, 3), n - 6)
                    o += vm_fillers([x], t, t)
            if e == 2:
                o = [F([wait_vm(["ZF"]), salu("s_lshl_b32", sT0, sB2, 4), scmp("s_cmp_eq_u32", sW, 0), salu("s_cselect_b32", sT0, sT0, OOB),
                        valu("v_mov_b32", V(204), 0), valu("v_mov_b32", V(205), 1), salu("s_mov_b64", EXEC, 1),
                        vstore(V(205), V(204), SRD_DBG, sT0, flags="sc1", op="buffer_atomic_add"), salu("s_mov_b64", EXEC, -1)], 40, 44)] + o
                o.sort(key=lambda f: f.e)
            return {"pf": o} if o else {}
        p.emit(epochA(e, g, adv, 2, 62, [("A", e + 1)], extra))
    p.emit(epochA(14, kv_batch(0), [], 4, 60, [("A", 15)]))
    def extra15(start, end, n):
        d = {}
        w = []
        for m in (1, 2):
            if m <= NPF: w += pf_write(m, vT[2 + m])
        if w: d["pw"] = spread(w, 16, 60, slack=2)
        cv = [F(x, end[1] + 4, n - 1) for x in q_convert_seq([(4, 0)] + [(j, 0) for j in range(4)])]
        d["cv"] = cv
        return d
    g = []
    for m in (1, 2):
        if m > NPF: g += kv_batch(m)
    p.emit(epochA(15, g, [], 4, 64, [], extra15))
    mf = []; s = 0
    for t in (6, 7):
        blk, s = blockA(t, 1, rev=(t % 2 == 1), s_first=s); mf += blk
    fl = {}
    if NPF >= 3: fl["pw"] = spread(pf_write(3, vT[2]), 0, 15, slack=1)
    else: fl["vm"] = vm_fillers(kv_batch(3), 2, 14, slack=0)
    fl["cv"] = [F(x, 2, 15) for x in q_convert_seq([(4, 2)] + [(j, 1) for j in range(4)])]
    p.emit(interleave(mf, fl))
    reg = (gran(SG, SG), "X", True)
    p.emit(valu("v_xor_b32", vT[0], SG + 8192, vPW))
    p.emit(ds_write("ds_write_b128", vT[0], Qf(4, 0), 0, reg), ds_write("ds_write_b128", vT[0], Qf(4, 2), 1024, reg))
    p.emit(q_convert_seq([(j, s_) for j in range(4) for s_ in (2, 3)]))
    p.emit(stamp(), wait_both([("B", 0)]), barrier(), stamp())
    reg = reg + ("own",)
    p.emit(ds_read("ds_read_b128", Qf(4, 1), vPW, SG, reg), ds_read("ds_read_b128", Qf(4, 3), vPW, SG + 1024, reg))
    if NPF >= 4: p.emit(pf_write(4, vT[2]))

def blockQ(kt, czero=False):
    js = [0, 1, 2, 3] + ([4] if kt < 2 else [])
    out = []; last = {}; first = {}; fwd = True
    for j in js:
        ss = [0, 1, 2, 3] if fwd else [3, 2, 1, 0]
        first[j] = len(out)
        for i, s in enumerate(ss):
            c = None if i else (0 if czero else Cb(j))
            out.append(mfma(St(kt, j), Kf(kt, s), Qf(j, s), c))
        last[j] = len(out) - 1
        fwd = not fwd
    return out, first, last

def blockP(b, buf, zero=False):
    out = []
    for t in (2 * b, 2 * b + 1):
        nin = mfma(Oa(t, 4), Vf(t, 0), Pf(buf, 0, 4), 0 if zero else None)
        if t % 2: out.append(nin)
        u = 0
        for j in ((0, 1, 2, 3) if t % 2 == 0 else (3, 2, 1, 0)):
            for i, k in enumerate((u, 1 - u)): out.append(mfma(Oa(t, j), Vf(t, k), Pf(buf, k, j), 0 if (zero and i == 0) else None))
            u = 1 - u
        if t % 2 == 0: out.append(nin)
    return out

def softmax_tile(kt, j, buf, e, d, ex, rest, sub=False):
    s = St(kt, j); pf = Pf(buf, kt // 2, j)[2 * (kt % 2):2 * (kt % 2) + 2]
    E = []
    for r in range(4):
        ins = [valu("v_exp_f32", s[r], s[r])]
        if sub: ins = [valu("v_add_f32", s[r], s[r], Cb(j)[0])] + ins
        E.append(F(ins, e, d))
    ex += E
    rest += [F(valu("v_add_f32", vL(j), vL(j), s[0]), e, d, [E[1]]), F(valu("v_cvt_pk_bf16_f32", pf[0], s[0], s[1]), e, d, [E[2]]),
             F(valu("v_add_f32", vL(j), vL(j), s[1]), e, d), F(valu("v_add_f32", vL(j), vL(j), s[2]), e, d, [E[3]]),
             F(valu("v_cvt_pk_bf16_f32", pf[1], s[2], s[3]), e, d), F(valu("v_add_f32", vL(j), vL(j), s[3]), e, d)]

def rdK(kt, n):
    return [ds_read("ds_read_b128", Kf(kt, s), vKa(s & 1, kt >> 1), (kt & 1) * 4096 + (s >> 1) * 512, regB(n)) for s in range(4)]
def rdV(t, n):
    return [ds_read("ds_read_b64_tr_b16", Vf(t, u)[2 * h:2 * h + 2], vVa(t & 3, u), h * 4096 + (t >> 2) * 512, regB(n))
            for u in range(2) for h in range(2)]

def rowmax(j):
    s = St(0, j); m, t = vT[2 * (j % 2)], vT[1 + 2 * (j % 2)]
    o = [valu("v_max3_f32", m, s[0], s[1], s[2]), valu("v_max3_f32", m, m, s[3], vMin(j)),
         valu("v_mov_b32", t, m), valu("v_permlane32_swap_b32", m, t), valu("v_max_f32", m, m, t),
         valu("v_mov_b32", t, m), valu("v_permlane16_swap_b32", m, t), valu("v_max_f32", m, m, t)]
    o += [valu("v_sub_f32", Cb(j)[r], 0, m) for r in range(4)]
    return o

def prologueB(p):
    for j in range(5): p.emit(valu("v_mov_b32", vMin(j), 0xff800000))
    p.emit(salu("s_mov_b32", sRetry, 0))
    p.emit(label("mha_attn_entry"))
    p.emit(rdK(0, 0), rdK(1, 0))
    for j in range(5): p.emit(valu("v_mov_b32", vL(j), 0))
    mf = []; st = {}; fi = {}; la = {}
    for kt in range(4):
        q, f_, l_ = blockQ(kt, czero=(kt == 0))
        st[kt] = len(mf); fi[kt] = {j: v + len(mf) for j, v in f_.items()}; la[kt] = {j: v + len(mf) for j, v in l_.items()}
        mf += q
    n = len(mf)
    mx = {}
    m0_, m1_ = [], []
    for j in range(5):
        lst = [F(x, la[0][j] + 3, fi[1][j] - 2) for x in rowmax(j)]
        (m0_ if j % 2 == 0 else m1_).extend(lst); mx[j] = lst[-1]
    ex, rest = [], []
    for j in range(5):
        k = len(ex)
        softmax_tile(0, j, 0, la[0][j] + 3, (fi[2][j] - 1) if j < 4 else n - 1, ex, rest, sub=True)
        ex[k].deps.append(mx[j])
    for j in range(5): softmax_tile(1, j, 0, la[1][j] + 3, (fi[3][j] - 1) if j < 4 else n - 1, ex, rest)
    for j in range(4): softmax_tile(2, j, 0, la[2][j] + 3, n - 1, ex, rest)
    lds = spread(rdK(2, 0), st[1] - 1, st[1] + 8) + spread(rdK(3, 0), st[2] - 1, st[2] + 6)
    lds += [F(valu("v_add_u32", vKa(s0, u), SG, vKa(s0, u)), st[2] + 8, n - 1) for u in range(2) for s0 in range(2)]
    sc = [salu("s_mov_b32", sKs, 3 * SG), salu("s_mov_b32", sVs, 4 * SG), salu("s_mov_b32", sWb, 2 * SG),
          salu("s_add_u32", sOffA, sKVbase, 16384), salu("s_add_u32", sOffB, sKVbase, 3 * 16384), salu("s_mov_b32", sC1, 2 * SG)]
    vm = [F(x, 0, 20) for x in sc]
    tags = [("B", m) for m in (1, 2) if m > NPF]
    if NPF < 4: vm += [F(wait_lgkm0(), 21, 21)] + vm_fillers(kv_batch(4), 24, n - 8)
    fl = {"m0": m0_, "m1": m1_, "ex": ex, "rest": rest, "lds": lds, "vm": vm}
    p.emit(interleave(mf, fl))
    p.emit(stamp(), wait_both(tags), barrier(), stamp())

def lsum(j):
    l, t = vL(j), vT[2 + j % 2]
    return [valu("v_mov_b32", t, l), valu("v_permlane32_swap_b32", l, t), valu("v_add_f32", l, l, t),
            valu("v_mov_b32", t, l), valu("v_permlane16_swap_b32", l, t), valu("v_add_f32", l, l, t)]

_cvk = [0]
def o_convert(s, j):
    k = _cvk[0]; _cvk[0] += 1
    T = V(16 + (k % 4) * 8, 8); Pk = V(56 + (k % 8) * 4, 4)
    o = []
    for h in range(2):
        for r in range(4): o.append(valu("v_accvgpr_read_b32", T[4 * h + r], Oa(2 * s + h, j)[r]))
    for r in range(8): o.append(valu("v_mul_f32", T[r], T[r], vL(j)))
    for r in range(4): o.append(valu("v_cvt_pk_bf16_f32", Pk[r], T[2 * r], T[2 * r + 1]))
    o.append(vstore(Pk, vL16, SRD_WS, sSP, j * 1024, flags=OSF, tag="OST"))
    return o
def o_group(s):
    o = [salu("s_lshl_b32", sSP, sQH, 12), salu("s_add_u32", sSP, sSP, sOb0 if s % 2 == 0 else sOb1)]
    if s >> 1: o.append(salu("s_add_u32", sSP, sSP, 18432))
    for j in range(4): o += o_convert(s, j)
    return o

LMAX = f32(2.0 ** 24)
MSG = 2 * SG
FLAGS_LDS = MSG + 6144
regM = (gran(MSG, SG), "M", True)

def epochB(e, loop=False):
    final = (e == 7)
    bufc, bufn = e % 2, (e + 1) % 2
    nK, nV = 2 * e + 1, 2 * e + 2
    mf = []; st = {}; en = {}; fi = {}; la = {}
    if e > 0:
        st["L"] = 0; mf += blockP(3, bufn); en["L"] = len(mf) - 1
    for b in range(4):
        if not final:
            q, f_, l_ = blockQ(b)
            st["Q%d" % b] = len(mf); fi[b] = {j: v + len(mf) for j, v in f_.items()}; la[b] = {j: v + len(mf) for j, v in l_.items()}
            mf += q; en["Q%d" % b] = len(mf) - 1
        if b < 3 or final:
            st["P%d" % b] = len(mf); mf += blockP(b, bufc, zero=(e == 0)); en["P%d" % b] = len(mf) - 1
    n = len(mf)
    ex, rest = [], []
    for j in range(4): softmax_tile(3, j, bufc, -1, st["P0"] - 2, ex, rest)
    fl = {"ex": ex, "rest": rest}
    if not final:
        for j in range(5): softmax_tile(0, j, bufn, la[0][j] + 3, (fi[2][j] - 1) if j < 4 else n - 1, ex, rest)
        for j in range(5): softmax_tile(1, j, bufn, la[1][j] + 3, (fi[3][j] - 1) if j < 4 else n - 1, ex, rest)
        for j in range(4): softmax_tile(2, j, bufn, la[2][j] + 3, n - 1, ex, rest)
        na, nb = 2 * e + 4, 2 * e + 5
        ga = kv_batch(na, SRD_V, sOffA, sWa) if e > 0 else []
        gb = kv_batch(nb, SRD_K, sOffB, sWb)
        g1 = n - 16
        if OPT("BTH"):
            for grp in ga + gb: grp.insert(len(grp) - 1, raw("s_waitcnt vmcnt(%s)" % OPT("BTH"), "salu"))
        b0 = 3 + (g1 - 3) * int(OPT("BG0", "0")) // 100; b1 = 3 + (g1 - 3) * int(OPT("BG1", "100")) // 100
        vm = vm_fillers(ga + gb, b0, b1)
        k = len(flatten(ga)) + 1
        selk = F([scmp("s_cmp_ge_u32", sKs, 3 * SG), salu("s_cselect_b32", sDk, -3 * SG, sC1)], vm[k].e, n)
        selv = F([scmp("s_cmp_ge_u32", sVs, 3 * SG), salu("s_cselect_b32", sDv, -3 * SG, sC1)], vm[k].e, n)
        rot = [F(salu("s_mov_b32", sWa, sKs), vm[k].e, n, [vm[k]]), F(salu("s_mov_b32", sWb, sVs), vm[k].e, n), selk,
               F(salu("s_add_u32", sKs, sKs, sDk), vm[k].e, n), selv, F(salu("s_add_u32", sVs, sVs, sDv), vm[k].e, g1)]
        vm += [F(salu("s_add_u32", sOffA, sOffA, 16384), g1, n - 6), F(salu("s_add_u32", sOffB, sOffB, 16384), g1, n - 6),
               F([scmp("s_cmp_ge_u32", sOffB, sKVend), salu("s_cselect_b32", sOffB, OOB, sOffB)], g1, n - 6)]
        fl["vm"] = vm; fl["rot"] = rot
        q0 = st["Q0"]
        lds = spread(rdK(0, nK), -1, max(q0 - 8, -1), slack=1)
        lds += spread(rdV(0, nV) + rdV(1, nV), max(q0 - 8, 0), st["P0"] - 6)
        lds += spread(rdK(1, nK), st["P0"] - 6, st["Q1"] - 8)
        lds += spread(rdV(2, nV) + rdV(3, nV), st["Q1"] - 8, st["P1"] - 6)
        lds += spread(rdK(2, nK), st["P1"] - 6, st["Q2"] - 8)
        lds += spread(rdV(4, nV) + rdV(5, nV), st["Q2"] - 8, st["P2"] - 6)
        k3 = spread(rdK(3, nK), st["P2"] - 6, st["P2"] + 2)
        v67 = spread(rdV(6, nV) + rdV(7, nV), st["P2"] + 2, n - 12)
        lds += k3 + v67
        fl["lds"] = lds
        ad = [F(valu("v_add_u32", vKa(s0, u), sDk, vKa(s0, u)), st["P2"], n - 1, [selk, k3[-1]]) for u in range(2) for s0 in range(2)]
        ad += [F(valu("v_add_u32", vVa(t, u), sDv, vVa(t, u)), st["P2"], n - 1, [selv]) for t in (0, 1) for u in range(2)]
        ad += [F(valu("v_add_u32", vVa(t, u), sDv, vVa(t, u)), st["P2"], n - 1, [v67[-1]]) for t in (2, 3) for u in range(2)]
        if e == 0:
            ad = [F(valu("v_accvgpr_write_b32", Oa(t, j)[r], 0), 40, n - 1) for t in (6, 7) for j in range(5) for r in range(4)] + ad
        fl["ad"] = ad
        tags = [("B", m) for m in (2 * e + 3, 2 * e + 4) if m > NPF]
        fl["end"] = end_stream(n, tags, loop)
        return interleave(mf, fl, margin=16)
    lds = spread(rdV(0, nV) + rdV(1, nV), -1, st["P0"] - 6)
    for b in (1, 2, 3):
        lo = en["L"] if b == 1 else en["P%d" % (b - 2)]
        lds += spread(rdV(2 * b, nV) + rdV(2 * b + 1, nV), lo, st["P%d" % b] - 6)
    fl["lds"] = lds
    g = [[salu("s_lshl_b32", sWOoff, sW, 21)], [salu("s_lshl_b32", sT0, sCT, 7)], [salu("s_add_u32", sWOoff, sWOoff, sT0)],
         [salu("s_add_u32", sWOend, sWOoff, 16 * 131072)]]
    for t in range(3): g += wo_batch(t, True)
    fl["vm"] = vm_fillers(g, 0, n - 4)
    epi = []
    for j in range(5): epi += [F(x, st["P0"] - 2, n - 1, [rest[-1]]) for x in lsum(j)]
    chk = [valu("v_add_f32", vT[2], vL(0), vL(1)), valu("v_add_f32", vT[3], vL(2), vL(3)), valu("v_add_f32", vT[2], vT[2], vL(4)),
           valu("v_add_f32", vT[2], vT[2], vT[3]), salu("s_mov_b32", sT2, LMAX),
           I("v_cmp_nge_f32 vcc, %s, %s" % (sT2, vT[2]), "valu", regs_of(sT2, vT[2]), regs_of(VCC)),
           valu("v_mov_b32", Cb(4)[1], vL(4)), valu("v_xor_b32", vT[0], MSG + 8192, vPW),
           I("s_or_b32 %s, vcc_lo, vcc_hi" % sT2, "salu", regs_of(VCC), regs_of(sT2)),
           valu("v_mov_b32", vT[2], sT2), salu("s_lshl_b32", sT3, sW, 2), salu("s_add_u32", sT3, sT3, FLAGS_LDS),
           valu("v_and_b32", vT[3], 3, vLane), valu("v_lshlrev_b32", vT[3], 13, vT[3]), valu("v_add_u32", vT[3], sT3, vT[3]),
           ds_write("ds_write_b32", vT[3], vT[2], 0, regM), ds_write("ds_write_b64", vT[0], Cb(4)[0:2], 4096, regM)]
    chk += [valu("v_rcp_f32", vL(j), vL(j)) for j in range(4)]
    epi += [F(x, st["P0"], n - 1) for x in chk]
    epi += [F(x, en["P0"] + 4, n - 1) for x in o_group(0)]
    epi += [F(ds_write("ds_write_b128", vT[0], Oa(t, 4), i * 1024, regM), en["P1"] + 4, n - 1) for i, t in enumerate((2, 3))]
    epi += [F(x, en["P1"] + 4, n - 1) for x in o_group(1)]
    fl["epi"] = epi
    return interleave(mf, fl)

def epilogueB(p):
    p.emit(stamp())
    g2 = o_group(2)
    p.emit(g2[:24])
    for i, t in ((2, 6), (3, 7)): p.emit(ds_write("ds_write_b128", vT[0], Oa(t, 4), i * 1024, regM))
    p.emit(salu("s_add_u32", sT3, sCkv, FLAGS_LDS), valu("v_mov_b32", vT[3], sT3), valu("v_add_u32", vT[1], MSG, vPW))
    p.emit(g2[24:])
    p.emit(wait_lgkm0(), barrier())
    X = V(128, 16); ML = V(48, 2); FL = V(52, 4)
    own = regM + ("own",)
    p.emit(ds_read("ds_read_b128", FL, vT[3], 0, own))
    p.emit(ds_read("ds_read_b64", ML, vT[1], 4096, own))
    for i in range(4): p.emit(ds_read("ds_read_b128", X[4 * i:4 * i + 4], vT[1], i * 1024, own))
    p.emit(o_group(3))
    p.emit(valu("v_or3_b32", FL[0], FL[0], FL[1], FL[2]), valu("v_or_b32", FL[0], FL[0], FL[3]), valu("v_readfirstlane_b32", sT2, FL[0]))
    na, la_, nb, lb = Cb(4)[0], vL(4), ML[0], ML[1]
    mn, fa, fb = vT[2], vT[3], vT[4]
    p.emit(valu("v_min_f32", mn, na, nb), valu("v_sub_f32", fa, mn, na), valu("v_sub_f32", fb, mn, nb),
           valu("v_exp_f32", fa, fa), valu("v_exp_f32", fb, fb))
    p.emit(salu("s_andn2_b32", sT2, sT2, sRetry), scmp("s_cmp_lg_u32", sT2, 0), raw("s_cbranch_scc1 mha_fallback", "branch"))
    p.emit(valu("v_mul_f32", la_, la_, fa), valu("v_fmac_f32", la_, lb, fb),
           valu("v_rcp_f32", la_, la_), salu("s_add_u32", sSP, sOb0, 8192), valu("v_mul_f32", fa, fa, la_), valu("v_mul_f32", fb, fb, la_))
    for i, s in enumerate((0, 2)):
        T = V(96 + i * 8, 8); Pk = V(112 + i * 4, 4)
        for h in range(2):
            for r in range(4): p.emit(valu("v_accvgpr_read_b32", T[4 * h + r], Oa(2 * s + h, 4)[r]))
        for r in range(8): p.emit(valu("v_mul_f32", T[r], T[r], fa))
        for r in range(8): p.emit(valu("v_fmac_f32", T[r], X[8 * i + r], fb))
        for r in range(4): p.emit(valu("v_cvt_pk_bf16_f32", Pk[r], T[2 * r], T[2 * r + 1]))
        p.emit(vstore(Pk, vL16, SRD_WS, sSP, 0, flags=OSF, tag="OST"))
        if i == 0: p.emit(salu("s_add_u32", sSP, sSP, 18432))

def phaseB(p):
    prologueB(p)
    p.emit(epochB(0))
    p.loop(3, lambda it: epochB(2 * it + 1) + epochB(2 * it + 2, loop=True), sCNT)
    p.emit(epochB(7))
    epilogueB(p)

def fallback():
    p = Prog("mha_fb"); p.hoist = False
    p.emit(label("mha_fallback"), wait_all_vm(), wait_lgkm0(), barrier())
    p.emit(salu("s_mov_b32", sRetry, -1))
    c_, g_ = vT[2], vT[3]
    p.emit(valu("v_and_b32", c_, 15, vLane), valu("v_lshrrev_b32", g_, 4, vLane), valu("v_lshlrev_b32", c_, 8, c_), valu("v_lshl_add_u32", c_, g_, 4, c_),
           salu("s_lshl_b32", sT0, sQH, 6), valu("v_add_u32", vT[0], sT0, c_), valu("v_xor_b32", vT[1], 64, vT[0]))
    p.emit(salu("s_lshl_b32", sT0, sQH, 13), salu("s_sub_u32", sT1, sKVbase, sT0))
    def body(it):
        o = [vload(Kf(0, s_), vT[s_ & 1], SRD_K, sT1, (s_ >> 1) * 128) for s_ in range(4)]
        o += blockQ(0, czero=True)[0]
        for j in range(5):
            st_ = St(0, j)
            o += [valu("v_max3_f32", vMin(j), vMin(j), st_[0], st_[1]), valu("v_max3_f32", vMin(j), vMin(j), st_[2], st_[3])]
        o.append(salu("s_add_u32", sT1, sT1, 4096))
        return o
    p.loop(32, body, sCNT)
    for t2 in range(4):
        for u in range(2): p.emit(valu("v_add_u32", vVa(t2, u), SG, vVa(t2, u)))
    for m in range(5): p.emit(kv_batch(m))
    p.emit(wait_all_vm(), barrier(), raw("s_branch mha_attn_entry", "branch"))
    return p

def accD(j, t): return V(16 + (j * 4 + t) * 4, 4)
def Of(buf, j, s): return A(buf * 72 + (j * 2 + s) * 4, 4)
def Wf(buf, t, s): return A(160 + buf * 32 + (t * 2 + s) * 4, 4)
vO = [V(160 + i) for i in range(5)]
vWa = [V(165 + i) for i in range(4)]
vRw = [V(170 + i) for i in range(6)]
vRr = [V(176 + i) for i in range(6)]
vOut = V(182)
OFLAGS = OPT("OF", "sc1")
def sigW(t): return (t + 4) % 5
def regW(t): return (gran(sigW(t) * SG, SG), ("W", t), False)

def wo_batch(t, static=False):
    g = []
    for i in range(8):
        if i: m = salu("s_add_u32", M0, M0, 1024)
        else: m = salu("s_add_u32", M0, sCkv, sigW(t) * SG) if static else salu("s_mov_b32", M0, sLw)
        g.append([m, salu("s_add_u32", sSO, sWOoff, i * 16384), dma(vOffX, SRD_WO, sSO, flags=OPT("WOF"), tag=("W", t), region=regW(t))])
    if static: g.append([salu("s_add_u32", sWOoff, sWOoff, 64 * 2048)])
    return g
def o_load(buf, j, s):
    o = s * 9216 + j * 1024
    return vload(Of(buf, j, s), vO[o >> 12], SRD_WS, sOoff, o & 4095, flags=OFLAGS)
def rdW(t, tt):
    return [ds_read("ds_read_b64_tr_b16", Wf(t % 2, tt, s)[2 * h:2 * h + 2], vWa[tt], s * 4096 + h * 2048, regW(t))
            for s in range(2) for h in range(2)]
def red_write(j, tt):
    reg = (gran((j >> 1) * SG, SG), "R", True, "own")
    return ds_write("ds_write_b128", vRw[(j >> 2) * 2 + (tt & 1)], accD(j, tt), ((j >> 1) & 1) * SG + (j & 1) * 4096 + (tt >> 1) * 128, reg)

def stepD(t, loads=True, loop=False):
    buf = t % 2
    mf = []; en = {}; s = 0
    for j in range(9):
        for tt in (range(4) if j % 2 == 0 else range(3, -1, -1)):
            for k in (s, 1 - s): mf.append(mfma(accD(j, tt), Wf(buf, tt, k), Of(buf, j, k)))
            s = 1 - s
        en[j] = len(mf) - 1
    n = len(mf)
    fl = {}
    if t < 15:
        sel = F([scmp("s_cmp_ge_u32", sLw, 4 * SG), salu("s_cselect_b32", sDw, -4 * SG, sC1)], 4, 12)
        lds = [sel] + [F(valu("v_add_u32", vWa[i], sDw, vWa[i]), 8, 20) for i in range(4)]
        lds += [F(salu("s_add_u32", sLw, sLw, sDw), 12, 22), F(wait_vm([("W", t + 1)]), 22, 23)]
        lds += spread(sum([rdW(t + 1, tt) for tt in range(4)], []), 24, n - 10)
        lds += [F(wait_lgkm0(), n - 2, n - 2)]
        fl["lds"] = lds
    if loads:
        g = wo_batch(t + 5)
        vm = []
        for j in range(9):
            if j < 8:
                e = 8 * j + 1
                vm += [F(g[j][0], e, e + 2), F(g[j][1], e + 1, e + 3), F(g[j][2], e + 2, e + 4)]
            vm += [F(o_load(buf, j, 0), en[j], n - 1), F(o_load(buf, j, 1), min(en[j] + 2, n - 1), n - 1)]
            if j == 7:
                vm += [F(salu("s_add_u32", sWOoff, sWOoff, 64 * 2048), n - 6, n - 4),
                       F([scmp("s_cmp_ge_u32", sWOoff, sWOend), salu("s_cselect_b32", sWOoff, OOB, sWOoff)], n - 5, n - 3)]
                if loop: vm += [F(loopctl(), n - 3, n - 2)]
        vm += [F(salu("s_add_u32", sOoff, sOoff, 18432), n - 1, n - 1)]
        fl["vm"] = vm
    if t == 15:
        red = [F(red_write(j, tt), min(en[j] + 4 + 2 * tt, n - 1), n - 1) for j in range(9) for tt in range(4)]
        red.insert(16, F(wait_vm([("W", 18)]), en[4], n - 1))
        fl["red"] = red
    return interleave(mf, fl)

def phaseD(p):
    p.emit(wait_vm([("W", 1)]))
    for t in (3, 4): p.emit(wo_batch(t, True))
    p.emit(salu("s_lshl_b32", sT0, sB2, 7), salu("s_lshl_b32", sT1, sW, 5), salu("s_add_u32", sT0, sT0, sT1), salu("s_mul_i32", sOoff, sT0, 9216))
    for i in range(5): p.emit(valu("v_add_u32", vO[i], i * 4096, vL16))
    g_, r_, cp, r8 = vT[2], vT[0], vT[1], vT[3]
    p.emit(valu("v_lshrrev_b32", g_, 4, vLane), valu("v_bfe_u32", r_, vLane, 2, 2), valu("v_and_b32", cp, 3, vLane))
    p.emit(valu("v_and_b32", r8, 1, g_), valu("v_lshl_add_u32", r8, r8, 2, r_))
    p.emit(valu("v_lshrrev_b32", vT[4], 1, r8), valu("v_lshlrev_b32", vT[4], 5, vT[4]), valu("v_lshl_add_u32", vT[4], cp, 3, vT[4]),
           valu("v_lshl_add_u32", vT[4], r8, 7, vT[4]), valu("v_lshrrev_b32", vT[5], 1, g_), valu("v_lshl_add_u32", vT[4], vT[5], 10, vT[4]))
    p.emit(salu("s_add_u32", sLw, sCkv, sigW(0) * SG), valu("v_add_u32", vWa[0], sLw, vT[4]), salu("s_mov_b32", sC1, SG))
    for i in range(1, 4): p.emit(valu("v_xor_b32", vWa[i], i << 5, vWa[0]))
    p.emit(scmp("s_cmp_lg_u32", sW, 0), raw("s_cbranch_scc1 mha_gate_ok", "branch"))
    p.emit(salu("s_lshl_b32", sT0, sB, 4), valu("v_mov_b32", V(184), 0), salu("s_mov_b32", sPoll, 1 << 14), salu("s_mov_b64", EXEC, 1))
    p.emit(label("mha_gate"))
    p.emit(raw("buffer_load_dword v185, v184, %s, %s offen sc1" % (SRD_DBG, sT0), "other"), raw("s_waitcnt vmcnt(0)", "other"))
    p.emit(valu("v_readfirstlane_b32", sT1, V(185)), scmp("s_cmp_ge_u32", sT1, 16), raw("s_cbranch_scc1 mha_gate_done", "branch"))
    p.emit(raw("s_sleep 64"), salu("s_sub_u32", sPoll, sPoll, 1), scmp("s_cmp_lg_u32", sPoll, 0), raw("s_cbranch_scc1 mha_gate", "branch"))
    p.emit(label("mha_gate_done"), salu("s_mov_b64", EXEC, -1), label("mha_gate_ok"))
    p.emit(wait_vm(["OST"]), barrier(), stamp())
    p.emit(scmp("s_cmp_lg_u32", sW, 0), raw("s_cbranch_scc1 mha_signalled", "branch"))
    p.emit(salu("s_lshl_b32", sT0, sB, 12), salu("s_add_u32", sT0, sT0, FLG),
           valu("v_lshlrev_b32", V(184), 8, vLane), valu("v_mov_b32", V(185), 1), salu("s_mov_b64", EXEC, 0xffff))
    p.emit(raw("buffer_atomic_add v185, v184, %s, %s offen sc1" % (SRD_WS, sT0), "other"))
    p.emit(salu("s_mov_b64", EXEC, -1), label("mha_signalled"))
    for tt in range(4): p.emit(rdW(0, tt))
    for i in range(16, 160): p.emit(valu("v_mov_b32", V(i), 0))
    p.emit(valu("v_and_b32", vT[0], 15, vLane), valu("v_and_b32", vT[1], 7, vLane), valu("v_xor_b32", vT[4], vT[1], g_),
           valu("v_lshlrev_b32", vT[4], 4, vT[4]), valu("v_lshl_add_u32", vT[4], vT[0], 8, vT[4]), valu("v_add_u32", vRw[0], sCkv, vT[4]),
           valu("v_xor_b32", vRw[1], 64, vRw[0]))
    for i in range(2, 6): p.emit(valu("v_add_u32", vRw[i], 2 * SG, vRw[i - 2]))
    p.emit(valu("v_lshrrev_b32", vT[0], 3, vLane), valu("v_lshlrev_b32", vT[4], 1, vT[1]), valu("v_xor_b32", vT[4], vT[4], vT[0]),
           valu("v_lshlrev_b32", vT[4], 4, vT[4]), salu("s_lshl_b32", sT0, sW, 3), valu("v_add_u32", vT[0], sT0, vT[0]),
           valu("v_lshl_add_u32", vRr[0], vT[0], 8, vT[4]), valu("v_xor_b32", vRr[1], 16, vRr[0]))
    for i in range(2, 6): p.emit(valu("v_add_u32", vRr[i], 2 * SG, vRr[i - 2]))
    p.emit(valu("v_lshlrev_b32", vOut, 11, vT[0]), valu("v_lshl_add_u32", vOut, vT[1], 4, vOut))
    p.emit(stamp())
    p.emit(scmp("s_cmp_lg_u32", sW, 0), raw("s_cbranch_scc1 mha_polled", "branch"))
    p.emit(valu("v_mov_b32", vT[0], 0), salu("s_mov_b32", sPoll, 1 << 17), salu("s_mov_b64", EXEC, 1))
    p.emit(label("mha_poll"))
    p.emit(raw("buffer_load_dword %s, %s, %s, %s offen sc1" % (vT[1], vT[0], SRD_WS, sFl), "other"), raw("s_waitcnt vmcnt(0)", "other"))
    p.emit(valu("v_readfirstlane_b32", sT1, vT[1]), scmp("s_cmp_ge_u32", sT1, 16), raw("s_cbranch_scc1 mha_pollok", "branch"))
    p.emit(raw("s_sleep %s" % OPT("SLP", "2")), salu("s_sub_u32", sPoll, sPoll, 1), scmp("s_cmp_lg_u32", sPoll, 0), raw("s_cbranch_scc1 mha_poll", "branch"))
    p.emit(label("mha_pollok"), salu("s_mov_b64", EXEC, -1))
    p.emit(label("mha_polled"), barrier(), stamp(), wait_lgkm0())
    for t in range(2):
        for j in range(9): p.emit(o_load(t, j, 0), o_load(t, j, 1))
        p.emit(salu("s_add_u32", sOoff, sOoff, 18432))
    p.loop(7, lambda it: stepD(2 * it) + stepD(2 * it + 1, loop=True) + stamp(), sCNT)
    p.emit(stepD(14, loads=False), stepD(15, loads=False))
    p.emit(salu("s_mul_i32", sT0, sB2, 294912), salu("s_lshl_b32", sT1, sCT, 7), salu("s_add_u32", sT0, sT0, sT1))
    p.emit(stamp(), wait_lgkm0(), barrier(), stamp())
    def buf(rd, i, h): return V(16 + (rd % 4) * 32 + i * 8 + h * 4, 4)
    def reads(rd):
        reg = (gran(rd * SG, SG), "R", True)
        return [ds_read("ds_read_b128", buf(rd, i, h), vRr[(rd >> 1) * 2 + h], (rd & 1) * SG + i * 8192, reg) for i in range(4) for h in range(2)]
    p.emit(reads(0))
    for rd in range(5):
        if rd + 1 < 5: p.emit(reads(rd + 1))
        if rd == 4: p.emit(scmp("s_cmp_ge_u32", sW, 2), raw("s_cbranch_scc1 mha_fin", "branch"))
        b0 = V(16 + (rd % 4) * 32, 32)
        for r in range(8): p.emit(valu("v_add_f32", b0[r], b0[r], b0[8 + r]))
        for r in range(8): p.emit(valu("v_add_f32", b0[16 + r], b0[16 + r], b0[24 + r]))
        for r in range(8): p.emit(valu("v_add_f32", b0[r], b0[r], b0[16 + r]))
        Pk = V(192 + rd * 4, 4)
        for r in range(4): p.emit(valu("v_cvt_pk_bf16_f32", Pk[r], b0[2 * r], b0[2 * r + 1]))
        p.emit(vstore(Pk, vOut, SRD_OUT, sT0, flags=OPT("OUTF", "sc1")))
        if rd < 4: p.emit(salu("s_add_u32", sT0, sT0, 32 * 2048))
    p.emit(label("mha_fin"))

KNAME = "standalone__mha_block_cached__near_ridge_kernel"
def build():
    k = Prog("mha"); setup(k)
    phaseA(k); phaseB(k); k.emit(stamp())
    phaseD(k); k.emit(stamp_store(32 << 20))
    k.emit(label("mha_end"), raw("s_endpgm"))
    fb = fallback()
    hdr = open("standalone__mha_block_cached__near_ridge.s.ref").read().split("; Override launch")[0]
    out = hdr
    out += "; @launch grid=(256,1,1) block=(256,1,1) lds=163840\n"
    out += '.amdgcn_target "amdgcn-amd-amdhsa--gfx950"\n.text\n'
    t = k.text()
    print(k.stats(), "est cycles", est_cycles([x for _, x in k.expanded(k.trace)]))
    out += ".globl %s\n.p2align 8\n.type %s,@function\n%s:\n%s" % (KNAME, KNAME, KNAME, t)
    out += "mha_code_end:\n" + fb.text()
    out += '.section .rodata,"a"\n.p2align 6\n' + kernel_desc(KNAME, 512, 102, 256)
    return out

if __name__ == "__main__":
    if "--stamps" in sys.argv:
        sys.argv.remove("--stamps"); STAMPS = True
    dst = sys.argv[1] if len(sys.argv) > 1 else "standalone__mha_block_cached__near_ridge.s"
    open(dst, "w").write(build())
```

```python
import struct, sys, os
from fw import *
from asmlib import kernel_desc
OPT = lambda k, d="": os.environ.get(k, d)

def f32(x): return struct.unpack("<I", struct.pack("<f", x))[0]
CSCALE = f32(1.4426950408889634 / (128 ** 0.5))

sWG = S(2)
sB2 = S(3)
SRD_X, SRD_WQ, SRD_K, SRD_V = S(4, 4), S(8, 4), S(12, 4), S(16, 4)
SRD_WS, SRD_WO, SRD_OUT, SRD_DBG = S(20, 4), S(24, 4), S(28, 4), S(32, 4)
PTR = S(36, 16)
sLINK = S(52, 2)
sTG, sKVend = S(54), S(55)
sW, sHD, sQH, sB, sHP = S(56), S(57), S(58), S(59), S(60)
sCNT = S(61)
sT0, sT1, sT2, sT3 = S(62), S(63), S(64), S(65)
sEX9 = S(66, 2)
sXoff, sX9off, sWoff = S(68), S(69), S(70)
sCx, sCx9, sCw = S(71), S(72), S(73)
sSlotR, sSlotW, sDelta = S(74), S(75), S(76)
sKVbase, sCkv = S(77), S(78)
sKs, sVs, sWa, sWb, sDk, sDv = S(79), S(80), S(81), S(82), S(83), S(84)
sOffA, sOffB = S(85), S(86)
sOb0, sOb1 = S(87), S(88)
sSC = S(89)
sSP = S(90)
sSO = S(91)
sOoff, sWOoff, sCT, sLw = S(92), S(93), S(94), S(95)
sC1 = S(96)
sFl = S(46)
sRot = S(47)
sRetry, sWOend, sPoll, sDw = S(66), S(67), S(68), S(69)

OOB = 0x10000000
ASLOT = 51200
XBYTES = 18432
SG = 32768
FLG = 24 << 20
KVFLAGS = OPT("KVF", "nt")
NPF = int(OPT("NPF", "2"))
assert NPF <= 2
OSF = OPT("OSF", "sc1")

vLane = V(0)
vOffX, vOffW, vOffKV, vL16 = V(1), V(2), V(3), V(4)
vXa = [V(5), V(6), V(7), V(8)]
vWb = V(9)
vT = [V(10), V(11), V(12), V(13), V(14), V(15)]
vPW, vTch = V(254), V(255)
vOffKV1 = V(15)
def accA(t, j):
    if j < 4: return V(16 + (t * 4 + j) * 4, 4)
    return V(144 + {0: 0, 1: 1, 4: 2, 5: 3}[t] * 4, 4)
def Bf(buf, j, s): return A(buf * 40 + (j * 2 + s) * 4, 4)
def Af(t, s): return A(80 + (t % 4) * 8 + s * 4, 4)
def Qf(j, s): return V(160 + (j * 4 + s) * 4, 4)
PARK = [int(x) for x in OPT("PARK", "8,12").split(",") if x]
PFR = {1: A(120, 32), 2: A(152, 32)}
for _i, _n in enumerate(PARK): PFR[_n] = A(192 + 32 * _i, 32)
def St(kt, j): return V(16 + (kt % 2) * 20 + j * 4, 4)
def Pf(buf, u, j): return V(56 + buf * 36 + (u * 5 + j) * 4, 4)
def Cb(j): return V(128 + 4 * j, 4)
def vL(j): return V(148 + j)
def vMin(j): return V(153 + j)
def Oa(t, j): return A((t * 5 + j) * 4, 4)
KALT = [False]; VALT = [False]
def Kf(kt, s): return A(160 + (16 if (KALT[0] and kt % 2) else 0) + s * 4, 4)
def Vf(t, u): return A((160 if (VALT[0] and (t >> 1) % 2 == 0) else 176) + (t % 2) * 8 + u * 4, 4)
def vKa(s0, u): return V(240 + s0 * 2 + u)
def vVa(t2, u): return V(244 + t2 * 2 + u)
NINTH_T = (0, 1, 4, 5)

STAMPS = False
def stamp():
    if not STAMPS: return []
    return [raw("s_memrealtime s[100:101]"), raw("s_memtime s[98:99]"), wait_lgkm0(), raw("s_mov_b32 s101, m0"), raw("s_mov_b32 m0, s97"),
            raw("v_writelane_b32 v252, s100, m0", "valu"), raw("v_writelane_b32 v253, s98, m0", "valu"), raw("s_add_u32 s97, s97, 1"),
            raw("s_mov_b32 m0, s101"), raw("s_nop 0")]
def stamp_init():
    if not STAMPS: return []
    return [raw("s_mov_b32 s97, 0"), raw("v_mov_b32 v252, 0", "valu"), raw("v_mov_b32 v253, 0", "valu")] + stamp()
def stamp_store(base):
    if not STAMPS: return []
    o = [raw("s_mov_b64 exec, -1"), wait_all_vm()] + stamp()
    o += srd(SRD_DBG, 7, 1 << 28)
    o += [salu("s_lshl_b32", sT0, sWG, 2), salu("s_add_u32", sT0, sT0, sW), salu("s_lshl_b32", sT0, sT0, 9), salu("s_add_u32", sT0, sT0, base),
          valu("v_lshlrev_b32", vT[0], 3, vLane), raw("s_nop 4"), vstore(V(252, 2), vT[0], SRD_DBG, sT0)]
    return o

def srd(dst, ptr_idx, nbytes):
    return [salu("s_mov_b32", dst[0], PTR[2 * ptr_idx]), salu("s_mov_b32", dst[1], PTR[2 * ptr_idx + 1]),
            salu("s_mov_b32", dst[2], nbytes), salu("s_mov_b32", dst[3], 0x20000)]

def gran(lo, n): return list(range(lo // 2048, (lo + n + 2047) // 2048))
def regA(st): return (gran((st % 3) * ASLOT, ASLOT), ("A", st), True)
def sigB(n): return (n + 2) % 5
def regB(n): return (gran(sigB(n) * SG, SG), ("B", n), True)
def regBw(n): return regB(n) + ("own",)

def vm_fillers(groups, g0, g1, slack=2):
    out = []; n = len(groups)
    for i, grp in enumerate(groups):
        t = g0 + (g1 - g0) * i // max(1, n)
        isv = [any(y.kind in VM for y in flatten([x])) for x in grp]
        k = isv.index(True) if True in isv else len(grp) - 1
        for q, x in enumerate(grp):
            e = max(0, t + q - k)
            out.append(F(x, e, max(e, t) + slack))
    return out

def end_stream(n, tags, loop=False, lg=0):
    o = []
    if loop: o += [F(loopctl(), n - 5, n - 5)] + ([] if STAMPS else [F(loopcmp(), n - 4, n - 4)])
    o += [F(wait_both(tags, lg), n - 3, n - 3), F([barrier()] + stamp(), n - 2, n - 2)]
    return o

def setup(p):
    p.emit(scmp("s_cmp_ge_u32", sWG, 256), raw("s_cbranch_scc1 mha_end", "branch"))
    p.emit(raw("s_load_dwordx16 %s, s[0:1], 0" % PTR, wr=[PTR]))
    p.emit(valu("v_lshrrev_b32", vT[0], 6, V(0)), valu("v_and_b32", vLane, 63, V(0)))
    p.emit(valu("v_readfirstlane_b32", sW, vT[0]))
    p.emit(valu("v_lshlrev_b32", vL16, 4, vLane))
    p.emit(valu("v_lshrrev_b32", vT[2], 4, vLane), valu("v_lshlrev_b32", vT[3], 1, vT[2]),
           valu("v_and_b32", vT[1], 7, vLane), valu("v_xor_b32", vT[1], vT[1], vT[3]), valu("v_lshlrev_b32", vT[1], 4, vT[1]))
    p.emit(valu("v_lshrrev_b32", vT[4], 3, vLane))
    p.emit(valu("v_lshl_add_u32", vOffX, vT[4], 11, vT[1]))
    p.emit(salu("s_lshr_b32", sHD, sW, 1), salu("s_and_b32", sQH, sW, 1))
    p.emit(salu("s_and_b32", sT0, sWG, 7), salu("s_lshr_b32", sT1, sWG, 3))
    p.emit(salu("s_and_b32", sB, sT0, 1), salu("s_lshl_b32", sB, sB, 3), salu("s_and_b32", sT2, sT1, 7), salu("s_add_u32", sB, sB, sT2))
    p.emit(salu("s_lshr_b32", sHP, sT0, 1), salu("s_lshl_b32", sHP, sHP, 2), salu("s_lshr_b32", sT2, sT1, 3), salu("s_add_u32", sHP, sHP, sT2))
    p.emit(salu("s_mul_i32", sT0, sB, 294912))
    p.emit(salu("s_lshl_b32", sT1, sW, 16), salu("s_add_u32", sXoff, sT0, sT1))
    p.emit(salu("s_add_u32", sT1, sHD, 16), salu("s_lshl_b32", sCx9, sT1, 10), salu("s_lshl_b32", sT1, sT1, 14), salu("s_add_u32", sX9off, sT0, sT1))
    p.emit(salu("s_lshl_b32", sCx, sW, 12))
    p.emit(salu("s_lshl_b32", sWoff, sQH, 16), salu("s_lshl_b32", sT1, sHP, 9), salu("s_add_u32", sWoff, sWoff, sT1),
           salu("s_lshl_b32", sT1, sHD, 8), salu("s_add_u32", sWoff, sWoff, sT1))
    p.emit(salu("s_lshl_b32", sCw, sHD, 14), salu("s_lshl_b32", sT1, sQH, 11), salu("s_add_u32", sCw, sCw, sT1), salu("s_add_u32", sCw, sCw, XBYTES))
    SK = OPT("SKEW", "0")
    if SK != "0":
        if SK == "1":
            p.emit(salu("s_lshl_b32", sT1, sB, 1), salu("s_lshl_b32", sT2, sHP, 2), salu("s_xor_b32", sT1, sT1, sT2))
        elif SK == "2":
            p.emit(salu("s_lshl_b32", sT1, sB, 1), salu("s_lshr_b32", sT2, sB, 3), salu("s_or_b32", sT1, sT1, sT2),
                   salu("s_lshl_b32", sT2, sHP, 2), salu("s_xor_b32", sT1, sT1, sT2), salu("s_lshr_b32", sT2, sHP, 2), salu("s_xor_b32", sT1, sT1, sT2))
        elif SK == "3":
            p.emit(salu("s_lshl_b32", sT2, sHP, 1), salu("s_xor_b32", sT1, sB, sT2), salu("s_and_b32", sT1, sT1, 7))
        elif SK in ("4", "5"):
            p.emit(salu("s_xor_b32", sT1, sB, sHP), salu("s_and_b32", sT1, sT1, 3 if SK == "4" else 1))
        p.emit(salu("s_and_b32", sT1, sT1, 15), salu("s_lshl_b32", sT2, sT1, 7), salu("s_add_u32", sXoff, sXoff, sT2), salu("s_add_u32", sX9off, sX9off, sT2),
               salu("s_lshl_b32", sT2, sT1, 19), salu("s_add_u32", sWoff, sWoff, sT2))
    p.emit(scmp("s_cmp_eq_u32", sQH, 0), salu("s_cselect_b32", sEX9[0], -1, 0), salu("s_cselect_b32", sEX9[1], 0, -1))
    p.emit(salu("s_lshl_b32", sT1, sQH, 2), valu("v_or_b32", vT[3], sT1, vT[2]), valu("v_lshlrev_b32", vT[3], 1, vT[3]),
           valu("v_and_b32", vT[4], 15, vLane), valu("v_xor_b32", vT[3], vT[3], vT[4]), valu("v_lshlrev_b32", vT[3], 4, vT[3]),
           valu("v_lshl_add_u32", vOffW, vT[2], 13, vT[3]))
    p.emit(wait_lgkm0(), stamp_init())
    p.emit(srd(SRD_X, 0, 16 * 144 * 2048), srd(SRD_WQ, 3, 1024 * 8192))

def setup2(p):
    p.emit(srd(SRD_K, 1, 1 << 26), srd(SRD_V, 2, 1 << 26), srd(SRD_WS, 7, FLG + 65536))
    p.emit(srd(SRD_WO, 4, 4096 * 2048), srd(SRD_OUT, 5, 16 * 144 * 2048), srd(SRD_DBG, 6, 256))
    p.emit(valu("v_lshrrev_b32", vT[3], 1, vT[4]), valu("v_and_b32", vT[3], 3, vT[3]), valu("v_lshlrev_b32", vT[3], 1, vT[3]),
           valu("v_xor_b32", vT[3], vT[3], vT[2]), valu("v_lshlrev_b32", vT[3], 4, vT[3]))
    p.emit(valu("v_lshrrev_b32", vT[5], 2, vT[4]), valu("v_lshlrev_b32", vT[5], 10, vT[5]), valu("v_and_b32", vT[0], 3, vT[4]),
           valu("v_lshl_add_u32", vT[5], vT[0], 7, vT[5]), valu("v_add_u32", vT[5], vT[5], vT[3]))
    p.emit(salu("s_lshl_b32", sT0, sHD, 14), salu("s_add_u32", sT0, sT0, 2 * SG), valu("v_add_u32", vT[5], sT0, vT[5]))
    p.emit(salu("s_mul_i32", sT1, sQH, 8192 + 64), valu("v_xor_b32", vKa(0, 0), sT1, vT[5]))
    p.emit(valu("v_xor_b32", vKa(0, 1), 8192, vKa(0, 0)), valu("v_xor_b32", vKa(1, 0), 64, vKa(0, 0)), valu("v_xor_b32", vKa(1, 1), 64, vKa(0, 1)))
    p.emit(valu("v_lshl_add_u32", vT[3], vT[4], 7, vT[3]))
    p.emit(salu("s_lshl_b32", sT1, sQH, 13), valu("v_add_u32", vXa[0], sT1, vT[3]),
           valu("v_xor_b32", vXa[1], 64, vXa[0]), valu("v_add_u32", vXa[2], 128 * 128, vT[3]), valu("v_xor_b32", vXa[3], 64, vXa[2]))
    r_, cp = vT[0], vT[1]
    p.emit(valu("v_bfe_u32", r_, vLane, 2, 2), valu("v_and_b32", cp, 3, vLane))
    p.emit(valu("v_and_b32", vT[3], 1, vT[2]), valu("v_lshl_add_u32", vT[3], vT[3], 2, r_))
    p.emit(salu("s_lshl_b32", sT1, sQH, 1), valu("v_xor_b32", vT[5], sT1, vT[3]), valu("v_lshlrev_b32", vT[5], 5, vT[5]),
           valu("v_lshl_add_u32", vT[5], cp, 3, vT[5]), valu("v_lshl_add_u32", vT[4], vT[2], 3, r_), valu("v_lshl_add_u32", vT[5], vT[4], 8, vT[5]))
    p.emit(salu("s_lshl_b32", sT0, sHD, 14), salu("s_add_u32", sT0, sT0, XBYTES), valu("v_add_u32", vWb, sT0, vT[5]))
    p.emit(valu("v_lshrrev_b32", vT[4], 1, vT[3]), valu("v_xor_b32", vT[4], sT1, vT[4]), valu("v_lshlrev_b32", vT[4], 5, vT[4]),
           valu("v_lshl_add_u32", vT[4], cp, 3, vT[4]), valu("v_lshl_add_u32", vT[4], r_, 7, vT[4]),
           valu("v_lshl_add_u32", vT[4], vT[2], 10, vT[4]))
    p.emit(salu("s_lshl_b32", sCkv, sW, 13), salu("s_add_u32", sT0, sCkv, 4 * SG), valu("v_add_u32", vVa(0, 0), sT0, vT[4]))
    for t2 in range(4):
        if t2: p.emit(valu("v_xor_b32", vVa(t2, 0), t2 << 5, vVa(0, 0)))
        p.emit(valu("v_xor_b32", vVa(t2, 1), 8192, vVa(t2, 0)))
    p.emit(salu("s_lshl_b32", sT0, sB, 5), salu("s_lshl_b32", sT1, sHP, 1), salu("s_add_u32", sT0, sT0, sT1), salu("s_add_u32", sT0, sT0, sHD))
    p.emit(salu("s_lshl_b32", sKVbase, sT0, 17), salu("s_lshl_b32", sT1, sQH, 13), salu("s_add_u32", sKVbase, sKVbase, sT1),
           salu("s_add_u32", sKVend, sKVbase, 8 * 16384))
    p.emit(salu("s_lshl_b32", sT0, sT0, 2), salu("s_add_u32", sT1, sT0, sQH), salu("s_mul_i32", sOb0, sT1, 9216),
           salu("s_xor_b32", sT1, sT1, 1), salu("s_mul_i32", sOb1, sT1, 9216))
    p.emit(salu("s_and_b32", sT0, sWG, 7), salu("s_lshr_b32", sT1, sWG, 3))
    p.emit(salu("s_and_b32", sB2, sT0, 3), salu("s_lshl_b32", sB2, sB2, 2), salu("s_and_b32", sT2, sT1, 3), salu("s_add_u32", sB2, sB2, sT2))
    p.emit(salu("s_lshr_b32", sCT, sT0, 2), salu("s_lshl_b32", sCT, sCT, 3), salu("s_lshr_b32", sT2, sT1, 2), salu("s_add_u32", sCT, sCT, sT2))
    if OPT("CTX"): p.emit(salu("s_xor_b32", sCT, sCT, int(OPT("CTX"))))
    p.emit(salu("s_lshl_b32", sTG, sWG, 15), salu("s_add_u32", sTG, sTG, sCkv))
    p.emit(valu("v_add_u32", vPW, sCkv, vL16))
    p.emit(valu("v_bfe_u32", vT[0], vLane, 3, 2), valu("v_and_b32", vT[1], 2, vT[0]), valu("v_and_b32", vT[3], 7, vLane),
           valu("v_xor_b32", vT[1], vT[1], vT[3]), valu("v_lshlrev_b32", vT[1], 4, vT[1]), valu("v_lshl_add_u32", vT[1], vT[0], 8, vT[1]),
           valu("v_lshrrev_b32", vT[0], 5, vLane), valu("v_lshl_add_u32", vOffKV, vT[0], 7, vT[1]), valu("v_xor_b32", vOffKV1, 64, vOffKV))
    if OPT("ROT", "1") == "1": p.emit(salu("s_add_u32", sRot, sT1, sWG), salu("s_and_b32", sRot, sRot, 7), salu("s_lshl_b32", sRot, sRot, 14))
    else: p.emit(salu("s_mov_b32", sRot, 0))
    p.emit(salu("s_mov_b32", sSC, CSCALE), salu("s_mov_b32", sSlotR, 0), salu("s_mov_b32", sSlotW, 2 * ASLOT), salu("s_mov_b32", sC1, ASLOT))
    for i in range(16, 160): p.emit(valu("v_mov_b32", V(i), 0))
    for i in list(range(40, 72)) + list(range(96, 112)): p.emit(valu("v_accvgpr_write_b32", A(i), 0))

def dma_batchA(st):
    reg = regA(st); tag = ("A", st)
    g = []
    rows = [0, 4, 16, 20, 32, 36, 48, 52]
    def wq(i):
        pi = rows[i] // 4
        m = salu("s_add_u32", M0, sSlotW, sCw) if i == 0 else salu("s_add_u32", M0, M0, (pi - rows[i - 1] // 4) * 1024)
        return [m, salu("s_add_u32", sSO, sWoff, rows[i] * 8192), dma(vOffW, SRD_WQ, sSO, flags=OPT("WQF"), tag=tag, region=reg)]
    def xx(i):
        m = salu("s_add_u32", M0, sSlotW, sCx) if i == 0 else salu("s_add_u32", M0, M0, 1024)
        return [m, salu("s_add_u32", sSO, sXoff, i * 16384), dma(vOffX, SRD_X, sSO, flags=OPT("XF"), tag=tag, region=reg)]
    for i in range(4): g.append(xx(i))
    g.append([salu("s_add_u32", M0, sSlotW, sCx9),
              [salu("s_mov_b64", EXEC, sEX9), dma(vOffX, SRD_X, sX9off, flags=OPT("XF"), tag=tag, region=reg), salu("s_mov_b64", EXEC, -1)]])
    for i in range(8): g.append(wq(i))
    dl = (st ^ (st + 1)) & 15
    adv = [salu("s_xor_b32", sXoff, sXoff, dl * 128), salu("s_xor_b32", sX9off, sX9off, dl * 128), salu("s_xor_b32", sWoff, sWoff, dl * 64 * 8192)]
    return g, adv

def entry_src(n):
    if n == 0: return SRD_K, 0
    if n == 15: return SRD_V, 7
    return (SRD_K, (n + 1) // 2) if n % 2 else (SRD_V, n // 2 - 1)

def kv_batch(n, srd_=None, soff=None, ldsbase=None):
    const = 0
    if srd_ is None:
        srd_, ch = entry_src(n); soff = sKVbase; const = ch * 16384; ldsbase = sigB(n) * SG
    g = []
    KVCL = int(OPT("KVCL", "1"))
    for i in range(8):
        grp = []
        if i % 4 == 0:
            m = salu("s_add_u32", M0, sCkv, ldsbase) if i == 0 else salu("s_add_u32", M0, M0, 4096)
            grp += [m, salu("s_add_u32", sSO, soff, const + i * 1024), salu("s_xor_b32", sSO, sSO, sRot)]
        grp.append(dma(vOffKV1 if i % 2 else vOffKV, srd_, sSO, (i % 4) * 1024, flags=KVFLAGS, tag=("B", n), region=regBw(n)))
        if i % KVCL == 0: g.append(grp)
        else: g[-1] += grp
    return g

def pf_load(n, i):
    srd_, ch = entry_src(n)
    return [salu("s_add_u32", sSP, sKVbase, ch * 16384 + (i >> 2) * 4096), salu("s_xor_b32", sSP, sSP, sRot),
            vload(PFR[n][4 * i:4 * i + 4], vOffKV1 if i % 2 else vOffKV, srd_, sSP, (i % 4) * 1024, flags=KVFLAGS)]
def pf_write(n, tmp):
    base = sigB(n) * SG
    o = [valu("v_add_u32", tmp, base, vPW)] if base else []
    ad = tmp if base else vPW
    return o + [ds_write("ds_write_b128", ad, PFR[n][4 * i:4 * i + 4], i * 1024, regBw(n)) for i in range(8)]

def blockA(t, buf, rev, s_first):
    js = [0, 1, 2, 3] + ([4] if t in NINTH_T else [])
    if rev: js = js[::-1]
    out = []; s = s_first
    for j in js:
        for k in (s, 1 - s): out.append(mfma(accA(t, j), Af(t, k), Bf(buf, j, k)))
        s = 1 - s
    return out, s

XINL = 22
def epochA(e, groups, adv, g0, g1, endtags, extra=None, ndum=0):
    buf = e % 2
    mf = []; start = {}; end = {}
    s = 0
    for key, t, b in [("L6", 6, 1 - buf), ("L7", 7, 1 - buf)] + [(t, t, buf) for t in range(6)]:
        start[key] = len(mf)
        blk, s = blockA(t, b, rev=(t % 2 == 1), s_first=s)
        mf += blk; end[key] = len(mf) - 1
    n = len(mf)
    reg = regA(e)
    def rdA(t):
        tmp = vWb if t == 0 else vT[t % 2]
        o = [] if t == 0 else [valu("v_xor_b32", tmp, t << 5, vWb)]
        return o + [ds_read("ds_read_b64_tr_b16", Af(t, s_)[2 * h:2 * h + 2], tmp, s_ * 8192 + h * 1024, reg) for s_ in range(2) for h in range(2)]
    def rdB(j, s_):
        ad = vXa[s_] if j < 4 else vXa[2 + s_]
        return ds_read("ds_read_b128", Bf(buf, j, s_), ad, (j * 2048) if j < 4 else 0, reg)
    a0 = rdA(0)
    first = [rdB(0, 0), a0[0], a0[1], rdB(0, 1), a0[2], a0[3], rdB(1, 1), rdB(1, 0), rdB(2, 0), rdB(2, 1), rdB(3, 1), rdB(3, 0), rdB(4, 0), rdB(4, 1)]
    lds = spread(first, -1, 15, slack=1)
    lds += spread(rdA(1), 15, 20, slack=1)
    prev = {2: "L6", 3: "L7", 4: 0, 5: 1, 6: 2, 7: 3}
    pos = 20
    for t in range(2, 8):
        lo = max(end[prev[t]], pos)
        lds += spread(rdA(t), lo, lo + 6, slack=1); pos = lo + 6
        assert t >= 6 or pos + 1 <= start[t] - 4, (t, pos, start[t])
    if ndum:
        lds += spread([ds_read("ds_read_b32", V(161 + i), vL16) for i in range(ndum)], pos + 1, pos + 1 + ndum // 2, slack=1)
    fl = {"lds": lds, "end": end_stream(n, endtags, lg=ndum)}
    vm = vm_fillers(groups, g0, g1) if groups else []
    vm += [F(x, g1, n - 6) for x in adv]
    if e < 15:
        sel = F([scmp("s_cmp_eq_u32", sSlotR, 2 * ASLOT), salu("s_cselect_b32", sDelta, -2 * ASLOT, sC1)], g1, n - 6)
        vm += [F(salu("s_mov_b32", sSlotW, sSlotR), g1, n - 6), sel, F(salu("s_add_u32", sSlotR, sSlotR, sDelta), g1, n - 5)]
        lds += [F(valu("v_add_u32", r, sDelta, r), pos + 1, n - 1, [sel]) for r in [vWb] + vXa]
    fl["vm"] = vm
    if extra: fl.update(extra(start, end, n))
    return interleave(mf, fl)

def split_at_mfma(ins, k):
    idx = [i for i, x in enumerate(ins) if x.kind == "mfma"][k]
    return ins[:idx], ins[idx:]

def q_convert(j, s, pk=False):
    t0, t1 = 2 * s, 2 * s + 1
    a0, a1, q = accA(t0, j), accA(t1, j), Qf(j, s)
    o = []
    for a_ in (a0, a1):
        for r in range(4): o.append(valu("v_mul_f32", a_[r], sSC, a_[r]))
    o += [valu("v_cvt_pk_bf16_f32", q[0], a0[0], a0[1]), valu("v_cvt_pk_bf16_f32", q[2], a1[0], a1[1]),
          valu("v_cvt_pk_bf16_f32", q[1], a0[2], a0[3]), valu("v_cvt_pk_bf16_f32", q[3], a1[2], a1[3])]
    sw1 = [valu("v_permlane32_swap_b32", q[0], q[2]), valu("v_permlane32_swap_b32", q[1], q[3])]
    sw2 = [valu("v_permlane16_swap_b32", q[0], q[2]), valu("v_permlane16_swap_b32", q[1], q[3])]
    return o, sw1, sw2
def q_convert_seq(items):
    out = []; pend1 = pend2 = None
    for it in items:
        o, s1, s2 = q_convert(*it)
        out += o[:6]
        if pend2: out += pend2
        pend2 = None
        out += o[6:]
        if pend1: out += pend1[0]; pend2 = pend1[1]
        pend1 = (s1, s2)
    if pend2: out += pend2
    out += pend1[0] + pend1[1]
    return out

def phaseA(p):
    for st in range(2):
        p.emit(salu("s_mov_b32", sSlotW, st * ASLOT))
        g, adv = dma_batchA(st)
        p.emit(g, adv)
    if OPT("CW", "1") == "1":
        p.emit(raw("s_getpc_b64 s[16:17]", wr=[S(16, 2)]), label("mha_pc"), salu("s_and_b32", S(17), S(17), 0xffff),
               raw("s_mov_b32 s18, mha_code_end-mha_pc", wr=[S(18)]), salu("s_mov_b32", S(19), 0x20000))
        p.emit(salu("s_lshr_b32", sT0, sWG, 3), salu("s_lshl_b32", sT0, sT0, 2), salu("s_add_u32", sT0, sT0, sW), salu("s_lshl_b32", sT0, sT0, 7),
               valu("v_lshlrev_b32", vT[0], 14, vLane), vload(V(200), vT[0], S(16, 4), sT0))
    if OPT("TXW") == "1":
        p.emit(salu("s_lshl_b32", sT0, sWG, 2), salu("s_add_u32", sT0, sT0, sW), salu("s_lshl_b32", sT0, sT0, 13),
               valu("v_lshlrev_b32", vT[0], 7, vLane), vload(V(201), vT[0], SRD_WQ, sT0), vload(V(202), vT[0], SRD_X, sT0))
    setup2(p)
    p.emit(salu("s_lshl_b32", sT0, sB2, 4), salu("s_add_u32", sT0, sT0, sCT), salu("s_lshl_b32", sT0, sT0, 8), salu("s_add_u32", sFl, sT0, FLG),
           scmp("s_cmp_eq_u32", sW, 0), salu("s_cselect_b32", sT0, sFl, OOB), salu("s_mov_b64", EXEC, 1),
           vstore(V(16), V(17), SRD_WS, sT0, flags="sc0 sc1", tag="ZF"), salu("s_mov_b64", EXEC, -1))
    p.emit(wait_vm([("A", 0)]), barrier(), stamp())
    pf = [pf_load(n, i) for n in PARK[::-1] + list(range(1, NPF + 1)) for i in range(8)]
    if OPT("TWO", "1") == "1":
        tw = [[salu("s_add_u32", sSP, sTG, (i >> 2) * 4096), vload(V(160 + 4 * i, 4), vL16, SRD_WO, sSP, (i & 3) * 1024)] for i in range(8)]
        m = len(pf) + len(tw); mix = []
        if OPT("TWP", "mix") == "mix":
            for k in range(m):
                mix.append(tw.pop(0) if (tw and ((k + 1) * 8 // m > k * 8 // m)) else pf.pop(0))
        else: mix = tw + pf
        pf = mix
    if OPT("PRE", "0") == "1":
        pre = []
        for s_ in range(4):
            for j in range(4):
                pre.append([salu("s_lshl_b32", sSP, sQH, 12), salu("s_add_u32", sSP, sSP, sOb0 if s_ % 2 == 0 else sOb1),
                            salu("s_add_u32", sSP, sSP, (s_ >> 1) * 18432), vstore(V(240, 4), vL16, SRD_WS, sSP, j * 1024, flags=OSF)])
        for i in range(2): pre.append([salu("s_add_u32", sSP, sOb0, 8192 + i * 18432), vstore(V(240, 4), vL16, SRD_WS, sSP, 0, flags=OSF)])
        m = len(pf) + len(pre); mix = []; np_ = len(pre)
        for k in range(m):
            mix.append(pre.pop(0) if (pre and ((k + 1) * np_ // m > k * np_ // m)) else pf.pop(0))
        pf = mix
    PF0 = int(OPT("PF0", "1"))
    pos = [PF0 * 72 + (14 - PF0) * 72 * (2 * k + 1) // (2 * len(pf)) for k in range(len(pf))]
    for e in range(14):
        g, adv = dma_batchA(e + 2)
        def extra(start, end, n):
            o = []
            for k, x in enumerate(pf):
                if pos[k] // 72 == e:
                    t = min(max(pos[k] % 72, 3), n - 6)
                    o += vm_fillers([x], t, t)
            if e == 2:
                o = [F([wait_vm(["ZF"]), salu("s_lshl_b32", sT0, sB2, 4), scmp("s_cmp_eq_u32", sW, 0), salu("s_cselect_b32", sT0, sT0, OOB),
                        valu("v_mov_b32", V(204), 0), valu("v_mov_b32", V(205), 1), salu("s_mov_b64", EXEC, 1),
                        vstore(V(205), V(204), SRD_DBG, sT0, flags="sc1", op="buffer_atomic_add"), salu("s_mov_b64", EXEC, -1)], 40, 44)] + o
                o.sort(key=lambda f: f.e)
            return {"pf": o} if o else {}
        p.emit(epochA(e, g, adv, 2, 62, [("A", e + 1)], extra))
    p.emit(epochA(14, kv_batch(0), [], 4, 60, [("A", 15)]))
    def extra15(start, end, n):
        d = {}
        w = []
        for m in (1, 2):
            if m <= NPF: w += pf_write(m, vT[2 + m])
        if w: d["pw"] = spread(w, 16, 60, slack=2)
        cv = [F(x, end[1] + 4, n - 1) for x in q_convert_seq([(4, 0)] + [(j, 0) for j in range(4)])]
        d["cv"] = cv
        return d
    g = []
    for m in (1, 2):
        if m > NPF: g += kv_batch(m)
    p.emit(epochA(15, g, [], 4, 64, [], extra15))
    mf = []; s = 0
    for t in (6, 7):
        blk, s = blockA(t, 1, rev=(t % 2 == 1), s_first=s); mf += blk
    p.emit(salu("s_lshl_b32", sT0, sB, 4), valu("v_mov_b32", V(8), 0), salu("s_mov_b64", EXEC, 1),
           vload(V(9), V(8), SRD_DBG, sT0, flags="sc1"), salu("s_mov_b64", EXEC, -1))
    fl = {}
    if NPF >= 3: fl["pw"] = spread(pf_write(3, vT[2]), 0, 15, slack=1)
    else: fl["vm"] = vm_fillers(kv_batch(3), 2, 14, slack=0)
    fl["cv"] = [F(x, 2, 15) for x in q_convert_seq([(4, 2)] + [(j, 1) for j in range(4)])]
    p.emit(interleave(mf, fl))
    reg = (gran(SG, SG), "X", True)
    p.emit(valu("v_xor_b32", vT[0], SG + 8192, vPW))
    p.emit(ds_write("ds_write_b128", vT[0], Qf(4, 0), 0, reg), ds_write("ds_write_b128", vT[0], Qf(4, 2), 1024, reg))
    p.emit(q_convert_seq([(j, s_) for j in range(4) for s_ in (2, 3)]))
    p.emit(valu("v_readfirstlane_b32", sT1, V(9)), scmp("s_cmp_lt_u32", sT1, 16), raw("s_cbranch_scc1 mha_gate", "branch"), label("mha_gate_ok"))
    p.emit(stamp(), wait_both([("B", 0)]), barrier(), stamp())
    reg = reg + ("own",)
    p.emit(ds_read("ds_read_b128", Qf(4, 1), vPW, SG, reg), ds_read("ds_read_b128", Qf(4, 3), vPW, SG + 1024, reg))
    if NPF >= 4: p.emit(pf_write(4, vT[2]))

def blockQ(kt, czero=False):
    js = [0, 1, 2, 3] + ([4] if kt < 2 else [])
    out = []; last = {}; first = {}; fwd = True
    for j in js:
        ss = [0, 1, 2, 3] if fwd else [3, 2, 1, 0]
        first[j] = len(out)
        for i, s in enumerate(ss):
            c = None if i else (0 if czero else Cb(j))
            out.append(mfma(St(kt, j), Kf(kt, s), Qf(j, s), c))
        last[j] = len(out) - 1
        fwd = not fwd
    return out, first, last

def blockP(b, buf, zero=False):
    out = []
    for t in (2 * b, 2 * b + 1):
        nin = mfma(Oa(t, 4), Vf(t, 0), Pf(buf, 0, 4), 0 if zero else None)
        if t % 2: out.append(nin)
        u = 0
        for j in ((0, 1, 2, 3) if t % 2 == 0 else (3, 2, 1, 0)):
            for i, k in enumerate((u, 1 - u)): out.append(mfma(Oa(t, j), Vf(t, k), Pf(buf, k, j), 0 if (zero and i == 0) else None))
            u = 1 - u
        if t % 2 == 0: out.append(nin)
    return out

def softmax_tile(kt, j, buf, e, d, ex, rest, sub=False):
    s = St(kt, j); pf = Pf(buf, kt // 2, j)[2 * (kt % 2):2 * (kt % 2) + 2]
    E = []
    for r in range(4):
        ins = [valu("v_exp_f32", s[r], s[r])]
        if sub: ins = [valu("v_add_f32", s[r], s[r], Cb(j)[0])] + ins
        E.append(F(ins, e, d))
    ex += E
    rest += [F(valu("v_add_f32", vL(j), vL(j), s[0]), e, d, [E[1]]), F(valu("v_cvt_pk_bf16_f32", pf[0], s[0], s[1]), e, d, [E[2]]),
             F(valu("v_add_f32", vL(j), vL(j), s[1]), e, d), F(valu("v_add_f32", vL(j), vL(j), s[2]), e, d, [E[3]]),
             F(valu("v_cvt_pk_bf16_f32", pf[1], s[2], s[3]), e, d), F(valu("v_add_f32", vL(j), vL(j), s[3]), e, d)]

def rdK(kt, n):
    return [ds_read("ds_read_b128", Kf(kt, s), vKa(s & 1, kt >> 1), (kt & 1) * 4096 + (s >> 1) * 512, regB(n)) for s in range(4)]
def rdV(t, n):
    return [ds_read("ds_read_b64_tr_b16", Vf(t, u)[2 * h:2 * h + 2], vVa(t & 3, u), h * 4096 + (t >> 2) * 512, regB(n))
            for u in range(2) for h in range(2)]

def rowmax(j):
    s = St(0, j); m, t = vT[2 * (j % 2)], vT[1 + 2 * (j % 2)]
    o = [valu("v_max3_f32", m, s[0], s[1], s[2]), valu("v_max3_f32", m, m, s[3], vMin(j)),
         valu("v_mov_b32", t, m), valu("v_permlane32_swap_b32", m, t), valu("v_max_f32", m, m, t),
         valu("v_mov_b32", t, m), valu("v_permlane16_swap_b32", m, t), valu("v_max_f32", m, m, t)]
    o += [valu("v_sub_f32", Cb(j)[r], 0, m) for r in range(4)]
    return o

def prologueB(p):
    for j in range(5): p.emit(valu("v_mov_b32", vMin(j), 0xff800000))
    p.emit(salu("s_mov_b32", sRetry, 0))
    p.emit(label("mha_attn_entry"))
    KALT[0] = True
    p.emit(rdK(0, 0), rdK(1, 0))
    for j in range(5): p.emit(valu("v_mov_b32", vL(j), 0))
    mf = []; st = {}; fi = {}; la = {}
    for kt in range(4):
        q, f_, l_ = blockQ(kt, czero=(kt == 0))
        st[kt] = len(mf); fi[kt] = {j: v + len(mf) for j, v in f_.items()}; la[kt] = {j: v + len(mf) for j, v in l_.items()}
        mf += q
    n = len(mf)
    mx = {}
    m0_, m1_ = [], []
    for j in range(5):
        lst = [F(x, la[0][j] + 3, fi[1][j] - 2) for x in rowmax(j)]
        (m0_ if j % 2 == 0 else m1_).extend(lst); mx[j] = lst[-1]
    ex, rest = [], []
    for j in range(5):
        k = len(ex)
        softmax_tile(0, j, 0, la[0][j] + 3, (fi[2][j] - 1) if j < 4 else n - 1, ex, rest, sub=True)
        ex[k].deps.append(mx[j])
    for j in range(5): softmax_tile(1, j, 0, la[1][j] + 3, (fi[3][j] - 1) if j < 4 else n - 1, ex, rest)
    for j in range(4): softmax_tile(2, j, 0, la[2][j] + 3, n - 1, ex, rest)
    lds = spread(rdK(2, 0), st[1] - 1, st[1] + 8) + spread(rdK(3, 0), st[2] - 1, st[2] + 6)
    lds += [F(valu("v_add_u32", vKa(s0, u), SG, vKa(s0, u)), st[2] + 8, n - 1) for u in range(2) for s0 in range(2)]
    vm = []
    KALT[0] = False
    tags = [("B", m) for m in (1, 2) if m > NPF]
    if NPF < 4: vm += [F(wait_lgkm0(), 21, 21)] + vm_fillers(kv_batch(4), 24, n - 8)
    fl = {"m0": m0_, "m1": m1_, "ex": ex, "rest": rest, "lds": lds, "vm": vm}
    p.emit(interleave(mf, fl))
    p.emit(stamp(), wait_both(tags), barrier(), stamp())

def lsum(j):
    l, t = vL(j), vT[2 + j % 2]
    return [valu("v_mov_b32", t, l), valu("v_permlane32_swap_b32", l, t), valu("v_add_f32", l, l, t),
            valu("v_mov_b32", t, l), valu("v_permlane16_swap_b32", l, t), valu("v_add_f32", l, l, t)]

_cvk = [0]
def o_convert(s, j):
    k = _cvk[0]; _cvk[0] += 1
    T = V(16 + (k % 4) * 8, 8); Pk = V(56 + (k % 8) * 4, 4)
    o = []
    for h in range(2):
        for r in range(4): o.append(valu("v_accvgpr_read_b32", T[4 * h + r], Oa(2 * s + h, j)[r]))
    for r in range(8): o.append(valu("v_mul_f32", T[r], T[r], vL(j)))
    for r in range(4): o.append(valu("v_cvt_pk_bf16_f32", Pk[r], T[2 * r], T[2 * r + 1]))
    o.append(vstore(Pk, vL16, SRD_WS, sSP, j * 1024, flags=OSF, tag="OST"))
    return o
def o_group(s):
    o = [salu("s_lshl_b32", sSP, sQH, 12), salu("s_add_u32", sSP, sSP, sOb0 if s % 2 == 0 else sOb1)]
    if s >> 1: o.append(salu("s_add_u32", sSP, sSP, 18432))
    for j in range(4): o += o_convert(s, j)
    return o

LMAX = f32(2.0 ** 24)
MSG = 1 * SG
FLAGS_LDS = MSG + 6144
regM = (gran(MSG, SG), "M", True)

def b_plan():
    ents = [m for m in range(6, 16) if m not in PARK]
    pieces = [(m, g) for m in ents for g in kv_batch(m)]
    span = float(OPT("BSPAN", "5.5"))
    plan = {e: [] for e in range(8)}
    dt = span / len(pieces)
    free = lambda m: (m - 4) // 2
    need = lambda m: 7 if m == 15 else (m - 1) // 2
    ts = []; t = 1.0
    for m, g in pieces:
        t = max(t, float(free(m))); ts.append(t); t += dt
    marg = float(OPT("BMARG", "0.3"))
    for k in range(len(ts) - 1, -1, -1):
        ts[k] = min(ts[k], need(pieces[k][0]) - marg)
        if k + 1 < len(ts): ts[k] = min(ts[k], ts[k + 1] - 0.06)
        assert ts[k] >= free(pieces[k][0]) - 1e-9, (k, ts[k])
    for t, (m, g) in zip(ts, pieces):
        plan[int(t)].append(((t - int(t)) * 0.93, g, m))
    return plan

def epochB(e):
    final = (e == 7)
    bufc, bufn = e % 2, (e + 1) % 2
    nK, nV = 2 * e + 1, (2 * e + 2 if e < 7 else 15)
    mf = []; st = {}; en = {}; fi = {}; la = {}
    if e > 0:
        st["L"] = 0; mf += blockP(3, bufn); en["L"] = len(mf) - 1
    VALT[0] = final
    for b in range(4):
        if not final:
            q, f_, l_ = blockQ(b)
            st["Q%d" % b] = len(mf); fi[b] = {j: v + len(mf) for j, v in f_.items()}; la[b] = {j: v + len(mf) for j, v in l_.items()}
            mf += q; en["Q%d" % b] = len(mf) - 1
        if b < 3 or final:
            st["P%d" % b] = len(mf); mf += blockP(b, bufc, zero=(e == 0)); en["P%d" % b] = len(mf) - 1
    n = len(mf)
    ex, rest = [], []
    for j in range(4): softmax_tile(3, j, bufc, -1, st["P0"] - 2, ex, rest)
    fl = {"ex": ex, "rest": rest}
    if not final:
        for j in range(5): softmax_tile(0, j, bufn, la[0][j] + 3, (fi[2][j] - 1) if j < 4 else n - 1, ex, rest)
        for j in range(5): softmax_tile(1, j, bufn, la[1][j] + 3, (fi[3][j] - 1) if j < 4 else n - 1, ex, rest)
        for j in range(4): softmax_tile(2, j, bufn, la[2][j] + 3, n - 1, ex, rest)
        vm = []
        if e == 0: mine = [(0.02 + 0.11 * i, g, 5) for i, g in enumerate(kv_batch(5))]
        else: mine = b_plan()[e]
        for k, (fr, g, m) in enumerate(mine):
            if k == 0 and len(g) == 1:
                pass
            if OPT("BTH"): g.insert(len(g) - 1, raw("s_waitcnt vmcnt(%s)" % OPT("BTH"), "salu"))
            t = max(3, int(fr * n))
            vm += vm_fillers([g], t, t)
        if e == 6:
            vm += vm_fillers(wo_batch(0) + wo_batch(1), int(0.48 * n), n - 8)
        fl["vm"] = vm
        if e == 5: fl["wa"] = [F(x, 10, n - 1) for x in d_addr_setup()]
        for m in PARK:
            if (m - 4) // 2 == e: fl["pw"] = spread(pf_write(m, vT[0]), 20, n - 30)
        lds = []
        last = {}
        for b in range(4):
            lo = -1 if b == 0 else en["Q%d" % (b - 1)]
            hi = st["Q%d" % b]
            kk = spread(rdK(b, nK), lo, max(lo, min(lo + 8, hi - 9)), slack=1)
            pb = ("P%d" % (b - 1)) if b else ("L" if e else None)
            lo0 = (st[pb] + 8) if pb else 0
            lo1 = en[pb] if pb else 4
            lo0 = max(lo0, kk[-1].e)
            v0 = spread(rdV(2 * b, nV), lo0, max(lo0 + 4, lo1), slack=1)
            v1 = spread(rdV(2 * b + 1, nV), lo1, lo1 + 7, slack=1)
            lds += kk + v0 + v1
            last["K%d" % b] = kk[-1]; last["V%d" % (2 * b)] = v0[-1]; last["V%d" % (2 * b + 1)] = v1[-1]
        fl["lds"] = lds
        dk = (sigB(nK + 2) - sigB(nK)) * SG
        dv = (sigB(nV + 2 if e < 6 else 15) - sigB(nV)) * SG
        ad = []
        if e == 0:
            ad += [F(valu("v_accvgpr_write_b32", Oa(t, j)[r], 0), 30, n - 1) for t in (6, 7) for j in range(5) for r in range(4)]
        ad += [F(valu("v_add_u32", vKa(s0, 0), dk, vKa(s0, 0)), 0, n - 1, [last["K1"]]) for s0 in range(2)]
        ad += [F(valu("v_add_u32", vVa(t, u), dv, vVa(t, u)), 0, n - 1, [last["V5"]]) for t in (0, 1) for u in range(2)]
        ad += [F(valu("v_add_u32", vKa(s0, 1), dk, vKa(s0, 1)), 0, n - 1, [last["K3"]]) for s0 in range(2)]
        ad += [F(valu("v_add_u32", vVa(t, u), dv, vVa(t, u)), 0, n - 1, [last["V%d" % (4 + t)]]) for t in (2, 3) for u in range(2)]
        fl["ad"] = ad
        need = (2 * e + 3, 2 * e + 4) if e < 6 else (15,)
        tags = [("B", m) for m in need if m > NPF and m not in PARK]
        fl["end"] = end_stream(n, tags)
        return interleave(mf, fl, margin=16)
    lds = spread(rdV(0, nV) + rdV(1, nV), -1, st["P0"] - 6)
    for b in (1, 2, 3):
        lo = en["L"] if b == 1 else en["P%d" % (b - 2)]
        lds += spread(rdV(2 * b, nV) + rdV(2 * b + 1, nV), lo, st["P%d" % b] - 6)
    fl["lds"] = lds
    R0 = rdW(0); R1 = rdW(1)
    r0 = [F(wait_vm([("W", 0)]), 4, 6)] + spread(R0, 6, 30) + [F(wait_vm([("W", 1)]), 30, 32)] + spread(R1, 32, 56)
    w0 = F(wait_lgkm0(), 38, 39, [r0[len(R0)]]); w1 = F(wait_lgkm0(), 64, 65, [r0[-1]])
    fl["wr"] = r0
    fl["vm"] = vm_fillers(wo_batch(2), 8, 36) + [w0] + vm_fillers(wo_batch(3), 46, 64) + [w1] + vm_fillers(wo_batch(4), 72, n - 2, slack=0)
    epi = []
    for j in range(5): epi += [F(x, st["P0"] - 2, n - 1, [rest[-1]]) for x in lsum(j)]
    chk = [valu("v_add_f32", vT[2], vL(0), vL(1)), valu("v_add_f32", vT[3], vL(2), vL(3)), valu("v_add_f32", vT[2], vT[2], vL(4)),
           valu("v_add_f32", vT[2], vT[2], vT[3]), salu("s_mov_b32", sT2, LMAX),
           I("v_cmp_nge_f32 vcc, %s, %s" % (sT2, vT[2]), "valu", regs_of(sT2, vT[2]), regs_of(VCC)),
           valu("v_mov_b32", Cb(4)[1], vL(4)), valu("v_xor_b32", vT[0], MSG + 8192, vPW),
           I("s_or_b32 %s, vcc_lo, vcc_hi" % sT2, "salu", regs_of(VCC), regs_of(sT2)),
           valu("v_mov_b32", vT[2], sT2), salu("s_lshl_b32", sT3, sW, 2), salu("s_add_u32", sT3, sT3, FLAGS_LDS),
           valu("v_and_b32", vT[3], 3, vLane), valu("v_lshlrev_b32", vT[3], 13, vT[3]), valu("v_add_u32", vT[3], sT3, vT[3]),
           ds_write("ds_write_b32", vT[3], vT[2], 0, regM), ds_write("ds_write_b64", vT[0], Cb(4)[0:2], 4096, regM)]
    chk += [valu("v_rcp_f32", vL(j), vL(j)) for j in range(4)]
    epi += [F(x, st["P0"], n - 1) for x in chk]
    epi += [F(x, en["P0"] + 4, n - 1) for x in o_group(0)]
    epi += [F(ds_write("ds_write_b128", vT[0], Oa(t, 4), i * 1024, regM), en["P1"] + 4, n - 1) for i, t in enumerate((2, 3))]
    epi += [F(x, en["P1"] + 4, n - 1) for x in o_group(1)]
    fl["epi"] = epi
    return interleave(mf, fl)

def epilogueB(p):
    p.emit(stamp())
    g2 = o_group(2)
    p.emit(g2[:24])
    for i, t in ((2, 6), (3, 7)): p.emit(ds_write("ds_write_b128", vT[0], Oa(t, 4), i * 1024, regM))
    p.emit(salu("s_add_u32", sT3, sCkv, FLAGS_LDS), valu("v_mov_b32", vT[3], sT3), valu("v_add_u32", vT[1], MSG, vPW))
    p.emit(g2[24:])
    p.emit(wait_lgkm0(), barrier())
    X = V(128, 16); ML = V(48, 2); FL = V(52, 4)
    own = regM + ("own",)
    p.emit(ds_read("ds_read_b128", FL, vT[3], 0, own))
    p.emit(ds_read("ds_read_b64", ML, vT[1], 4096, own))
    for i in range(4): p.emit(ds_read("ds_read_b128", X[4 * i:4 * i + 4], vT[1], i * 1024, own))
    p.emit(o_group(3))
    p.emit(valu("v_or3_b32", FL[0], FL[0], FL[1], FL[2]), valu("v_or_b32", FL[0], FL[0], FL[3]), valu("v_readfirstlane_b32", sT2, FL[0]))
    na, la_, nb, lb = Cb(4)[0], vL(4), ML[0], ML[1]
    mn, fa, fb = vT[2], vT[3], vT[4]
    p.emit(valu("v_min_f32", mn, na, nb), valu("v_sub_f32", fa, mn, na), valu("v_sub_f32", fb, mn, nb),
           valu("v_exp_f32", fa, fa), valu("v_exp_f32", fb, fb))
    p.emit(salu("s_andn2_b32", sT2, sT2, sRetry), scmp("s_cmp_lg_u32", sT2, 0), raw("s_cbranch_scc1 mha_fallback", "branch"))
    p.emit(valu("v_mul_f32", la_, la_, fa), valu("v_fmac_f32", la_, lb, fb),
           valu("v_rcp_f32", la_, la_), salu("s_add_u32", sSP, sOb0, 8192), valu("v_mul_f32", fa, fa, la_), valu("v_mul_f32", fb, fb, la_))
    for i, s in enumerate((0, 2)):
        T = V(96 + i * 8, 8); Pk = V(112 + i * 4, 4)
        for h in range(2):
            for r in range(4): p.emit(valu("v_accvgpr_read_b32", T[4 * h + r], Oa(2 * s + h, 4)[r]))
        for r in range(8): p.emit(valu("v_mul_f32", T[r], T[r], fa))
        for r in range(8): p.emit(valu("v_fmac_f32", T[r], X[8 * i + r], fb))
        for r in range(4): p.emit(valu("v_cvt_pk_bf16_f32", Pk[r], T[2 * r], T[2 * r + 1]))
        p.emit(vstore(Pk, vL16, SRD_WS, sSP, 0, flags=OSF, tag="OST"))
        if i == 0: p.emit(salu("s_add_u32", sSP, sSP, 18432))

def phaseB(p):
    prologueB(p)
    for e in range(8): p.emit(epochB(e))
    epilogueB(p)

def fallback():
    p = Prog("mha_fb"); p.hoist = False
    p.emit(label("mha_gate"), salu("s_mov_b32", sT2, 1 << 14), salu("s_mov_b64", EXEC, 1), label("mha_gate_l"))
    p.emit(raw("s_sleep 64"), vload(V(9), V(8), SRD_DBG, sT0, flags="sc1"), wait_all_vm(), valu("v_readfirstlane_b32", sT1, V(9)),
           salu("s_sub_u32", sT2, sT2, 1), scmp("s_cmp_eq_u32", sT2, 0), raw("s_cbranch_scc1 mha_gate_x", "branch"),
           scmp("s_cmp_lt_u32", sT1, 16), raw("s_cbranch_scc1 mha_gate_l", "branch"))
    p.emit(label("mha_gate_x"), salu("s_mov_b64", EXEC, -1), raw("s_branch mha_gate_ok", "branch"))
    p.emit(label("mha_fallback"), wait_all_vm(), wait_lgkm0(), barrier())
    p.emit(salu("s_mov_b32", sRetry, -1))
    c_, g_ = vT[2], vT[3]
    p.emit(valu("v_and_b32", c_, 15, vLane), valu("v_lshrrev_b32", g_, 4, vLane), valu("v_lshlrev_b32", c_, 8, c_), valu("v_lshl_add_u32", c_, g_, 4, c_),
           salu("s_lshl_b32", sT0, sQH, 6), valu("v_add_u32", vT[0], sT0, c_), valu("v_xor_b32", vT[1], 64, vT[0]))
    p.emit(salu("s_lshl_b32", sT0, sQH, 13), salu("s_sub_u32", sT1, sKVbase, sT0))
    def body(it):
        o = [vload(Kf(0, s_), vT[s_ & 1], SRD_K, sT1, (s_ >> 1) * 128) for s_ in range(4)]
        o += blockQ(0, czero=True)[0]
        for j in range(5):
            st_ = St(0, j)
            o += [valu("v_max3_f32", vMin(j), vMin(j), st_[0], st_[1]), valu("v_max3_f32", vMin(j), vMin(j), st_[2], st_[3])]
        o.append(salu("s_add_u32", sT1, sT1, 4096))
        return o
    p.loop(32, body, sCNT)
    for t2 in range(4):
        for u in range(2): p.emit(valu("v_add_u32", vVa(t2, u), 2 * SG, vVa(t2, u)))
    for m in range(4): p.emit(kv_batch(m))
    for m in PARK:
        for i in range(8): p.emit(pf_load(m, i))
    p.emit(wait_all_vm(), barrier(), raw("s_branch mha_attn_entry", "branch"))
    return p

def accD(j, t): return V(16 + (j * 4 + t) * 4, 4)
def Of(j, s): return A((j * 2 + s) * 4, 4)
WBLK = [A(192, 32), A(224, 32), A(160, 32), A(72, 32), A(104, 32), V(186, 32), V(218, 32)]
def Wf(t, tt, s): return WBLK[t % 7][(tt * 2 + s) * 4:(tt * 2 + s) * 4 + 4]
vO = [V(160 + i) for i in range(5)]
vWa = [V(5 + i) for i in range(4)]
vRw = [V(170 + i) for i in range(6)]
vRr = [V(176 + i) for i in range(6)]
vOut = V(182)
OFLAGS = OPT("OF", "sc1")
SIGW = [3, 4, 0, 3, 4, 1, 2, 0, 3, 4, 1, 2, 0, 3, 4, 1]
def regW(t): return (gran(SIGW[t] * SG, SG), ("W", t), False)
sOrd, sObase, sKt = sLw, sWOend, sDw
_wgrp = [0]

def d_addr_setup():
    g_, r_, cp, r8 = vT[1], vT[2], vT[3], vT[4]
    o = [valu("v_lshrrev_b32", g_, 4, vLane), valu("v_bfe_u32", r_, vLane, 2, 2), valu("v_and_b32", cp, 3, vLane),
         valu("v_and_b32", r8, 1, g_), valu("v_lshl_add_u32", r8, r8, 2, r_),
         valu("v_lshrrev_b32", r_, 1, r8), valu("v_lshlrev_b32", r_, 5, r_), valu("v_lshl_add_u32", r_, cp, 3, r_),
         valu("v_lshl_add_u32", r_, r8, 7, r_), valu("v_lshrrev_b32", g_, 1, g_), valu("v_lshl_add_u32", r_, g_, 10, r_),
         valu("v_add_u32", vWa[0], sCkv, r_)]
    o += [valu("v_xor_b32", vWa[i], i << 5, vWa[0]) for i in range(1, 4)]
    o += [salu("s_lshl_b32", sWOoff, sW, 21), salu("s_lshl_b32", sT0, sCT, 7), salu("s_add_u32", sWOoff, sWOoff, sT0),
          salu("s_lshl_b32", sT0, sB2, 7), salu("s_lshl_b32", sT1, sW, 5), salu("s_add_u32", sT0, sT0, sT1), salu("s_mul_i32", sObase, sT0, 9216)]
    DS = OPT("DSKEW", "2")
    if DS == "0": o += [salu("s_mov_b32", sOrd, 0)]
    elif DS == "1": o += [salu("s_and_b32", sOrd, sB2, 3)]
    else: o += [salu("s_xor_b32", sOrd, sB2, sCT), salu("s_and_b32", sOrd, sOrd, 3)]
    _wgrp[0] = 0
    return o
def kstep(t, dst):
    if OPT("DPH", "0") == "1": return [salu("s_add_u32", dst, sW, t), salu("s_and_b32", dst, dst, 15), salu("s_xor_b32", dst, dst, sOrd)]
    return [salu("s_xor_b32", dst, sOrd, t)]
def wo_batch(t):
    g = []
    for i in range(8):
        if i: pre = [salu("s_add_u32", M0, M0, 1024), salu("s_add_u32", sSO, sSO, 16384)]
        else: pre = kstep(t, sSO) + [salu("s_lshl_b32", sSO, sSO, 17), salu("s_add_u32", sSO, sSO, sWOoff), salu("s_add_u32", M0, sCkv, SIGW[t] * SG)]
        g.append(pre + [dma(vOffX, SRD_WO, sSO, flags=OPT("WOF"), tag=("W", t), region=regW(t))])
    return g
def o_base(t): return kstep(t, sKt) + [salu("s_mul_i32", sKt, sKt, 18432), salu("s_add_u32", sOoff, sObase, sKt)]
def o_load(j, s):
    o = s * 9216 + j * 1024
    return vload(Of(j, s), vO[o >> 12], SRD_WS, sOoff, o & 4095, flags=OFLAGS)
def rdW(t):
    grp = SIGW[t] >> 1
    o = []
    if grp != _wgrp[0]:
        o += [valu("v_add_u32", vWa[i], (grp - _wgrp[0]) * 2 * SG, vWa[i]) for i in range(4)]
        _wgrp[0] = grp
    return o + [ds_read("ds_read_b64_tr_b16", Wf(t, tt, s)[2 * h:2 * h + 2], vWa[tt], (SIGW[t] & 1) * SG + s * 4096 + h * 2048, regW(t))
                for tt in range(4) for s in range(2) for h in range(2)]
def red_write(j, tt):
    reg = (gran((j >> 1) * SG, SG), "R", True, "own")
    return ds_write("ds_write_b128", vRw[(j >> 2) * 2 + (tt & 1)], accD(j, tt), ((j >> 1) & 1) * SG + (j & 1) * 4096 + (tt >> 1) * 128, reg)

NPRE = int(OPT("NPRE", "12"))
def stepD(t):
    mf = []; en = {}; s = 0
    for j in range(9):
        for tt in (range(4) if j % 2 == 0 else range(3, -1, -1)):
            for i, k in enumerate((s, 1 - s)): mf.append(mfma(accD(j, tt), Wf(t, tt, k), Of(j, k), 0 if (t == 0 and i == 0) else None))
            s = 1 - s
        en[j] = len(mf) - 1
    n = len(mf)
    fl = {}
    tr = t + 6
    if t >= 1 and tr <= 15:
        fl["lds"] = [F(wait_vm([("W", tr)]), 8, 10)] + spread(rdW(tr), 10, n - 16) + [F(wait_lgkm0(), n - 4, n - 3)]
    vm = []
    if t < 15:
        vm += [F(x, i, 6) for i, x in enumerate(o_base(t + 1))]
        for j in range(9):
            vm += [F(o_load(j, 0), en[j], n - 1), F(o_load(j, 1), min(en[j] + 3, n - 1), n - 1)]
    fl["vm"] = vm
    tw = WSCHED.get(t)
    if tw is not None: fl["w"] = vm_fillers(wo_batch(tw), 12, n - 4)
    if t == 15:
        fl["red"] = [F(red_write(j, tt), min(en[j] + 4 + 2 * tt, n - 1), n - 1) for j in range(9) for tt in range(4)]
    return interleave(mf, fl)
WSCHED = {}

def phaseD(p):
    p.emit(wait_vm([("W", 2)]))
    p.emit(wo_batch(5), wo_batch(6))
    p.emit(rdW(2))
    for i in range(5): p.emit(valu("v_add_u32", vO[i], i * 4096, vL16))
    p.emit(salu("s_lshl_b32", sT0, sB, 12), salu("s_add_u32", sT0, sT0, FLG), scmp("s_cmp_eq_u32", sW, 0), salu("s_cselect_b32", sT0, sT0, OOB),
           valu("v_lshlrev_b32", V(184), 8, vLane), valu("v_mov_b32", V(185), 1))
    p.emit(wait_vm(["OST"]), barrier())
    p.emit(salu("s_mov_b64", EXEC, 0xffff), vstore(V(185), V(184), SRD_WS, sT0, flags="sc1", op="buffer_atomic_add"), salu("s_mov_b64", EXEC, -1))
    p.emit(stamp())
    done = 7
    def more(t):
        return wo_batch(t) if t < NPRE else []
    p.emit(rdW(3), wait_both([], lg=16), more(7), rdW(4), wait_both([], lg=16), more(8))
    p.emit(wait_vm([("W", 5)]), rdW(5), wait_both([], lg=16), more(9))
    p.emit(wait_vm([("W", 6)]), rdW(6), wait_both([], lg=16), more(10), wait_lgkm0(), more(11))
    rest = [t for t in range(7, 16) if t >= NPRE]
    st_ = 0
    for t in rest:
        st_ = max(st_, t - 10, 0); WSCHED[st_] = t; assert st_ <= t - 7; st_ += 1
    g_ = vT[2]
    p.emit(valu("v_lshrrev_b32", g_, 4, vLane))
    p.emit(valu("v_and_b32", vT[0], 15, vLane), valu("v_and_b32", vT[1], 7, vLane), valu("v_xor_b32", vT[4], vT[1], g_),
           valu("v_lshlrev_b32", vT[4], 4, vT[4]), valu("v_lshl_add_u32", vT[4], vT[0], 8, vT[4]), valu("v_add_u32", vRw[0], sCkv, vT[4]),
           valu("v_xor_b32", vRw[1], 64, vRw[0]))
    for i in range(2, 6): p.emit(valu("v_add_u32", vRw[i], 2 * SG, vRw[i - 2]))
    p.emit(valu("v_lshrrev_b32", vT[0], 3, vLane), valu("v_lshlrev_b32", vT[4], 1, vT[1]), valu("v_xor_b32", vT[4], vT[4], vT[0]),
           valu("v_lshlrev_b32", vT[4], 4, vT[4]), salu("s_lshl_b32", sT0, sW, 3), valu("v_add_u32", vT[0], sT0, vT[0]),
           valu("v_lshl_add_u32", vRr[0], vT[0], 8, vT[4]), valu("v_xor_b32", vRr[1], 16, vRr[0]))
    for i in range(2, 6): p.emit(valu("v_add_u32", vRr[i], 2 * SG, vRr[i - 2]))
    p.emit(valu("v_lshlrev_b32", vOut, 11, vT[0]), valu("v_lshl_add_u32", vOut, vT[1], 4, vOut))
    p.emit(o_base(0), stamp())
    p.emit(scmp("s_cmp_lg_u32", sW, 0), raw("s_cbranch_scc1 mha_polled", "branch"))
    p.emit(valu("v_mov_b32", vT[0], 0), salu("s_mov_b32", sPoll, 1 << 17), salu("s_mov_b64", EXEC, 1))
    p.emit(label("mha_poll"))
    p.emit(raw("buffer_load_dword %s, %s, %s, %s offen sc1" % (vT[1], vT[0], SRD_WS, sFl), "other"), raw("s_waitcnt vmcnt(0)", "other"))
    p.emit(valu("v_readfirstlane_b32", sT1, vT[1]), scmp("s_cmp_ge_u32", sT1, 16), raw("s_cbranch_scc1 mha_pollok", "branch"))
    p.emit(raw("s_sleep %s" % OPT("SLP", "2")), salu("s_sub_u32", sPoll, sPoll, 1), scmp("s_cmp_lg_u32", sPoll, 0), raw("s_cbranch_scc1 mha_poll", "branch"))
    p.emit(label("mha_pollok"), salu("s_mov_b64", EXEC, -1))
    p.emit(label("mha_polled"), barrier(), stamp())
    for j in range(9): p.emit(o_load(j, 0), o_load(j, 1))
    for t in range(16):
        p.emit(stepD(t))
        if t % 2: p.emit(stamp())
    p.emit(salu("s_mul_i32", sT0, sB2, 294912), salu("s_lshl_b32", sT1, sCT, 7), salu("s_add_u32", sT0, sT0, sT1))
    p.emit(wait_lgkm0(), barrier(), stamp())
    def buf(rd, i, h): return V(16 + (rd % 4) * 32 + i * 8 + h * 4, 4)
    def reads(rd):
        reg = (gran(rd * SG, SG), "R", True)
        return [ds_read("ds_read_b128", buf(rd, i, h), vRr[(rd >> 1) * 2 + h], (rd & 1) * SG + i * 8192, reg) for i in range(4) for h in range(2)]
    p.emit(reads(0))
    for rd in range(5):
        if rd + 1 < 5: p.emit(reads(rd + 1))
        if rd == 4: p.emit(scmp("s_cmp_ge_u32", sW, 2), raw("s_cbranch_scc1 mha_fin", "branch"))
        b0 = V(16 + (rd % 4) * 32, 32)
        for r in range(8): p.emit(valu("v_add_f32", b0[r], b0[r], b0[8 + r]))
        for r in range(8): p.emit(valu("v_add_f32", b0[16 + r], b0[16 + r], b0[24 + r]))
        for r in range(8): p.emit(valu("v_add_f32", b0[r], b0[r], b0[16 + r]))
        Pk = V(192 + rd * 4, 4)
        for r in range(4): p.emit(valu("v_cvt_pk_bf16_f32", Pk[r], b0[2 * r], b0[2 * r + 1]))
        p.emit(vstore(Pk, vOut, SRD_OUT, sT0, flags=OPT("OUTF", "sc1")))
        if rd < 4: p.emit(salu("s_add_u32", sT0, sT0, 32 * 2048))
    p.emit(label("mha_fin"))

KNAME = "standalone__mha_block_cached__near_ridge_kernel"
def build():
    k = Prog("mha"); setup(k)
    phaseA(k); phaseB(k); k.emit(stamp())
    phaseD(k); k.emit(stamp_store(32 << 20))
    k.emit(label("mha_end"), raw("s_endpgm"))
    fb = fallback()
    hdr = open("standalone__mha_block_cached__near_ridge.s.ref").read().split("; Override launch")[0]
    out = hdr
    out += "; @launch grid=(256,1,1) block=(256,1,1) lds=163840\n"
    out += '.amdgcn_target "amdgcn-amd-amdhsa--gfx950"\n.text\n'
    t = k.text()
    print(k.stats(), "est cycles", est_cycles([x for _, x in k.expanded(k.trace)]))
    out += ".globl %s\n.p2align 8\n.type %s,@function\n%s:\n%s" % (KNAME, KNAME, KNAME, t)
    out += "mha_code_end:\n" + fb.text()
    out += '.section .rodata,"a"\n.p2align 6\n' + kernel_desc(KNAME, 512, 102, 256)
    return out

if __name__ == "__main__":
    if "--stamps" in sys.argv:
        sys.argv.remove("--stamps"); STAMPS = True
    dst = sys.argv[1] if len(sys.argv) > 1 else "standalone__mha_block_cached__near_ridge.s"
    open(dst, "w").write(build())
```

```python
import struct, sys, os
from fw import *
from asmlib import kernel_desc
OPT = lambda k, d="": os.environ.get(k, d)

def f32(x): return struct.unpack("<I", struct.pack("<f", x))[0]
CSCALE = f32(1.4426950408889634 / (128 ** 0.5))

sWG = S(2)
sB2 = S(3)
SRD_X, SRD_WQ, SRD_K, SRD_V = S(4, 4), S(8, 4), S(12, 4), S(16, 4)
SRD_WS, SRD_WO, SRD_OUT, SRD_DBG = S(20, 4), S(24, 4), S(28, 4), S(32, 4)
PTR = S(36, 16)
sLINK = S(52, 2)
sTG, sKVend = S(54), S(55)
sW, sHD, sQH, sB, sHP = S(56), S(57), S(58), S(59), S(60)
sCNT = S(61)
sT0, sT1, sT2, sT3 = S(62), S(63), S(64), S(65)
sEX9 = S(66, 2)
sXoff, sX9off, sWoff = S(68), S(69), S(70)
sCx, sCx9, sCw = S(71), S(72), S(73)
sSlotR, sSlotW, sDelta = S(74), S(75), S(76)
sKVbase, sCkv = S(77), S(78)
sKs, sVs, sWa, sWb, sDk, sDv = S(79), S(80), S(81), S(82), S(83), S(84)
sOffA, sOffB = S(85), S(86)
sOb0, sOb1 = S(87), S(88)
sSC = S(89)
sSP = S(90)
sSO = S(91)
sOoff, sWOoff, sCT, sLw = S(92), S(93), S(94), S(95)
sC1 = S(96)
sFl = S(46)
sSC2 = S(44, 2)
sRot = S(47)
sRetry, sWOend, sPoll, sDw = S(66), S(67), S(68), S(69)

OOB = 0x10000000
ASLOT = 51200
XBYTES = 18432
SG = 32768
FLG = 24 << 20
KVFLAGS = OPT("KVF", "nt")
NPF = int(OPT("NPF", "2"))
assert NPF <= 2
OSF = OPT("OSF", "sc1")

vLane = V(0)
vOffX, vOffW, vOffKV, vL16 = V(1), V(2), V(3), V(4)
vXa = [V(5), V(6), V(7), V(8)]
vWb = V(9)
vT = [V(10), V(11), V(12), V(13), V(14), V(15)]
vPW, vTch = V(254), V(255)
vOffKV1 = V(15)
def accA(t, j):
    if j < 4: return V(16 + (t * 4 + j) * 4, 4)
    return V(144 + {0: 0, 1: 1, 4: 2, 5: 3}[t] * 4, 4)
def Bf(buf, j, s): return A(buf * 40 + (j * 2 + s) * 4, 4)
def Af(t, s): return A(80 + (t % 4) * 8 + s * 4, 4)
def Qf(j, s): return V(160 + (j * 4 + s) * 4, 4)
PARK = [int(x) for x in OPT("PARK", "8,12").split(",") if x]
PFR = {1: A(120, 32), 2: A(152, 32)}
for _i, _n in enumerate(PARK): PFR[_n] = A(192 + 32 * _i, 32)
def St(kt, j): return V(16 + (kt % 2) * 20 + j * 4, 4)
def Pf(buf, u, j): return V(56 + buf * 36 + (u * 5 + j) * 4, 4)
def Cb(j): return V(128 + 4 * j, 4)
def vL(j): return V(148 + j)
def vMin(j): return V(153 + j)
def Oa(t, j): return A((t * 5 + j) * 4, 4)
KALT = [False]; VALT = [False]
def Kf(kt, s): return A(160 + (16 if (KALT[0] and kt % 2) else 0) + s * 4, 4)
def Vf(t, u): return A((160 if (VALT[0] and (t >> 1) % 2 == 0) else 176) + (t % 2) * 8 + u * 4, 4)
def vKa(s0, u): return V(240 + s0 * 2 + u)
def vVa(t2, u): return V(244 + t2 * 2 + u)
NINTH_T = (0, 1, 4, 5)

STAMPS = False
def stamp():
    if not STAMPS: return []
    return [raw("s_memrealtime s[100:101]"), raw("s_memtime s[98:99]"), wait_lgkm0(), raw("s_mov_b32 s101, m0"), raw("s_mov_b32 m0, s97"),
            raw("v_writelane_b32 v252, s100, m0", "valu"), raw("v_writelane_b32 v253, s98, m0", "valu"), raw("s_add_u32 s97, s97, 1"),
            raw("s_mov_b32 m0, s101"), raw("s_nop 0")]
def stamp_init():
    if not STAMPS: return []
    return [raw("s_mov_b32 s97, 0"), raw("v_mov_b32 v252, 0", "valu"), raw("v_mov_b32 v253, 0", "valu")] + stamp()
def stamp_store(base):
    if not STAMPS: return []
    o = [raw("s_mov_b64 exec, -1"), wait_all_vm()] + stamp()
    o += srd(SRD_DBG, 7, 1 << 28)
    o += [salu("s_lshl_b32", sT0, sWG, 2), salu("s_add_u32", sT0, sT0, sW), salu("s_lshl_b32", sT0, sT0, 9), salu("s_add_u32", sT0, sT0, base),
          valu("v_lshlrev_b32", vT[0], 3, vLane), raw("s_nop 4"), vstore(V(252, 2), vT[0], SRD_DBG, sT0)]
    return o

def srd(dst, ptr_idx, nbytes):
    return [salu("s_mov_b32", dst[0], PTR[2 * ptr_idx]), salu("s_mov_b32", dst[1], PTR[2 * ptr_idx + 1]),
            salu("s_mov_b32", dst[2], nbytes), salu("s_mov_b32", dst[3], 0x20000)]

def gran(lo, n): return list(range(lo // 2048, (lo + n + 2047) // 2048))
def regA(st): return (gran((st % 3) * ASLOT, ASLOT), ("A", st), True)
def sigB(n): return (n + 2) % 5
def regB(n): return (gran(sigB(n) * SG, SG), ("B", n), True)
def regBw(n): return regB(n) + ("own",)

def vm_fillers(groups, g0, g1, slack=2):
    out = []; n = len(groups)
    for i, grp in enumerate(groups):
        t = g0 + (g1 - g0) * i // max(1, n)
        isv = [any(y.kind in VM for y in flatten([x])) for x in grp]
        k = isv.index(True) if True in isv else len(grp) - 1
        for q, x in enumerate(grp):
            e = max(0, t + q - k)
            out.append(F(x, e, max(e, t) + slack))
    return out

def end_stream(n, tags, loop=False, lg=0):
    o = []
    if loop: o += [F(loopctl(), n - 5, n - 5)] + ([] if STAMPS else [F(loopcmp(), n - 4, n - 4)])
    o += [F(wait_both(tags, lg), n - 3, n - 3), F([barrier()] + stamp(), n - 2, n - 2)]
    return o

def setup(p):
    p.emit(scmp("s_cmp_ge_u32", sWG, 256), raw("s_cbranch_scc1 mha_end", "branch"))
    p.emit(raw("s_load_dwordx16 %s, s[0:1], 0" % PTR, wr=[PTR]))
    p.emit(valu("v_lshrrev_b32", vT[0], 6, V(0)), valu("v_and_b32", vLane, 63, V(0)))
    p.emit(valu("v_readfirstlane_b32", sW, vT[0]))
    p.emit(valu("v_lshlrev_b32", vL16, 4, vLane))
    p.emit(valu("v_lshrrev_b32", vT[2], 4, vLane), valu("v_lshlrev_b32", vT[3], 1, vT[2]),
           valu("v_and_b32", vT[1], 7, vLane), valu("v_xor_b32", vT[1], vT[1], vT[3]), valu("v_lshlrev_b32", vT[1], 4, vT[1]))
    p.emit(valu("v_lshrrev_b32", vT[4], 3, vLane))
    p.emit(valu("v_lshl_add_u32", vOffX, vT[4], 11, vT[1]))
    p.emit(salu("s_lshr_b32", sHD, sW, 1), salu("s_and_b32", sQH, sW, 1))
    p.emit(salu("s_and_b32", sT0, sWG, 7), salu("s_lshr_b32", sT1, sWG, 3))
    p.emit(salu("s_and_b32", sB, sT0, 1), salu("s_lshl_b32", sB, sB, 3), salu("s_and_b32", sT2, sT1, 7), salu("s_add_u32", sB, sB, sT2))
    p.emit(salu("s_lshr_b32", sHP, sT0, 1), salu("s_lshl_b32", sHP, sHP, 2), salu("s_lshr_b32", sT2, sT1, 3), salu("s_add_u32", sHP, sHP, sT2))
    p.emit(salu("s_mul_i32", sT0, sB, 294912))
    p.emit(salu("s_lshl_b32", sT1, sW, 16), salu("s_add_u32", sXoff, sT0, sT1))
    p.emit(salu("s_add_u32", sT1, sHD, 16), salu("s_lshl_b32", sCx9, sT1, 10), salu("s_lshl_b32", sT1, sT1, 14), salu("s_add_u32", sX9off, sT0, sT1))
    p.emit(salu("s_lshl_b32", sCx, sW, 12))
    p.emit(salu("s_lshl_b32", sWoff, sQH, 16), salu("s_lshl_b32", sT1, sHP, 9), salu("s_add_u32", sWoff, sWoff, sT1),
           salu("s_lshl_b32", sT1, sHD, 8), salu("s_add_u32", sWoff, sWoff, sT1))
    p.emit(salu("s_lshl_b32", sCw, sHD, 14), salu("s_lshl_b32", sT1, sQH, 11), salu("s_add_u32", sCw, sCw, sT1), salu("s_add_u32", sCw, sCw, XBYTES))
    SK = OPT("SKEW", "6")
    if SK != "0":
        if SK == "1":
            p.emit(salu("s_lshl_b32", sT1, sB, 1), salu("s_lshl_b32", sT2, sHP, 2), salu("s_xor_b32", sT1, sT1, sT2))
        elif SK == "2":
            p.emit(salu("s_lshl_b32", sT1, sB, 1), salu("s_lshr_b32", sT2, sB, 3), salu("s_or_b32", sT1, sT1, sT2),
                   salu("s_lshl_b32", sT2, sHP, 2), salu("s_xor_b32", sT1, sT1, sT2), salu("s_lshr_b32", sT2, sHP, 2), salu("s_xor_b32", sT1, sT1, sT2))
        elif SK == "3":
            p.emit(salu("s_lshl_b32", sT2, sHP, 1), salu("s_xor_b32", sT1, sB, sT2), salu("s_and_b32", sT1, sT1, 7))
        elif SK == "6":
            p.emit(salu("s_xor_b32", sT1, sB, sHP), salu("s_mov_b32", sKs, sT1), salu("s_mov_b32", sVs, sXoff), salu("s_mov_b32", sWa, sX9off),
                   salu("s_mov_b32", sWb, sWoff))
        elif SK in ("4", "5"):
            p.emit(salu("s_xor_b32", sT1, sB, sHP), salu("s_and_b32", sT1, sT1, 3 if SK == "4" else 1))
        p.emit(salu("s_and_b32", sT1, sT1, 15), salu("s_lshl_b32", sT2, sT1, 7), salu("s_add_u32", sXoff, sXoff, sT2), salu("s_add_u32", sX9off, sX9off, sT2),
               salu("s_lshl_b32", sT2, sT1, 19), salu("s_add_u32", sWoff, sWoff, sT2))
    p.emit(scmp("s_cmp_eq_u32", sQH, 0), salu("s_cselect_b32", sEX9[0], -1, 0), salu("s_cselect_b32", sEX9[1], 0, -1))
    p.emit(salu("s_lshl_b32", sT1, sQH, 2), valu("v_or_b32", vT[3], sT1, vT[2]), valu("v_lshlrev_b32", vT[3], 1, vT[3]),
           valu("v_and_b32", vT[4], 15, vLane), valu("v_xor_b32", vT[3], vT[3], vT[4]), valu("v_lshlrev_b32", vT[3], 4, vT[3]),
           valu("v_lshl_add_u32", vOffW, vT[2], 13, vT[3]))
    p.emit(wait_lgkm0(), stamp_init())
    p.emit(srd(SRD_X, 0, 16 * 144 * 2048), srd(SRD_WQ, 3, 1024 * 8192))

def setup2(p):
    p.emit(srd(SRD_K, 1, 1 << 26), srd(SRD_V, 2, 1 << 26), srd(SRD_WS, 7, FLG + 65536))
    p.emit(srd(SRD_WO, 4, 4096 * 2048), srd(SRD_OUT, 5, 16 * 144 * 2048), srd(SRD_DBG, 6, 256))
    p.emit(valu("v_lshrrev_b32", vT[3], 1, vT[4]), valu("v_and_b32", vT[3], 3, vT[3]), valu("v_lshlrev_b32", vT[3], 1, vT[3]),
           valu("v_xor_b32", vT[3], vT[3], vT[2]), valu("v_lshlrev_b32", vT[3], 4, vT[3]))
    p.emit(valu("v_lshrrev_b32", vT[5], 2, vT[4]), valu("v_lshlrev_b32", vT[5], 10, vT[5]), valu("v_and_b32", vT[0], 3, vT[4]),
           valu("v_lshl_add_u32", vT[5], vT[0], 7, vT[5]), valu("v_add_u32", vT[5], vT[5], vT[3]))
    p.emit(salu("s_lshl_b32", sT0, sHD, 14), salu("s_add_u32", sT0, sT0, 2 * SG), valu("v_add_u32", vT[5], sT0, vT[5]))
    p.emit(salu("s_mul_i32", sT1, sQH, 8192 + 64), valu("v_xor_b32", vKa(0, 0), sT1, vT[5]))
    p.emit(valu("v_xor_b32", vKa(0, 1), 8192, vKa(0, 0)), valu("v_xor_b32", vKa(1, 0), 64, vKa(0, 0)), valu("v_xor_b32", vKa(1, 1), 64, vKa(0, 1)))
    p.emit(valu("v_lshl_add_u32", vT[3], vT[4], 7, vT[3]))
    p.emit(salu("s_lshl_b32", sT1, sQH, 13), valu("v_add_u32", vXa[0], sT1, vT[3]),
           valu("v_xor_b32", vXa[1], 64, vXa[0]), valu("v_add_u32", vXa[2], 128 * 128, vT[3]), valu("v_xor_b32", vXa[3], 64, vXa[2]))
    r_, cp = vT[0], vT[1]
    p.emit(valu("v_bfe_u32", r_, vLane, 2, 2), valu("v_and_b32", cp, 3, vLane))
    p.emit(valu("v_and_b32", vT[3], 1, vT[2]), valu("v_lshl_add_u32", vT[3], vT[3], 2, r_))
    p.emit(salu("s_lshl_b32", sT1, sQH, 1), valu("v_xor_b32", vT[5], sT1, vT[3]), valu("v_lshlrev_b32", vT[5], 5, vT[5]),
           valu("v_lshl_add_u32", vT[5], cp, 3, vT[5]), valu("v_lshl_add_u32", vT[4], vT[2], 3, r_), valu("v_lshl_add_u32", vT[5], vT[4], 8, vT[5]))
    p.emit(salu("s_lshl_b32", sT0, sHD, 14), salu("s_add_u32", sT0, sT0, XBYTES), valu("v_add_u32", vWb, sT0, vT[5]))
    p.emit(valu("v_lshrrev_b32", vT[4], 1, vT[3]), valu("v_xor_b32", vT[4], sT1, vT[4]), valu("v_lshlrev_b32", vT[4], 5, vT[4]),
           valu("v_lshl_add_u32", vT[4], cp, 3, vT[4]), valu("v_lshl_add_u32", vT[4], r_, 7, vT[4]),
           valu("v_lshl_add_u32", vT[4], vT[2], 10, vT[4]))
    p.emit(salu("s_lshl_b32", sCkv, sW, 13), salu("s_add_u32", sT0, sCkv, 4 * SG), valu("v_add_u32", vVa(0, 0), sT0, vT[4]))
    for t2 in range(4):
        if t2: p.emit(valu("v_xor_b32", vVa(t2, 0), t2 << 5, vVa(0, 0)))
        p.emit(valu("v_xor_b32", vVa(t2, 1), 8192, vVa(t2, 0)))
    p.emit(salu("s_lshl_b32", sT0, sB, 5), salu("s_lshl_b32", sT1, sHP, 1), salu("s_add_u32", sT0, sT0, sT1), salu("s_add_u32", sT0, sT0, sHD))
    p.emit(salu("s_lshl_b32", sKVbase, sT0, 17), salu("s_lshl_b32", sT1, sQH, 13), salu("s_add_u32", sKVbase, sKVbase, sT1),
           salu("s_add_u32", sKVend, sKVbase, 8 * 16384))
    p.emit(salu("s_lshl_b32", sT0, sT0, 2), salu("s_add_u32", sT1, sT0, sQH), salu("s_mul_i32", sOb0, sT1, 9216),
           salu("s_xor_b32", sT1, sT1, 1), salu("s_mul_i32", sOb1, sT1, 9216))
    p.emit(salu("s_and_b32", sT0, sWG, 7), salu("s_lshr_b32", sT1, sWG, 3))
    p.emit(salu("s_and_b32", sB2, sT0, 3), salu("s_lshl_b32", sB2, sB2, 2), salu("s_and_b32", sT2, sT1, 3), salu("s_add_u32", sB2, sB2, sT2))
    p.emit(salu("s_lshr_b32", sCT, sT0, 2), salu("s_lshl_b32", sCT, sCT, 3), salu("s_lshr_b32", sT2, sT1, 2), salu("s_add_u32", sCT, sCT, sT2))
    if OPT("CTX"): p.emit(salu("s_xor_b32", sCT, sCT, int(OPT("CTX"))))
    p.emit(salu("s_lshl_b32", sTG, sWG, 15), salu("s_add_u32", sTG, sTG, sCkv))
    p.emit(valu("v_add_u32", vPW, sCkv, vL16))
    p.emit(valu("v_bfe_u32", vT[0], vLane, 3, 2), valu("v_and_b32", vT[1], 2, vT[0]), valu("v_and_b32", vT[3], 7, vLane),
           valu("v_xor_b32", vT[1], vT[1], vT[3]), valu("v_lshlrev_b32", vT[1], 4, vT[1]), valu("v_lshl_add_u32", vT[1], vT[0], 8, vT[1]),
           valu("v_lshrrev_b32", vT[0], 5, vLane), valu("v_lshl_add_u32", vOffKV, vT[0], 7, vT[1]), valu("v_xor_b32", vOffKV1, 64, vOffKV))
    if OPT("ROT", "1") == "1": p.emit(salu("s_add_u32", sRot, sT1, sWG), salu("s_and_b32", sRot, sRot, 7), salu("s_lshl_b32", sRot, sRot, 14))
    else: p.emit(salu("s_mov_b32", sRot, 0))
    p.emit(salu("s_mov_b32", sSC, CSCALE), salu("s_mov_b32", sSlotR, 0), salu("s_mov_b32", sSlotW, 2 * ASLOT), salu("s_mov_b32", sC1, ASLOT))
    p.emit(valu("v_mov_b32", V(203), 0), salu("s_mov_b32", sSC2[0], CSCALE), salu("s_mov_b32", sSC2[1], CSCALE))

def dma_batchA(st):
    reg = regA(st); tag = ("A", st)
    g = []
    rows = [0, 4, 16, 20, 32, 36, 48, 52]
    def wq(i):
        pi = rows[i] // 4
        m = salu("s_add_u32", M0, sSlotW, sCw) if i == 0 else salu("s_add_u32", M0, M0, (pi - rows[i - 1] // 4) * 1024)
        return [m, salu("s_add_u32", sSO, sWoff, rows[i] * 8192), dma(vOffW, SRD_WQ, sSO, flags=OPT("WQF"), tag=tag, region=reg)]
    def xx(i):
        m = salu("s_add_u32", M0, sSlotW, sCx) if i == 0 else salu("s_add_u32", M0, M0, 1024)
        return [m, salu("s_add_u32", sSO, sXoff, i * 16384), dma(vOffX, SRD_X, sSO, flags=OPT("XF"), tag=tag, region=reg)]
    for i in range(4): g.append(xx(i))
    g.append([salu("s_add_u32", M0, sSlotW, sCx9),
              [salu("s_mov_b64", EXEC, sEX9), dma(vOffX, SRD_X, sX9off, flags=OPT("XF"), tag=tag, region=reg), salu("s_mov_b64", EXEC, -1)]])
    for i in range(8): g.append(wq(i))
    dl = (st ^ (st + 1)) & 15
    adv = [salu("s_xor_b32", sXoff, sXoff, dl * 128), salu("s_xor_b32", sX9off, sX9off, dl * 128), salu("s_xor_b32", sWoff, sWoff, dl * 64 * 8192)]
    if OPT("SKEW", "6") == "6":
        adv = [[scmp("s_cmp_gt_u32", sKs, st), salu("s_cselect_b32", sDk, st, st + 1)], salu("s_lshl_b32", sDv, sDk, 7),
               salu("s_add_u32", sXoff, sVs, sDv), salu("s_add_u32", sX9off, sWa, sDv), salu("s_lshl_b32", sDv, sDk, 19), salu("s_add_u32", sWoff, sWb, sDv)]
    return g, adv

def entry_src(n):
    if n == 0: return SRD_K, 0
    if n == 15: return SRD_V, 7
    return (SRD_K, (n + 1) // 2) if n % 2 else (SRD_V, n // 2 - 1)

def kv_batch(n, srd_=None, soff=None, ldsbase=None):
    const = 0
    if srd_ is None:
        srd_, ch = entry_src(n); soff = sKVbase; const = ch * 16384; ldsbase = sigB(n) * SG
    g = []
    KVCL = int(OPT("KVCL", "1"))
    for i in range(8):
        grp = []
        if i % 4 == 0:
            m = salu("s_add_u32", M0, sCkv, ldsbase) if i == 0 else salu("s_add_u32", M0, M0, 4096)
            grp += [m, salu("s_add_u32", sSO, soff, const + i * 1024), salu("s_xor_b32", sSO, sSO, sRot)]
        grp.append(dma(vOffKV1 if i % 2 else vOffKV, srd_, sSO, (i % 4) * 1024, flags=KVFLAGS, tag=("B", n), region=regBw(n)))
        if i % KVCL == 0: g.append(grp)
        else: g[-1] += grp
    return g

def pf_load(n, i):
    srd_, ch = entry_src(n)
    return [salu("s_add_u32", sSP, sKVbase, ch * 16384 + (i >> 2) * 4096), salu("s_xor_b32", sSP, sSP, sRot),
            vload(PFR[n][4 * i:4 * i + 4], vOffKV1 if i % 2 else vOffKV, srd_, sSP, (i % 4) * 1024, flags=KVFLAGS)]
def pf_write(n, tmp):
    base = sigB(n) * SG
    o = [valu("v_add_u32", tmp, base, vPW)] if base else []
    ad = tmp if base else vPW
    return o + [ds_write("ds_write_b128", ad, PFR[n][4 * i:4 * i + 4], i * 1024, regBw(n)) for i in range(8)]

def blockA(t, buf, rev, s_first, zero=False):
    js = [0, 1, 2, 3] + ([4] if t in NINTH_T else [])
    if rev: js = js[::-1]
    out = []; s = s_first
    for j in js:
        for i, k in enumerate((s, 1 - s)): out.append(mfma(accA(t, j), Af(t, k), Bf(buf, j, k), 0 if (zero and i == 0) else None))
        s = 1 - s
    return out, s

XINL = 22
def epochA(e, groups, adv, g0, g1, endtags, extra=None, ndum=0):
    buf = e % 2
    mf = []; start = {}; end = {}
    s = 0
    for key, t, b in [("L6", 6, 1 - buf), ("L7", 7, 1 - buf)] + [(t, t, buf) for t in range(6)]:
        start[key] = len(mf)
        blk, s = blockA(t, b, rev=(t % 2 == 1), s_first=s, zero=(e == 0 or (e == 1 and t >= 6)))
        mf += blk; end[key] = len(mf) - 1
    n = len(mf)
    reg = regA(e)
    def rdA(t):
        tmp = vWb if t == 0 else vT[t % 2]
        o = [] if t == 0 else [valu("v_xor_b32", tmp, t << 5, vWb)]
        return o + [ds_read("ds_read_b64_tr_b16", Af(t, s_)[2 * h:2 * h + 2], tmp, s_ * 8192 + h * 1024, reg) for s_ in range(2) for h in range(2)]
    def rdB(j, s_):
        ad = vXa[s_] if j < 4 else vXa[2 + s_]
        return ds_read("ds_read_b128", Bf(buf, j, s_), ad, (j * 2048) if j < 4 else 0, reg)
    a0 = rdA(0)
    first = [rdB(0, 0), a0[0], a0[1], rdB(0, 1), a0[2], a0[3], rdB(1, 1), rdB(1, 0), rdB(2, 0), rdB(2, 1), rdB(3, 1), rdB(3, 0), rdB(4, 0), rdB(4, 1)]
    lds = spread(first, -1, 15, slack=1)
    lds += spread(rdA(1), 15, 20, slack=1)
    prev = {2: "L6", 3: "L7", 4: 0, 5: 1, 6: 2, 7: 3}
    pos = 20
    for t in range(2, 8):
        lo = max(end[prev[t]], pos)
        lds += spread(rdA(t), lo, lo + 6, slack=1); pos = lo + 6
        assert t >= 6 or pos + 1 <= start[t] - 4, (t, pos, start[t])
    if ndum:
        lds += spread([ds_read("ds_read_b32", V(161 + i), vL16) for i in range(ndum)], pos + 1, pos + 1 + ndum // 2, slack=1)
    fl = {"lds": lds, "end": end_stream(n, endtags, lg=ndum)}
    vm = vm_fillers(groups, g0, g1) if groups else []
    vm += [F(x, g1, n - 6) for x in adv]
    if e < 15:
        sel = F([scmp("s_cmp_eq_u32", sSlotR, 2 * ASLOT), salu("s_cselect_b32", sDelta, -2 * ASLOT, sC1)], g1, n - 6)
        vm += [F(salu("s_mov_b32", sSlotW, sSlotR), g1, n - 6), sel, F(salu("s_add_u32", sSlotR, sSlotR, sDelta), g1, n - 5)]
        lds += [F(valu("v_add_u32", r, sDelta, r), pos + 1, n - 1, [sel]) for r in [vWb] + vXa]
    fl["vm"] = vm
    if extra: fl.update(extra(start, end, n))
    out = interleave(mf, fl)
    if e == 0:
        lead = set(id(x) for x in mf[:16])
        out = [x for x in out if id(x) not in lead]
    return out

def split_at_mfma(ins, k):
    idx = [i for i, x in enumerate(ins) if x.kind == "mfma"][k]
    return ins[:idx], ins[idx:]

def q_convert(j, s, pk=False):
    t0, t1 = 2 * s, 2 * s + 1
    a0, a1, q = accA(t0, j), accA(t1, j), Qf(j, s)
    o = []
    for a_ in (a0, a1):
        if pk:
            for r in (0, 2): o.append(valu("v_pk_mul_f32", a_[r:r + 2], a_[r:r + 2], sSC2))
        else:
            for r in range(4): o.append(valu("v_mul_f32", a_[r], sSC, a_[r]))
    o += [valu("v_cvt_pk_bf16_f32", q[0], a0[0], a0[1]), valu("v_cvt_pk_bf16_f32", q[2], a1[0], a1[1]),
          valu("v_cvt_pk_bf16_f32", q[1], a0[2], a0[3]), valu("v_cvt_pk_bf16_f32", q[3], a1[2], a1[3])]
    sw1 = [valu("v_permlane32_swap_b32", q[0], q[2]), valu("v_permlane32_swap_b32", q[1], q[3])]
    sw2 = [valu("v_permlane16_swap_b32", q[0], q[2]), valu("v_permlane16_swap_b32", q[1], q[3])]
    return o, sw1, sw2
def q_convert_seq(items):
    out = []; pend1 = pend2 = None
    for it in items:
        o, s1, s2 = q_convert(*it)
        out += o[:len(o) // 2]
        if pend2: out += pend2
        pend2 = None
        out += o[len(o) // 2:]
        if pend1: out += pend1[0]; pend2 = pend1[1]
        pend1 = (s1, s2)
    if pend2: out += pend2
    out += pend1[0] + pend1[1]
    return out

def phaseA(p):
    p.emit(salu("s_mov_b32", sSlotW, 0))
    g, adv = dma_batchA(0)
    p.emit(g, adv)
    if OPT("CW", "1") == "1":
        p.emit(raw("s_getpc_b64 s[16:17]", wr=[S(16, 2)]), label("mha_pc"), salu("s_and_b32", S(17), S(17), 0xffff),
               raw("s_mov_b32 s18, mha_code_end-mha_pc", wr=[S(18)]), salu("s_mov_b32", S(19), 0x20000))
        p.emit(salu("s_lshr_b32", sT0, sWG, 3), salu("s_lshl_b32", sT0, sT0, 2), salu("s_add_u32", sT0, sT0, sW), salu("s_lshl_b32", sT0, sT0, 7),
               valu("v_lshlrev_b32", vT[0], 14, vLane), vload(V(200), vT[0], S(16, 4), sT0))
    if OPT("TXW") == "1":
        p.emit(salu("s_lshl_b32", sT0, sWG, 2), salu("s_add_u32", sT0, sT0, sW), salu("s_lshl_b32", sT0, sT0, 13),
               valu("v_lshlrev_b32", vT[0], 7, vLane), vload(V(201), vT[0], SRD_WQ, sT0), vload(V(202), vT[0], SRD_X, sT0))
    q = Prog("tmp"); setup2(q)
    g, adv = dma_batchA(1)
    rest = list(q.static); k = len(rest) // (len(g) + 1)
    p.emit(salu("s_mov_b32", sSlotW, ASLOT))
    for i, grp in enumerate(g):
        p.emit(rest[i * k:(i + 1) * k], grp)
    p.emit(adv, rest[len(g) * k:])
    p.emit(salu("s_lshl_b32", sT0, sB2, 4), salu("s_add_u32", sT0, sT0, sCT), salu("s_lshl_b32", sT0, sT0, 8), salu("s_add_u32", sFl, sT0, FLG),
           scmp("s_cmp_eq_u32", sW, 0), salu("s_cselect_b32", sT0, sFl, OOB), salu("s_mov_b64", EXEC, 1),
           vstore(V(203), V(203), SRD_WS, sT0, flags="sc0 sc1", tag="ZF"), salu("s_mov_b64", EXEC, -1))
    p.emit(wait_vm([("A", 0)]), barrier(), stamp())
    pf = [pf_load(n, i) for n in PARK[::-1] + list(range(1, NPF + 1)) for i in range(8)]
    if OPT("TWO", "1") == "1":
        tw = [[salu("s_add_u32", sSP, sTG, (i >> 2) * 4096), vload(V(160 + 4 * i, 4), vL16, SRD_WO, sSP, (i & 3) * 1024)] for i in range(8)]
        m = len(pf) + len(tw); mix = []
        if OPT("TWP", "mix") == "mix":
            for k in range(m):
                mix.append(tw.pop(0) if (tw and ((k + 1) * 8 // m > k * 8 // m)) else pf.pop(0))
        else: mix = tw + pf
        pf = mix
    if OPT("PRE", "0") == "1":
        pre = []
        for s_ in range(4):
            for j in range(4):
                pre.append([salu("s_lshl_b32", sSP, sQH, 12), salu("s_add_u32", sSP, sSP, sOb0 if s_ % 2 == 0 else sOb1),
                            salu("s_add_u32", sSP, sSP, (s_ >> 1) * 18432), vstore(V(240, 4), vL16, SRD_WS, sSP, j * 1024, flags=OSF)])
        for i in range(2): pre.append([salu("s_add_u32", sSP, sOb0, 8192 + i * 18432), vstore(V(240, 4), vL16, SRD_WS, sSP, 0, flags=OSF)])
        m = len(pf) + len(pre); mix = []; np_ = len(pre)
        for k in range(m):
            mix.append(pre.pop(0) if (pre and ((k + 1) * np_ // m > k * np_ // m)) else pf.pop(0))
        pf = mix
    PF0 = int(OPT("PF0", "1"))
    pos = [PF0 * 72 + (14 - PF0) * 72 * (2 * k + 1) // (2 * len(pf)) for k in range(len(pf))]
    PFC = int(OPT("PFC", "0"))
    if PFC:
        eps = [e for e in range(PF0, 14) if (e - PF0) % PFC == 0]
        per = -(-len(pf) // len(eps))
        pos = [eps[k // per] * 72 + int(OPT("PFP", "50")) + 2 * (k % per) for k in range(len(pf))]
    for e in range(14):
        g, adv = dma_batchA(e + 2)
        def extra(start, end, n):
            o = []
            for k, x in enumerate(pf):
                if pos[k] // 72 == e:
                    t = min(max(pos[k] % 72, 3), n - 6)
                    o += vm_fillers([x], t, t)
            if e == 2:
                o = [F([wait_vm(["ZF"]), salu("s_lshl_b32", sT0, sB2, 4), scmp("s_cmp_eq_u32", sW, 0), salu("s_cselect_b32", sT0, sT0, OOB),
                        valu("v_mov_b32", V(204), 0), valu("v_mov_b32", V(205), 1), salu("s_mov_b64", EXEC, 1),
                        vstore(V(205), V(204), SRD_DBG, sT0, flags="sc1", op="buffer_atomic_add"), salu("s_mov_b64", EXEC, -1)], 40, 44)] + o
                o.sort(key=lambda f: f.e)
            return {"pf": o} if o else {}
        p.emit(epochA(e, g, adv, int(OPT("AG0", "2")) + (14 if e == 0 else 0), int(OPT("AG1", "62")), [("A", e + 1)], extra))
    p.emit(epochA(14, kv_batch(0), [], 4, 60, [("A", 15)]))
    def extra15(start, end, n):
        d = {}
        w = []
        for m in (1, 2):
            if m <= NPF: w += pf_write(m, vT[2 + m])
        if w: d["pw"] = spread(w, 16, 60, slack=2)
        cv = [F(x, end[1] + 4, n - 1) for x in q_convert_seq([(4, 0)] + [(j, 0) for j in range(4)])]
        d["cv"] = cv
        return d
    g = []
    for m in (1, 2):
        if m > NPF: g += kv_batch(m)
    p.emit(epochA(15, g, [], 4, 64, [], extra15))
    mf = []; s = 0
    for t in (6, 7):
        blk, s = blockA(t, 1, rev=(t % 2 == 1), s_first=s); mf += blk
    p.emit(salu("s_lshl_b32", sT0, sB, 4), valu("v_mov_b32", V(8), 0), salu("s_mov_b64", EXEC, 1),
           vload(V(9), V(8), SRD_DBG, sT0, flags="sc1"), salu("s_mov_b64", EXEC, -1))
    fl = {}
    if NPF >= 3: fl["pw"] = spread(pf_write(3, vT[2]), 0, 15, slack=1)
    else: fl["vm"] = vm_fillers(kv_batch(3), 2, 14, slack=0)
    fl["cv"] = [F(x, 2, 15) for x in q_convert_seq([(4, 2)] + [(j, 1) for j in range(4)])]
    p.emit(interleave(mf, fl))
    reg = (gran(SG, SG), "X", True)
    p.emit(valu("v_xor_b32", vT[0], SG + 8192, vPW))
    p.emit(ds_write("ds_write_b128", vT[0], Qf(4, 0), 0, reg), ds_write("ds_write_b128", vT[0], Qf(4, 2), 1024, reg))
    p.emit(q_convert_seq([(j, s_, True) for j in range(4) for s_ in (2, 3)]))
    p.emit(valu("v_readfirstlane_b32", sT1, V(9)), scmp("s_cmp_lt_u32", sT1, 16), raw("s_cbranch_scc1 mha_gate", "branch"), label("mha_gate_ok"))
    p.emit(stamp(), wait_both([("B", 0)]), barrier(), stamp())
    reg = reg + ("own",)
    p.emit(ds_read("ds_read_b128", Qf(4, 1), vPW, SG, reg), ds_read("ds_read_b128", Qf(4, 3), vPW, SG + 1024, reg))
    if NPF >= 4: p.emit(pf_write(4, vT[2]))

def blockQ(kt, czero=False):
    js = [0, 1, 2, 3] + ([4] if kt < 2 else [])
    out = []; last = {}; first = {}; fwd = True
    for j in js:
        ss = [0, 1, 2, 3] if fwd else [3, 2, 1, 0]
        first[j] = len(out)
        for i, s in enumerate(ss):
            c = None if i else (0 if czero else Cb(j))
            out.append(mfma(St(kt, j), Kf(kt, s), Qf(j, s), c))
        last[j] = len(out) - 1
        fwd = not fwd
    return out, first, last

def blockP(b, buf, zero=False):
    out = []
    for t in (2 * b, 2 * b + 1):
        nin = mfma(Oa(t, 4), Vf(t, 0), Pf(buf, 0, 4), 0 if zero else None)
        if t % 2: out.append(nin)
        u = 0
        for j in ((0, 1, 2, 3) if t % 2 == 0 else (3, 2, 1, 0)):
            for i, k in enumerate((u, 1 - u)): out.append(mfma(Oa(t, j), Vf(t, k), Pf(buf, k, j), 0 if (zero and i == 0) else None))
            u = 1 - u
        if t % 2 == 0: out.append(nin)
    return out

def softmax_tile(kt, j, buf, e, d, ex, rest, sub=False):
    s = St(kt, j); pf = Pf(buf, kt // 2, j)[2 * (kt % 2):2 * (kt % 2) + 2]
    E = []
    for r in range(4):
        ins = [valu("v_exp_f32", s[r], s[r])]
        if sub: ins = [valu("v_add_f32", s[r], s[r], Cb(j)[0])] + ins
        E.append(F(ins, e, d))
    ex += E
    rest += [F(valu("v_add_f32", vL(j), vL(j), s[0]), e, d, [E[1]]), F(valu("v_cvt_pk_bf16_f32", pf[0], s[0], s[1]), e, d, [E[2]]),
             F(valu("v_add_f32", vL(j), vL(j), s[1]), e, d), F(valu("v_add_f32", vL(j), vL(j), s[2]), e, d, [E[3]]),
             F(valu("v_cvt_pk_bf16_f32", pf[1], s[2], s[3]), e, d), F(valu("v_add_f32", vL(j), vL(j), s[3]), e, d)]

def rdK(kt, n):
    return [ds_read("ds_read_b128", Kf(kt, s), vKa(s & 1, kt >> 1), (kt & 1) * 4096 + (s >> 1) * 512, regB(n)) for s in range(4)]
def rdV(t, n):
    return [ds_read("ds_read_b64_tr_b16", Vf(t, u)[2 * h:2 * h + 2], vVa(t & 3, u), h * 4096 + (t >> 2) * 512, regB(n))
            for u in range(2) for h in range(2)]

def rowmax(j):
    s = St(0, j); m, t = vT[2 * (j % 2)], vT[1 + 2 * (j % 2)]
    o = [valu("v_max3_f32", m, s[0], s[1], s[2]), valu("v_max3_f32", m, m, s[3], vMin(j)),
         valu("v_mov_b32", t, m), valu("v_permlane32_swap_b32", m, t), valu("v_max_f32", m, m, t),
         valu("v_mov_b32", t, m), valu("v_permlane16_swap_b32", m, t), valu("v_max_f32", m, m, t)]
    o += [valu("v_sub_f32", Cb(j)[r], 0, m) for r in range(4)]
    return o

def prologueB(p):
    for j in range(5): p.emit(valu("v_mov_b32", vMin(j), 0xff800000))
    p.emit(salu("s_mov_b32", sRetry, 0))
    p.emit(label("mha_attn_entry"))
    KALT[0] = True
    p.emit(rdK(0, 0), rdK(1, 0))
    for j in range(5): p.emit(valu("v_mov_b32", vL(j), 0))
    mf = []; st = {}; fi = {}; la = {}
    for kt in range(4):
        q, f_, l_ = blockQ(kt, czero=(kt == 0))
        st[kt] = len(mf); fi[kt] = {j: v + len(mf) for j, v in f_.items()}; la[kt] = {j: v + len(mf) for j, v in l_.items()}
        mf += q
    n = len(mf)
    mx = {}
    m0_, m1_ = [], []
    for j in range(5):
        lst = [F(x, la[0][j] + 3, fi[1][j] - 2) for x in rowmax(j)]
        (m0_ if j % 2 == 0 else m1_).extend(lst); mx[j] = lst[-1]
    ex, rest = [], []
    for j in range(5):
        k = len(ex)
        softmax_tile(0, j, 0, la[0][j] + 3, (fi[2][j] - 1) if j < 4 else n - 1, ex, rest, sub=True)
        ex[k].deps.append(mx[j])
    for j in range(5): softmax_tile(1, j, 0, la[1][j] + 3, (fi[3][j] - 1) if j < 4 else n - 1, ex, rest)
    for j in range(4): softmax_tile(2, j, 0, la[2][j] + 3, n - 1, ex, rest)
    lds = spread(rdK(2, 0), st[1] - 1, st[1] + 8) + spread(rdK(3, 0), st[2] - 1, st[2] + 6)
    lds += [F(valu("v_add_u32", vKa(s0, u), SG, vKa(s0, u)), st[2] + 8, n - 1) for u in range(2) for s0 in range(2)]
    vm = []
    KALT[0] = False
    tags = [("B", m) for m in (1, 2) if m > NPF]
    if NPF < 4: vm += [F(wait_lgkm0(), 21, 21)] + vm_fillers(kv_batch(4), 24, n - 8)
    fl = {"m0": m0_, "m1": m1_, "ex": ex, "rest": rest, "lds": lds, "vm": vm}
    p.emit(interleave(mf, fl))
    p.emit(stamp(), wait_both(tags), barrier(), stamp())

def lsum(j):
    l, t = vL(j), vT[2 + j % 2]
    return [valu("v_mov_b32", t, l), valu("v_permlane32_swap_b32", l, t), valu("v_add_f32", l, l, t),
            valu("v_mov_b32", t, l), valu("v_permlane16_swap_b32", l, t), valu("v_add_f32", l, l, t)]

_cvk = [0]
def o_convert(s, j, pk=False):
    k = _cvk[0]; _cvk[0] += 1
    T = V(16 + (k % 4) * 8, 8); Pk = V(56 + (k % 8) * 4, 4)
    o = []
    for h in range(2):
        for r in range(4): o.append(valu("v_accvgpr_read_b32", T[4 * h + r], Oa(2 * s + h, j)[r]))
    if pk:
        lp = V(148 + (j & ~1), 2)
        for r in range(0, 8, 2): o.append(valu("v_pk_mul_f32", T[r:r + 2], T[r:r + 2], lp, mods=" op_sel:[0,1] op_sel_hi:[1,1]" if j & 1 else " op_sel_hi:[1,0]"))
    else:
        for r in range(8): o.append(valu("v_mul_f32", T[r], T[r], vL(j)))
    for r in range(4): o.append(valu("v_cvt_pk_bf16_f32", Pk[r], T[2 * r], T[2 * r + 1]))
    o.append(vstore(Pk, vL16, SRD_WS, sSP, j * 1024, flags=OSF, tag="OST"))
    return o
def o_group(s, pk=False):
    o = [salu("s_lshl_b32", sSP, sQH, 12), salu("s_add_u32", sSP, sSP, sOb0 if s % 2 == 0 else sOb1)]
    if s >> 1: o.append(salu("s_add_u32", sSP, sSP, 18432))
    for j in range(4): o += o_convert(s, j, pk)
    return o

LMAX = f32(2.0 ** 24)
MSG = 1 * SG
FLAGS_LDS = MSG + 6144
regM = (gran(MSG, SG), "M", True)

def b_plan():
    ents = [m for m in range(6, 16) if m not in PARK]
    pieces = [(m, g) for m in ents for g in kv_batch(m)]
    span = float(OPT("BSPAN", "5.5"))
    plan = {e: [] for e in range(8)}
    dt = span / len(pieces)
    free = lambda m: (m - 4) // 2
    need = lambda m: 7 if m == 15 else (m - 1) // 2
    ts = []; t = 1.0
    for m, g in pieces:
        t = max(t, float(free(m))); ts.append(t); t += dt
    marg = float(OPT("BMARG", "0.3"))
    for k in range(len(ts) - 1, -1, -1):
        ts[k] = min(ts[k], need(pieces[k][0]) - marg)
        if k + 1 < len(ts): ts[k] = min(ts[k], ts[k + 1] - 0.06)
        assert ts[k] >= free(pieces[k][0]) - 1e-9, (k, ts[k])
    for t, (m, g) in zip(ts, pieces):
        plan[int(t)].append(((t - int(t)) * 0.93, g, m))
    return plan

def epochB(e):
    final = (e == 7)
    bufc, bufn = e % 2, (e + 1) % 2
    nK, nV = 2 * e + 1, (2 * e + 2 if e < 7 else 15)
    mf = []; st = {}; en = {}; fi = {}; la = {}
    if e > 0:
        st["L"] = 0; mf += blockP(3, bufn, zero=(e == 1)); en["L"] = len(mf) - 1
    VALT[0] = final
    for b in range(4):
        if not final:
            q, f_, l_ = blockQ(b)
            st["Q%d" % b] = len(mf); fi[b] = {j: v + len(mf) for j, v in f_.items()}; la[b] = {j: v + len(mf) for j, v in l_.items()}
            mf += q; en["Q%d" % b] = len(mf) - 1
        if b < 3 or final:
            st["P%d" % b] = len(mf); mf += blockP(b, bufc, zero=(e == 0)); en["P%d" % b] = len(mf) - 1
    n = len(mf)
    ex, rest = [], []
    for j in range(4): softmax_tile(3, j, bufc, -1, st["P0"] - 2, ex, rest)
    fl = {"ex": ex, "rest": rest}
    if not final:
        for j in range(5): softmax_tile(0, j, bufn, la[0][j] + 3, (fi[2][j] - 1) if j < 4 else n - 1, ex, rest)
        for j in range(5): softmax_tile(1, j, bufn, la[1][j] + 3, (fi[3][j] - 1) if j < 4 else n - 1, ex, rest)
        for j in range(4): softmax_tile(2, j, bufn, la[2][j] + 3, n - 1, ex, rest)
        vm = []
        if e == 0: mine = [(0.02 + 0.11 * i, g, 5) for i, g in enumerate(kv_batch(5))]
        else: mine = b_plan()[e]
        for k, (fr, g, m) in enumerate(mine):
            if k == 0 and len(g) == 1:
                pass
            if OPT("BTH", "5"): g.insert(len(g) - 1, raw("s_waitcnt vmcnt(%s)" % OPT("BTH", "5"), "salu"))
            t = max(3, int(fr * n))
            vm += vm_fillers([g], t, t)
        if e == 6:
            vm += vm_fillers(wo_batch(0) + wo_batch(1), int(0.48 * n), n - 8)
        fl["vm"] = vm
        if e == 5: fl["wa"] = [F(x, 10, n - 1) for x in d_addr_setup()]
        for m in PARK:
            if (m - 4) // 2 == e: fl["pw"] = spread(pf_write(m, vT[0]), 20, n - 30)
        lds = []
        last = {}
        for b in range(4):
            lo = -1 if b == 0 else en["Q%d" % (b - 1)]
            hi = st["Q%d" % b]
            kk = spread(rdK(b, nK), lo, max(lo, min(lo + 8, hi - 9)), slack=1)
            pb = ("P%d" % (b - 1)) if b else ("L" if e else None)
            lo0 = (st[pb] + 8) if pb else 0
            lo1 = en[pb] if pb else 4
            lo0 = max(lo0, kk[-1].e)
            v0 = spread(rdV(2 * b, nV), lo0, max(lo0 + 4, lo1), slack=1)
            v1 = spread(rdV(2 * b + 1, nV), lo1, lo1 + 7, slack=1)
            lds += kk + v0 + v1
            last["K%d" % b] = kk[-1]; last["V%d" % (2 * b)] = v0[-1]; last["V%d" % (2 * b + 1)] = v1[-1]
        fl["lds"] = lds
        dk = (sigB(nK + 2) - sigB(nK)) * SG
        dv = (sigB(nV + 2 if e < 6 else 15) - sigB(nV)) * SG
        ad = []
        ad += [F(valu("v_add_u32", vKa(s0, 0), dk, vKa(s0, 0)), 0, n - 1, [last["K1"]]) for s0 in range(2)]
        ad += [F(valu("v_add_u32", vVa(t, u), dv, vVa(t, u)), 0, n - 1, [last["V5"]]) for t in (0, 1) for u in range(2)]
        ad += [F(valu("v_add_u32", vKa(s0, 1), dk, vKa(s0, 1)), 0, n - 1, [last["K3"]]) for s0 in range(2)]
        ad += [F(valu("v_add_u32", vVa(t, u), dv, vVa(t, u)), 0, n - 1, [last["V%d" % (4 + t)]]) for t in (2, 3) for u in range(2)]
        fl["ad"] = ad
        need = (2 * e + 3, 2 * e + 4) if e < 6 else (15,)
        tags = [("B", m) for m in need if m > NPF and m not in PARK]
        fl["end"] = end_stream(n, tags)
        return interleave(mf, fl, margin=16)
    lds = spread(rdV(0, nV) + rdV(1, nV), -1, st["P0"] - 6)
    for b in (1, 2, 3):
        lo = en["L"] if b == 1 else en["P%d" % (b - 2)]
        lds += spread(rdV(2 * b, nV) + rdV(2 * b + 1, nV), lo, st["P%d" % b] - 6)
    fl["lds"] = lds
    R0 = rdW(0); R1 = rdW(1)
    r0 = [F(wait_vm([("W", 0)]), 4, 6)] + spread(R0, 6, 30) + [F(wait_vm([("W", 1)]), 30, 32)] + spread(R1, 32, 56)
    w0 = F(wait_lgkm0(), 38, 39, [r0[len(R0)]]); w1 = F(wait_lgkm0(), 64, 65, [r0[-1]])
    fl["wr"] = r0
    fl["vm"] = vm_fillers(wo_batch(2), 8, 36) + [w0] + vm_fillers(wo_batch(3), 46, 64) + [w1] + vm_fillers(wo_batch(4), 72, n - 2, slack=0)
    epi = []
    for j in range(5): epi += [F(x, st["P0"] - 2, n - 1, [rest[-1]]) for x in lsum(j)]
    chk = [valu("v_add_f32", vT[2], vL(0), vL(1)), valu("v_add_f32", vT[3], vL(2), vL(3)), valu("v_add_f32", vT[2], vT[2], vL(4)),
           valu("v_add_f32", vT[2], vT[2], vT[3]), salu("s_mov_b32", sT2, LMAX),
           I("v_cmp_nge_f32 vcc, %s, %s" % (sT2, vT[2]), "valu", regs_of(sT2, vT[2]), regs_of(VCC)),
           valu("v_mov_b32", Cb(4)[1], vL(4)), valu("v_xor_b32", vT[0], MSG + 8192, vPW),
           I("s_or_b32 %s, vcc_lo, vcc_hi" % sT2, "salu", regs_of(VCC), regs_of(sT2)),
           valu("v_mov_b32", vT[2], sT2), salu("s_lshl_b32", sT3, sW, 2), salu("s_add_u32", sT3, sT3, FLAGS_LDS),
           valu("v_and_b32", vT[3], 3, vLane), valu("v_lshlrev_b32", vT[3], 13, vT[3]), valu("v_add_u32", vT[3], sT3, vT[3]),
           ds_write("ds_write_b32", vT[3], vT[2], 0, regM), ds_write("ds_write_b64", vT[0], Cb(4)[0:2], 4096, regM)]
    chk += [valu("v_rcp_f32", vL(j), vL(j)) for j in range(4)]
    epi += [F(x, st["P0"], n - 1) for x in chk]
    epi += [F(x, en["P0"] + 4, n - 1) for x in o_group(0)]
    epi += [F(ds_write("ds_write_b128", vT[0], Oa(t, 4), i * 1024, regM), en["P1"] + 4, n - 1) for i, t in enumerate((2, 3))]
    epi += [F(x, en["P1"] + 4, n - 1) for x in o_group(1)]
    fl["epi"] = epi
    return interleave(mf, fl)

def epilogueB(p):
    p.emit(stamp())
    g2 = o_group(2, True)
    p.emit(g2[:20])
    for i, t in ((2, 6), (3, 7)): p.emit(ds_write("ds_write_b128", vT[0], Oa(t, 4), i * 1024, regM))
    p.emit(salu("s_add_u32", sT3, sCkv, FLAGS_LDS), valu("v_mov_b32", vT[3], sT3), valu("v_add_u32", vT[1], MSG, vPW))
    p.emit(g2[20:])
    p.emit(wait_lgkm0(), barrier())
    X = V(128, 16); ML = V(48, 2); FL = V(52, 4)
    own = regM + ("own",)
    p.emit(ds_read("ds_read_b128", FL, vT[3], 0, own))
    p.emit(ds_read("ds_read_b64", ML, vT[1], 4096, own))
    for i in range(4): p.emit(ds_read("ds_read_b128", X[4 * i:4 * i + 4], vT[1], i * 1024, own))
    p.emit(o_group(3, True))
    p.emit(valu("v_or3_b32", FL[0], FL[0], FL[1], FL[2]), valu("v_or_b32", FL[0], FL[0], FL[3]), valu("v_readfirstlane_b32", sT2, FL[0]))
    na, la_, nb, lb = Cb(4)[0], vL(4), ML[0], ML[1]
    mn, fa, fb = vT[2], vT[3], vT[4]
    p.emit(valu("v_min_f32", mn, na, nb), valu("v_sub_f32", fa, mn, na), valu("v_sub_f32", fb, mn, nb),
           valu("v_exp_f32", fa, fa), valu("v_exp_f32", fb, fb))
    p.emit(salu("s_andn2_b32", sT2, sT2, sRetry), scmp("s_cmp_lg_u32", sT2, 0), raw("s_cbranch_scc1 mha_fallback", "branch"))
    p.emit(valu("v_mul_f32", la_, la_, fa), valu("v_fmac_f32", la_, lb, fb),
           valu("v_rcp_f32", la_, la_), salu("s_add_u32", sSP, sOb0, 8192), valu("v_mul_f32", fa, fa, la_), valu("v_mul_f32", fb, fb, la_))
    for i, s in enumerate((0, 2)):
        T = V(96 + i * 8, 8); Pk = V(112 + i * 4, 4)
        for h in range(2):
            for r in range(4): p.emit(valu("v_accvgpr_read_b32", T[4 * h + r], Oa(2 * s + h, 4)[r]))
        for r in range(8): p.emit(valu("v_mul_f32", T[r], T[r], fa))
        for r in range(8): p.emit(valu("v_fmac_f32", T[r], X[8 * i + r], fb))
        for r in range(4): p.emit(valu("v_cvt_pk_bf16_f32", Pk[r], T[2 * r], T[2 * r + 1]))
        p.emit(vstore(Pk, vL16, SRD_WS, sSP, 0, flags=OSF, tag="OST"))
        if i == 0: p.emit(salu("s_add_u32", sSP, sSP, 18432))

def phaseB(p):
    prologueB(p)
    for e in range(8): p.emit(epochB(e))
    epilogueB(p)

def fallback():
    p = Prog("mha_fb"); p.hoist = False
    p.emit(label("mha_gate"), salu("s_mov_b32", sT2, 1 << 14), salu("s_mov_b64", EXEC, 1), label("mha_gate_l"))
    p.emit(raw("s_sleep 64"), vload(V(9), V(8), SRD_DBG, sT0, flags="sc1"), wait_all_vm(), valu("v_readfirstlane_b32", sT1, V(9)),
           salu("s_sub_u32", sT2, sT2, 1), scmp("s_cmp_eq_u32", sT2, 0), raw("s_cbranch_scc1 mha_gate_x", "branch"),
           scmp("s_cmp_lt_u32", sT1, 16), raw("s_cbranch_scc1 mha_gate_l", "branch"))
    p.emit(label("mha_gate_x"), salu("s_mov_b64", EXEC, -1), raw("s_branch mha_gate_ok", "branch"))
    p.emit(label("mha_fallback"), wait_all_vm(), wait_lgkm0(), barrier())
    p.emit(salu("s_mov_b32", sRetry, -1))
    c_, g_ = vT[2], vT[3]
    p.emit(valu("v_and_b32", c_, 15, vLane), valu("v_lshrrev_b32", g_, 4, vLane), valu("v_lshlrev_b32", c_, 8, c_), valu("v_lshl_add_u32", c_, g_, 4, c_),
           salu("s_lshl_b32", sT0, sQH, 6), valu("v_add_u32", vT[0], sT0, c_), valu("v_xor_b32", vT[1], 64, vT[0]))
    p.emit(salu("s_lshl_b32", sT0, sQH, 13), salu("s_sub_u32", sT1, sKVbase, sT0))
    def body(it):
        o = [vload(Kf(0, s_), vT[s_ & 1], SRD_K, sT1, (s_ >> 1) * 128) for s_ in range(4)]
        o += blockQ(0, czero=True)[0]
        for j in range(5):
            st_ = St(0, j)
            o += [valu("v_max3_f32", vMin(j), vMin(j), st_[0], st_[1]), valu("v_max3_f32", vMin(j), vMin(j), st_[2], st_[3])]
        o.append(salu("s_add_u32", sT1, sT1, 4096))
        return o
    p.loop(32, body, sCNT)
    for t2 in range(4):
        for u in range(2): p.emit(valu("v_add_u32", vVa(t2, u), 2 * SG, vVa(t2, u)))
    for m in range(4): p.emit(kv_batch(m))
    for m in PARK:
        for i in range(8): p.emit(pf_load(m, i))
    p.emit(wait_all_vm(), barrier(), raw("s_branch mha_attn_entry", "branch"))
    return p

def accD(j, t): return V(16 + (j * 4 + t) * 4, 4)
SEQ = [(t, j) for t in range(14) for j in range(9)] + [(t, j) for j in range(9) for t in (14, 15)]
SLOT = {tj: i % 9 for i, tj in enumerate(SEQ)}
def Of(t, j, s): return A((SLOT[(t, j)] * 2 + s) * 4, 4)
WBLK = [A(192, 32), A(224, 32), A(160, 32), A(72, 32), A(104, 32), V(186, 32), V(218, 32)]
def Wf(t, tt, s): return WBLK[t % 7][(tt * 2 + s) * 4:(tt * 2 + s) * 4 + 4]
vO = [V(160 + i) for i in range(5)]
vWa = [V(5 + i) for i in range(4)]
vRw = [V(170 + i) for i in range(6)]
vRr = [V(176 + i) for i in range(6)]
vOut = V(182)
OFLAGS = OPT("OF", "sc1")
SIGW = [3, 4, 0, 3, 4, 1, 2, 0, 3, 4, 1, 2, 0, 3, 4, 1]
def regW(t): return (gran(SIGW[t] * SG, SG), ("W", t), False)
sOrd, sObase, sKt = sLw, sWOend, sDw
_wgrp = [0]

def d_addr_setup():
    g_, r_, cp, r8 = vT[1], vT[2], vT[3], vT[4]
    o = [valu("v_lshrrev_b32", g_, 4, vLane), valu("v_bfe_u32", r_, vLane, 2, 2), valu("v_and_b32", cp, 3, vLane),
         valu("v_and_b32", r8, 1, g_), valu("v_lshl_add_u32", r8, r8, 2, r_),
         valu("v_lshrrev_b32", r_, 1, r8), valu("v_lshlrev_b32", r_, 5, r_), valu("v_lshl_add_u32", r_, cp, 3, r_),
         valu("v_lshl_add_u32", r_, r8, 7, r_), valu("v_lshrrev_b32", g_, 1, g_), valu("v_lshl_add_u32", r_, g_, 10, r_),
         valu("v_add_u32", vWa[0], sCkv, r_)]
    o += [valu("v_xor_b32", vWa[i], i << 5, vWa[0]) for i in range(1, 4)]
    o += [salu("s_lshl_b32", sWOoff, sW, 21), salu("s_lshl_b32", sT0, sCT, 7), salu("s_add_u32", sWOoff, sWOoff, sT0),
          salu("s_lshl_b32", sT0, sB2, 7), salu("s_lshl_b32", sT1, sW, 5), salu("s_add_u32", sT0, sT0, sT1), salu("s_mul_i32", sObase, sT0, 9216)]
    DS = OPT("DSKEW", "2")
    if DS == "0": o += [salu("s_mov_b32", sOrd, 0)]
    elif DS == "1": o += [salu("s_and_b32", sOrd, sB2, 3)]
    else: o += [salu("s_xor_b32", sOrd, sB2, sCT), salu("s_and_b32", sOrd, sOrd, 3)]
    _wgrp[0] = 0
    return o
def kstep(t, dst):
    if OPT("DPH", "0") == "1": return [salu("s_add_u32", dst, sW, t), salu("s_and_b32", dst, dst, 15), salu("s_xor_b32", dst, dst, sOrd)]
    return [salu("s_xor_b32", dst, sOrd, t)]
def wo_batch(t):
    g = []
    for i in range(8):
        if i: pre = [salu("s_add_u32", M0, M0, 1024), salu("s_add_u32", sSO, sSO, 16384)]
        else: pre = kstep(t, sSO) + [salu("s_lshl_b32", sSO, sSO, 17), salu("s_add_u32", sSO, sSO, sWOoff), salu("s_add_u32", M0, sCkv, SIGW[t] * SG)]
        g.append(pre + [dma(vOffX, SRD_WO, sSO, flags=OPT("WOF"), tag=("W", t), region=regW(t))])
    return g
def sOo(t): return sOoff if t % 2 == 0 else sOffA
def o_base(t): return kstep(t, sKt) + [salu("s_mul_i32", sKt, sKt, 18432), salu("s_add_u32", sOo(t), sObase, sKt)]
def o_load(t, j, s):
    o = s * 9216 + j * 1024
    return vload(Of(t, j, s), vO[o >> 12], SRD_WS, sOo(t), o & 4095, flags=OFLAGS)
def rdW(t):
    grp = SIGW[t] >> 1
    o = []
    if grp != _wgrp[0]:
        o += [valu("v_add_u32", vWa[i], (grp - _wgrp[0]) * 2 * SG, vWa[i]) for i in range(4)]
        _wgrp[0] = grp
    return o + [ds_read("ds_read_b64_tr_b16", Wf(t, tt, s)[2 * h:2 * h + 2], vWa[tt], (SIGW[t] & 1) * SG + s * 4096 + h * 2048, regW(t))
                for tt in range(4) for s in range(2) for h in range(2)]
def red_write(j, tt):
    reg = (gran((j >> 1) * SG, SG), "R", True, "own")
    return ds_write("ds_write_b128", vRw[(j >> 2) * 2 + (tt & 1)], accD(j, tt), ((j >> 1) & 1) * SG + (j & 1) * 4096 + (tt >> 1) * 128, reg)

NPRE = int(OPT("NPRE", "12"))
def stepD(t):
    units = SEQ[9 * t:9 * t + 9]
    mf = []; en = []; s = 0
    for i, (tt_, j) in enumerate(units):
        for tt in (range(4) if (9 * t + i) % 2 == 0 else range(3, -1, -1)):
            for q, k in enumerate((s, 1 - s)): mf.append(mfma(accD(j, tt), Wf(tt_, tt, k), Of(tt_, j, k), 0 if (tt_ == 0 and q == 0) else None))
            s = 1 - s
        en.append(len(mf) - 1)
    n = len(mf)
    fl = {}
    tr = t + 6
    if t >= 1 and tr <= 15:
        fl["lds"] = [F(wait_vm([("W", tr)]), 8, 10)] + spread(rdW(tr), 10, n - 16) + [F(wait_lgkm0(), n - 4, n - 3)]
    vm = []
    if t < 15:
        b = o_base(t + 1) if t < 14 else []
        if t == 13: b += o_base(15)
        vm += [F(x, min(i, 6), 6) for i, x in enumerate(b)]
        for i in range(9):
            nt, nj = SEQ[9 * t + 9 + i]
            vm += [F(o_load(nt, nj, 0), en[i], n - 1), F(o_load(nt, nj, 1), min(en[i] + 3, n - 1), n - 1)]
    fl["vm"] = vm
    tw = WSCHED.get(t)
    if tw is not None: fl["w"] = vm_fillers(wo_batch(tw), 12, n - 4)
    if t >= 14:
        red = [F(x, -1 + 4 * i, n - 1) for i, x in enumerate(stepD.carry)]; stepD.carry = []
        for i, (tt_, j) in enumerate(units):
            if tt_ == 15:
                for tt in range(4):
                    e = en[i] + 4 + 4 * tt
                    if e < n - 1 or t == 15: red.append(F(red_write(j, tt), min(e, n - 1), n - 1))
                    else: stepD.carry.append(red_write(j, tt))
        fl["red"] = red
    return interleave(mf, fl)
stepD.carry = []
WSCHED = {}

def phaseD(p):
    p.emit(wait_vm([("W", 2)]))
    p.emit(wo_batch(5), wo_batch(6))
    p.emit(rdW(2))
    for i in range(5): p.emit(valu("v_add_u32", vO[i], i * 4096, vL16))
    p.emit(salu("s_lshl_b32", sT0, sB, 12), salu("s_add_u32", sT0, sT0, FLG), scmp("s_cmp_eq_u32", sW, 0), salu("s_cselect_b32", sT0, sT0, OOB),
           valu("v_lshlrev_b32", V(184), 8, vLane), valu("v_mov_b32", V(185), 1))
    p.emit(wait_vm(["OST"]), barrier())
    p.emit(salu("s_mov_b64", EXEC, 0xffff), vstore(V(185), V(184), SRD_WS, sT0, flags="sc1", op="buffer_atomic_add"), salu("s_mov_b64", EXEC, -1))
    p.emit(stamp())
    def more(t):
        return wo_batch(t) if t < NPRE else []
    rest = [t for t in range(7, 16) if t >= NPRE]
    st_ = 0
    for t in rest:
        st_ = max(st_, t - 10, 0); WSCHED[st_] = t; assert st_ <= t - 7; st_ += int(OPT("WGAP", "1"))
    g_ = vT[2]
    ra = [valu("v_lshrrev_b32", g_, 4, vLane),
          valu("v_and_b32", vT[0], 15, vLane), valu("v_and_b32", vT[1], 7, vLane), valu("v_xor_b32", vT[4], vT[1], g_),
          valu("v_lshlrev_b32", vT[4], 4, vT[4]), valu("v_lshl_add_u32", vT[4], vT[0], 8, vT[4]), valu("v_add_u32", vRw[0], sCkv, vT[4]),
          valu("v_xor_b32", vRw[1], 64, vRw[0])]
    ra += [valu("v_add_u32", vRw[i], 2 * SG, vRw[i - 2]) for i in range(2, 6)]
    ra += [valu("v_lshrrev_b32", vT[0], 3, vLane), valu("v_lshlrev_b32", vT[4], 1, vT[1]), valu("v_xor_b32", vT[4], vT[4], vT[0]),
           valu("v_lshlrev_b32", vT[4], 4, vT[4]), salu("s_lshl_b32", sT0, sW, 3), valu("v_add_u32", vT[0], sT0, vT[0]),
           valu("v_lshl_add_u32", vRr[0], vT[0], 8, vT[4]), valu("v_xor_b32", vRr[1], 16, vRr[0])]
    ra += [valu("v_add_u32", vRr[i], 2 * SG, vRr[i - 2]) for i in range(2, 6)]
    ra += [valu("v_lshlrev_b32", vOut, 11, vT[0]), valu("v_lshl_add_u32", vOut, vT[1], 4, vOut), valu("v_mov_b32", V(184), 0)]
    pl = [salu("s_mov_b64", EXEC, 1), vload(V(183), V(184), SRD_WS, sFl, flags="sc1"), salu("s_mov_b64", EXEC, -1)]
    p.emit(rdW(3), wait_both([], lg=16), more(7), rdW(4), ra, wait_both([], lg=16), more(8))
    p.emit(wait_vm([("W", 5)]), rdW(5), wait_both([], lg=16), more(9))
    p.emit(wait_vm([("W", 6)]), rdW(6), wait_both([], lg=16), more(10), pl, wait_lgkm0(), more(11))
    p.emit(o_base(0), stamp())
    p.emit(valu("v_readfirstlane_b32", sT1, V(183)), scmp("s_cmp_ge_u32", sT1, 16), raw("s_cbranch_scc1 mha_polled", "branch"))
    p.emit(salu("s_mov_b32", sPoll, 1 << 17), salu("s_mov_b64", EXEC, 1))
    p.emit(label("mha_poll"))
    p.emit(raw("buffer_load_dword v183, v184, %s, %s offen sc1" % (SRD_WS, sFl), "other"), raw("s_waitcnt vmcnt(0)", "other"))
    p.emit(valu("v_readfirstlane_b32", sT1, V(183)), scmp("s_cmp_ge_u32", sT1, 16), raw("s_cbranch_scc1 mha_pollok", "branch"))
    p.emit(raw("s_sleep %s" % OPT("SLP", "4")), salu("s_sub_u32", sPoll, sPoll, 1), scmp("s_cmp_lg_u32", sPoll, 0), raw("s_cbranch_scc1 mha_poll", "branch"))
    p.emit(label("mha_pollok"), salu("s_mov_b64", EXEC, -1))
    p.emit(label("mha_polled"), stamp())
    for j in range(9): p.emit(o_load(0, j, 0), o_load(0, j, 1))
    for t in range(16):
        p.emit(stepD(t))
        if t % 2: p.emit(stamp())
    p.emit(salu("s_mul_i32", sT0, sB2, 294912), salu("s_lshl_b32", sT1, sCT, 7), salu("s_add_u32", sT0, sT0, sT1))
    p.emit(wait_lgkm0(), barrier(), stamp())
    def buf(rd, i, h): return V(16 + (rd % 4) * 32 + i * 8 + h * 4, 4)
    def reads(rd):
        reg = (gran(rd * SG, SG), "R", True)
        return [ds_read("ds_read_b128", buf(rd, i, h), vRr[(rd >> 1) * 2 + h], (rd & 1) * SG + i * 8192, reg) for i in range(4) for h in range(2)]
    p.emit(reads(0))
    for rd in range(5):
        if rd + 1 < 5: p.emit(reads(rd + 1))
        if rd == 4: p.emit(scmp("s_cmp_ge_u32", sW, 2), raw("s_cbranch_scc1 mha_fin", "branch"))
        b0 = V(16 + (rd % 4) * 32, 32)
        for r in range(0, 8, 2): p.emit(valu("v_pk_add_f32", b0[r:r + 2], b0[r:r + 2], b0[8 + r:10 + r]))
        for r in range(0, 8, 2): p.emit(valu("v_pk_add_f32", b0[16 + r:18 + r], b0[16 + r:18 + r], b0[24 + r:26 + r]))
        for r in range(0, 8, 2): p.emit(valu("v_pk_add_f32", b0[r:r + 2], b0[r:r + 2], b0[16 + r:18 + r]))
        Pk = V(192 + rd * 4, 4)
        for r in range(4): p.emit(valu("v_cvt_pk_bf16_f32", Pk[r], b0[2 * r], b0[2 * r + 1]))
        p.emit(vstore(Pk, vOut, SRD_OUT, sT0, flags=OPT("OUTF", "sc1")))
        if rd < 4: p.emit(salu("s_add_u32", sT0, sT0, 32 * 2048))
    p.emit(label("mha_fin"))

KNAME = "standalone__mha_block_cached__near_ridge_kernel"
def build():
    k = Prog("mha"); setup(k)
    phaseA(k); phaseB(k); k.emit(stamp())
    phaseD(k); k.emit(stamp_store(32 << 20))
    k.emit(label("mha_end"), raw("s_endpgm"))
    fb = fallback()
    hdr = open("standalone__mha_block_cached__near_ridge.s.ref").read().split("; Override launch")[0]
    out = hdr
    out += "; @launch grid=(256,1,1) block=(256,1,1) lds=163840\n"
    out += '.amdgcn_target "amdgcn-amd-amdhsa--gfx950"\n.text\n'
    t = k.text()
    print(k.stats(), "est cycles", est_cycles([x for _, x in k.expanded(k.trace)]))
    out += ".globl %s\n.p2align 8\n.type %s,@function\n%s:\n%s" % (KNAME, KNAME, KNAME, t)
    out += "mha_code_end:\n" + fb.text()
    out += '.section .rodata,"a"\n.p2align 6\n' + kernel_desc(KNAME, 512, 102, 256)
    return out

if __name__ == "__main__":
    if "--stamps" in sys.argv:
        sys.argv.remove("--stamps"); STAMPS = True
    dst = sys.argv[1] if len(sys.argv) > 1 else "standalone__mha_block_cached__near_ridge.s"
    open(dst, "w").write(build())
```

```python
import struct, sys, os
from fw import *
from asmlib import kernel_desc
OPT = lambda k, d="": os.environ.get(k, d)

def f32(x): return struct.unpack("<I", struct.pack("<f", x))[0]
CSCALE = f32(1.4426950408889634 / (128 ** 0.5))

sWG = S(2)
sB2 = S(3)
SRD_X, SRD_WQ, SRD_K, SRD_V = S(4, 4), S(8, 4), S(12, 4), S(16, 4)
SRD_WS, SRD_WO, SRD_OUT, SRD_DBG = S(20, 4), S(24, 4), S(28, 4), S(32, 4)
PTR = S(36, 16)
sLINK = S(52, 2)
sTG, sKVend = S(54), S(55)
sW, sHD, sQH, sB, sHP = S(56), S(57), S(58), S(59), S(60)
sCNT = S(61)
sT0, sT1, sT2, sT3 = S(62), S(63), S(64), S(65)
sEX9 = S(66, 2)
sXoff, sX9off, sWoff = S(68), S(69), S(70)
sCx, sCx9, sCw = S(71), S(72), S(73)
sSlotR, sSlotW, sDelta = S(74), S(75), S(76)
sKVbase, sCkv = S(77), S(78)
sKs, sVs, sWa, sWb, sDk, sDv = S(79), S(80), S(81), S(82), S(83), S(84)
sOffA, sOffB = S(85), S(86)
sOb0, sOb1 = S(87), S(88)
sSC = S(89)
sSP = S(90)
sSO = S(91)
sOoff, sWOoff, sCT, sLw = S(92), S(93), S(94), S(95)
sC1 = S(96)
sFl = S(46)
sSC2 = S(44, 2)
sRot = S(47)
sRetry, sWOend, sPoll, sDw = S(66), S(67), S(68), S(69)

OOB = 0x10000000
ASLOT = 51200
XBYTES = 18432
SG = 32768
FLG = 24 << 20
KVFLAGS = OPT("KVF", "nt")
NPF = int(OPT("NPF", "2"))
assert NPF <= 2
OSF = OPT("OSF", "sc1")

vLane = V(0)
vOffX, vOffW, vOffKV, vL16 = V(1), V(2), V(3), V(4)
vXa = [V(5), V(6), V(7), V(8)]
vWb = V(9)
vT = [V(10), V(11), V(12), V(13), V(14), V(15)]
vPW, vTch = V(254), V(255)
vOffKV1 = V(15)
def accA(t, j):
    if j < 4: return V(16 + (t * 4 + j) * 4, 4)
    return V(144 + {0: 0, 1: 1, 4: 2, 5: 3}[t] * 4, 4)
def Bf(buf, j, s): return A(buf * 40 + (j * 2 + s) * 4, 4)
def Af(t, s): return A(80 + (t % 4) * 8 + s * 4, 4)
def Qf(j, s): return V(160 + (j * 4 + s) * 4, 4)
PARK = [int(x) for x in OPT("PARK", "8,12").split(",") if x]
PFR = {1: A(120, 32), 2: A(152, 32)}
for _i, _n in enumerate(PARK): PFR[_n] = A(192 + 32 * _i, 32)
def St(kt, j): return V(16 + (kt % 2) * 20 + j * 4, 4)
def Pf(buf, u, j): return V(56 + buf * 36 + (u * 5 + j) * 4, 4)
def Cb(j): return V(128 + 4 * j, 4)
def vL(j): return V(148 + j)
def vMin(j): return V(153 + j)
def Oa(t, j): return A((t * 5 + j) * 4, 4)
KALT = [False]; VALT = [False]
def Kf(kt, s): return A(160 + (16 if (KALT[0] and kt % 2) else 0) + s * 4, 4)
def Vf(t, u): return A((160 if (VALT[0] and (t >> 1) % 2 == 0) else 176) + (t % 2) * 8 + u * 4, 4)
def vKa(s0, u): return V(240 + s0 * 2 + u)
def vVa(t2, u): return V(244 + t2 * 2 + u)
NINTH_T = (0, 1, 4, 5)

STAMPS = False
def stamp():
    if not STAMPS: return []
    return [raw("s_memrealtime s[100:101]"), raw("s_memtime s[98:99]"), wait_lgkm0(), raw("s_mov_b32 s101, m0"), raw("s_mov_b32 m0, s97"),
            raw("v_writelane_b32 v252, s100, m0", "valu"), raw("v_writelane_b32 v253, s98, m0", "valu"), raw("s_add_u32 s97, s97, 1"),
            raw("s_mov_b32 m0, s101"), raw("s_nop 0")]
DIAG = OPT("DIAG")
def diag_start():
    return [raw("s_memrealtime s[98:99]")] if DIAG else []
def diag(point):
    if not DIAG or DIAG.split(":")[0] != point: return []
    return [label("mha_diag"), raw("s_memrealtime s[100:101]"), wait_lgkm0(), raw("s_sub_u32 s100, s100, s98"),
            raw("s_cmp_lt_u32 s100, %s" % DIAG.split(":")[1]), raw("s_cbranch_scc1 mha_diag", "branch")]
def stamp_init():
    if not STAMPS: return []
    return [raw("s_mov_b32 s97, 0"), raw("v_mov_b32 v252, 0", "valu"), raw("v_mov_b32 v253, 0", "valu")] + stamp()
def stamp_store(base):
    if not STAMPS: return []
    o = [raw("s_mov_b64 exec, -1"), wait_all_vm()] + stamp()
    o += srd(SRD_DBG, 7, 1 << 28)
    o += [salu("s_lshl_b32", sT0, sWG, 2), salu("s_add_u32", sT0, sT0, sW), salu("s_lshl_b32", sT0, sT0, 9), salu("s_add_u32", sT0, sT0, base),
          valu("v_lshlrev_b32", vT[0], 3, vLane), raw("s_nop 4"), vstore(V(252, 2), vT[0], SRD_DBG, sT0)]
    return o

def srd(dst, ptr_idx, nbytes):
    return [salu("s_mov_b32", dst[0], PTR[2 * ptr_idx]), salu("s_mov_b32", dst[1], PTR[2 * ptr_idx + 1]),
            salu("s_mov_b32", dst[2], nbytes), salu("s_mov_b32", dst[3], 0x20000)]

def gran(lo, n): return list(range(lo // 2048, (lo + n + 2047) // 2048))
def regA(st): return (gran((st % 3) * ASLOT, ASLOT), ("A", st), True)
def sigB(n): return (n + 2) % 5
def regB(n): return (gran(sigB(n) * SG, SG), ("B", n), True)
def regBw(n): return regB(n) + ("own",)

def vm_fillers(groups, g0, g1, slack=2):
    out = []; n = len(groups)
    for i, grp in enumerate(groups):
        t = g0 + (g1 - g0) * i // max(1, n)
        isv = [any(y.kind in VM for y in flatten([x])) for x in grp]
        k = isv.index(True) if True in isv else len(grp) - 1
        for q, x in enumerate(grp):
            e = max(0, t + q - k)
            out.append(F(x, e, max(e, t) + slack))
    return out

def end_stream(n, tags, loop=False, lg=0):
    o = []
    if loop: o += [F(loopctl(), n - 5, n - 5)] + ([] if STAMPS else [F(loopcmp(), n - 4, n - 4)])
    o += [F(wait_both(tags, lg), n - 3, n - 3), F([barrier()] + stamp(), n - 2, n - 2)]
    return o

def setup(p):
    p.emit(scmp("s_cmp_ge_u32", sWG, 256), raw("s_cbranch_scc1 mha_end", "branch"))
    p.emit(diag_start(), raw("s_load_dwordx16 %s, s[0:1], 0" % PTR, wr=[PTR]))
    p.emit(valu("v_lshrrev_b32", vT[0], 6, V(0)), valu("v_and_b32", vLane, 63, V(0)))
    p.emit(valu("v_readfirstlane_b32", sW, vT[0]))
    p.emit(valu("v_lshlrev_b32", vL16, 4, vLane))
    p.emit(valu("v_lshrrev_b32", vT[2], 4, vLane), valu("v_lshlrev_b32", vT[3], 1, vT[2]),
           valu("v_and_b32", vT[1], 7, vLane), valu("v_xor_b32", vT[1], vT[1], vT[3]), valu("v_lshlrev_b32", vT[1], 4, vT[1]))
    p.emit(valu("v_lshrrev_b32", vT[4], 3, vLane))
    p.emit(valu("v_lshl_add_u32", vOffX, vT[4], 11, vT[1]))
    p.emit(salu("s_lshr_b32", sHD, sW, 1), salu("s_and_b32", sQH, sW, 1))
    p.emit(salu("s_and_b32", sT0, sWG, 7), salu("s_lshr_b32", sT1, sWG, 3))
    p.emit(salu("s_and_b32", sB, sT0, 1), salu("s_lshl_b32", sB, sB, 3), salu("s_and_b32", sT2, sT1, 7), salu("s_add_u32", sB, sB, sT2))
    p.emit(salu("s_lshr_b32", sHP, sT0, 1), salu("s_lshl_b32", sHP, sHP, 2), salu("s_lshr_b32", sT2, sT1, 3), salu("s_add_u32", sHP, sHP, sT2))
    p.emit(salu("s_mul_i32", sT0, sB, 294912))
    p.emit(salu("s_lshl_b32", sT1, sW, 16), salu("s_add_u32", sXoff, sT0, sT1))
    p.emit(salu("s_add_u32", sT1, sHD, 16), salu("s_lshl_b32", sCx9, sT1, 10), salu("s_lshl_b32", sT1, sT1, 14), salu("s_add_u32", sX9off, sT0, sT1))
    p.emit(salu("s_lshl_b32", sCx, sW, 12))
    p.emit(salu("s_lshl_b32", sWoff, sQH, 16), salu("s_lshl_b32", sT1, sHP, 9), salu("s_add_u32", sWoff, sWoff, sT1),
           salu("s_lshl_b32", sT1, sHD, 8), salu("s_add_u32", sWoff, sWoff, sT1))
    p.emit(salu("s_lshl_b32", sCw, sHD, 14), salu("s_lshl_b32", sT1, sQH, 11), salu("s_add_u32", sCw, sCw, sT1), salu("s_add_u32", sCw, sCw, XBYTES))
    SK = OPT("SKEW", "6")
    if SK != "0":
        if SK == "1":
            p.emit(salu("s_lshl_b32", sT1, sB, 1), salu("s_lshl_b32", sT2, sHP, 2), salu("s_xor_b32", sT1, sT1, sT2))
        elif SK == "2":
            p.emit(salu("s_lshl_b32", sT1, sB, 1), salu("s_lshr_b32", sT2, sB, 3), salu("s_or_b32", sT1, sT1, sT2),
                   salu("s_lshl_b32", sT2, sHP, 2), salu("s_xor_b32", sT1, sT1, sT2), salu("s_lshr_b32", sT2, sHP, 2), salu("s_xor_b32", sT1, sT1, sT2))
        elif SK == "3":
            p.emit(salu("s_lshl_b32", sT2, sHP, 1), salu("s_xor_b32", sT1, sB, sT2), salu("s_and_b32", sT1, sT1, 7))
        elif SK == "6":
            p.emit(salu("s_xor_b32", sT1, sB, sHP), salu("s_mov_b32", sKs, sT1), salu("s_mov_b32", sVs, sXoff), salu("s_mov_b32", sWa, sX9off),
                   salu("s_mov_b32", sWb, sWoff))
        elif SK in ("4", "5"):
            p.emit(salu("s_xor_b32", sT1, sB, sHP), salu("s_and_b32", sT1, sT1, 3 if SK == "4" else 1))
        p.emit(salu("s_and_b32", sT1, sT1, 15), salu("s_lshl_b32", sT2, sT1, 7), salu("s_add_u32", sXoff, sXoff, sT2), salu("s_add_u32", sX9off, sX9off, sT2),
               salu("s_lshl_b32", sT2, sT1, 19), salu("s_add_u32", sWoff, sWoff, sT2))
    p.emit(scmp("s_cmp_eq_u32", sQH, 0), salu("s_cselect_b32", sEX9[0], -1, 0), salu("s_cselect_b32", sEX9[1], 0, -1))
    p.emit(salu("s_lshl_b32", sT1, sQH, 2), valu("v_or_b32", vT[3], sT1, vT[2]), valu("v_lshlrev_b32", vT[3], 1, vT[3]),
           valu("v_and_b32", vT[4], 15, vLane), valu("v_xor_b32", vT[3], vT[3], vT[4]), valu("v_lshlrev_b32", vT[3], 4, vT[3]),
           valu("v_lshl_add_u32", vOffW, vT[2], 13, vT[3]))
    p.emit(wait_lgkm0(), stamp_init())
    p.emit(srd(SRD_X, 0, 16 * 144 * 2048), srd(SRD_WQ, 3, 1024 * 8192))

def setup2(p):
    p.emit(srd(SRD_K, 1, 1 << 26), srd(SRD_V, 2, 1 << 26), srd(SRD_WS, 7, FLG + 65536))
    p.emit(srd(SRD_WO, 4, 4096 * 2048), srd(SRD_OUT, 5, 16 * 144 * 2048), srd(SRD_DBG, 6, 256))
    p.emit(valu("v_lshrrev_b32", vT[3], 1, vT[4]), valu("v_and_b32", vT[3], 3, vT[3]), valu("v_lshlrev_b32", vT[3], 1, vT[3]),
           valu("v_xor_b32", vT[3], vT[3], vT[2]), valu("v_lshlrev_b32", vT[3], 4, vT[3]))
    p.emit(valu("v_lshrrev_b32", vT[5], 2, vT[4]), valu("v_lshlrev_b32", vT[5], 10, vT[5]), valu("v_and_b32", vT[0], 3, vT[4]),
           valu("v_lshl_add_u32", vT[5], vT[0], 7, vT[5]), valu("v_add_u32", vT[5], vT[5], vT[3]))
    p.emit(salu("s_lshl_b32", sT0, sHD, 14), salu("s_add_u32", sT0, sT0, 2 * SG), valu("v_add_u32", vT[5], sT0, vT[5]))
    p.emit(salu("s_mul_i32", sT1, sQH, 8192 + 64), valu("v_xor_b32", vKa(0, 0), sT1, vT[5]))
    p.emit(valu("v_xor_b32", vKa(0, 1), 8192, vKa(0, 0)), valu("v_xor_b32", vKa(1, 0), 64, vKa(0, 0)), valu("v_xor_b32", vKa(1, 1), 64, vKa(0, 1)))
    p.emit(valu("v_lshl_add_u32", vT[3], vT[4], 7, vT[3]))
    p.emit(salu("s_lshl_b32", sT1, sQH, 13), valu("v_add_u32", vXa[0], sT1, vT[3]),
           valu("v_xor_b32", vXa[1], 64, vXa[0]), valu("v_add_u32", vXa[2], 128 * 128, vT[3]), valu("v_xor_b32", vXa[3], 64, vXa[2]))
    r_, cp = vT[0], vT[1]
    p.emit(valu("v_bfe_u32", r_, vLane, 2, 2), valu("v_and_b32", cp, 3, vLane))
    p.emit(valu("v_and_b32", vT[3], 1, vT[2]), valu("v_lshl_add_u32", vT[3], vT[3], 2, r_))
    p.emit(salu("s_lshl_b32", sT1, sQH, 1), valu("v_xor_b32", vT[5], sT1, vT[3]), valu("v_lshlrev_b32", vT[5], 5, vT[5]),
           valu("v_lshl_add_u32", vT[5], cp, 3, vT[5]), valu("v_lshl_add_u32", vT[4], vT[2], 3, r_), valu("v_lshl_add_u32", vT[5], vT[4], 8, vT[5]))
    p.emit(salu("s_lshl_b32", sT0, sHD, 14), salu("s_add_u32", sT0, sT0, XBYTES), valu("v_add_u32", vWb, sT0, vT[5]))
    p.emit(valu("v_lshrrev_b32", vT[4], 1, vT[3]), valu("v_xor_b32", vT[4], sT1, vT[4]), valu("v_lshlrev_b32", vT[4], 5, vT[4]),
           valu("v_lshl_add_u32", vT[4], cp, 3, vT[4]), valu("v_lshl_add_u32", vT[4], r_, 7, vT[4]),
           valu("v_lshl_add_u32", vT[4], vT[2], 10, vT[4]))
    p.emit(salu("s_lshl_b32", sCkv, sW, 13), salu("s_add_u32", sT0, sCkv, 4 * SG), valu("v_add_u32", vVa(0, 0), sT0, vT[4]))
    for t2 in range(4):
        if t2: p.emit(valu("v_xor_b32", vVa(t2, 0), t2 << 5, vVa(0, 0)))
        p.emit(valu("v_xor_b32", vVa(t2, 1), 8192, vVa(t2, 0)))
    p.emit(salu("s_lshl_b32", sT0, sB, 5), salu("s_lshl_b32", sT1, sHP, 1), salu("s_add_u32", sT0, sT0, sT1), salu("s_add_u32", sT0, sT0, sHD))
    p.emit(salu("s_lshl_b32", sKVbase, sT0, 17), salu("s_lshl_b32", sT1, sQH, 13), salu("s_add_u32", sKVbase, sKVbase, sT1),
           salu("s_add_u32", sKVend, sKVbase, 8 * 16384))
    p.emit(salu("s_lshl_b32", sT0, sT0, 2), salu("s_add_u32", sT1, sT0, sQH), salu("s_mul_i32", sOb0, sT1, 9216),
           salu("s_xor_b32", sT1, sT1, 1), salu("s_mul_i32", sOb1, sT1, 9216))
    p.emit(salu("s_and_b32", sT0, sWG, 7), salu("s_lshr_b32", sT1, sWG, 3))
    p.emit(salu("s_and_b32", sB2, sT0, 3), salu("s_lshl_b32", sB2, sB2, 2), salu("s_and_b32", sT2, sT1, 3), salu("s_add_u32", sB2, sB2, sT2))
    p.emit(salu("s_lshr_b32", sCT, sT0, 2), salu("s_lshl_b32", sCT, sCT, 3), salu("s_lshr_b32", sT2, sT1, 2), salu("s_add_u32", sCT, sCT, sT2))
    if OPT("CTX"): p.emit(salu("s_xor_b32", sCT, sCT, int(OPT("CTX"))))
    p.emit(salu("s_lshl_b32", sTG, sWG, 15), salu("s_add_u32", sTG, sTG, sCkv))
    p.emit(valu("v_add_u32", vPW, sCkv, vL16))
    p.emit(valu("v_bfe_u32", vT[0], vLane, 3, 2), valu("v_and_b32", vT[1], 2, vT[0]), valu("v_and_b32", vT[3], 7, vLane),
           valu("v_xor_b32", vT[1], vT[1], vT[3]), valu("v_lshlrev_b32", vT[1], 4, vT[1]), valu("v_lshl_add_u32", vT[1], vT[0], 8, vT[1]),
           valu("v_lshrrev_b32", vT[0], 5, vLane), valu("v_lshl_add_u32", vOffKV, vT[0], 7, vT[1]), valu("v_xor_b32", vOffKV1, 64, vOffKV))
    if OPT("ROT", "1") == "1": p.emit(salu("s_add_u32", sRot, sT1, sWG), salu("s_and_b32", sRot, sRot, 7), salu("s_lshl_b32", sRot, sRot, 14))
    else: p.emit(salu("s_mov_b32", sRot, 0))
    p.emit(salu("s_mov_b32", sSC, CSCALE), salu("s_mov_b32", sSlotR, 0), salu("s_mov_b32", sSlotW, 2 * ASLOT), salu("s_mov_b32", sC1, ASLOT))
    p.emit(valu("v_mov_b32", V(203), 0), salu("s_mov_b32", sSC2[0], CSCALE), salu("s_mov_b32", sSC2[1], CSCALE))

def dma_batchA(st):
    reg = regA(st); tag = ("A", st)
    g = []
    rows = [0, 4, 16, 20, 32, 36, 48, 52]
    def wq(i):
        pi = rows[i] // 4
        m = salu("s_add_u32", M0, sSlotW, sCw) if i == 0 else salu("s_add_u32", M0, M0, (pi - rows[i - 1] // 4) * 1024)
        return [m, salu("s_add_u32", sSO, sWoff, rows[i] * 8192), dma(vOffW, SRD_WQ, sSO, flags=OPT("WQF"), tag=tag, region=reg)]
    def xx(i):
        m = salu("s_add_u32", M0, sSlotW, sCx) if i == 0 else salu("s_add_u32", M0, M0, 1024)
        return [m, salu("s_add_u32", sSO, sXoff, i * 16384), dma(vOffX, SRD_X, sSO, flags=OPT("XF"), tag=tag, region=reg)]
    for i in range(4): g.append(xx(i))
    g.append([salu("s_add_u32", M0, sSlotW, sCx9),
              [salu("s_mov_b64", EXEC, sEX9), dma(vOffX, SRD_X, sX9off, flags=OPT("XF"), tag=tag, region=reg), salu("s_mov_b64", EXEC, -1)]])
    for i in range(8): g.append(wq(i))
    dl = (st ^ (st + 1)) & 15
    adv = [salu("s_xor_b32", sXoff, sXoff, dl * 128), salu("s_xor_b32", sX9off, sX9off, dl * 128), salu("s_xor_b32", sWoff, sWoff, dl * 64 * 8192)]
    if OPT("SKEW", "6") == "6":
        adv = [[scmp("s_cmp_gt_u32", sKs, st), salu("s_cselect_b32", sDk, st, st + 1)], salu("s_lshl_b32", sDv, sDk, 7),
               salu("s_add_u32", sXoff, sVs, sDv), salu("s_add_u32", sX9off, sWa, sDv), salu("s_lshl_b32", sDv, sDk, 19), salu("s_add_u32", sWoff, sWb, sDv)]
    return g, adv

def entry_src(n):
    if n == 0: return SRD_K, 0
    if n == 15: return SRD_V, 7
    return (SRD_K, (n + 1) // 2) if n % 2 else (SRD_V, n // 2 - 1)

def kv_batch(n, srd_=None, soff=None, ldsbase=None):
    const = 0
    if srd_ is None:
        srd_, ch = entry_src(n); soff = sKVbase; const = ch * 16384; ldsbase = sigB(n) * SG
    g = []
    KVCL = int(OPT("KVCL", "1"))
    for i in range(8):
        grp = []
        if i % 4 == 0:
            m = salu("s_add_u32", M0, sCkv, ldsbase) if i == 0 else salu("s_add_u32", M0, M0, 4096)
            grp += [m, salu("s_add_u32", sSO, soff, const + i * 1024), salu("s_xor_b32", sSO, sSO, sRot)]
        grp.append(dma(vOffKV1 if i % 2 else vOffKV, srd_, sSO, (i % 4) * 1024, flags=KVFLAGS, tag=("B", n), region=regBw(n)))
        if i % KVCL == 0: g.append(grp)
        else: g[-1] += grp
    return g

def pf_load(n, i):
    srd_, ch = entry_src(n)
    return [salu("s_add_u32", sSP, sKVbase, ch * 16384 + (i >> 2) * 4096), salu("s_xor_b32", sSP, sSP, sRot),
            vload(PFR[n][4 * i:4 * i + 4], vOffKV1 if i % 2 else vOffKV, srd_, sSP, (i % 4) * 1024, flags=KVFLAGS)]
def pf_write(n, tmp):
    base = sigB(n) * SG
    o = [valu("v_add_u32", tmp, base, vPW)] if base else []
    ad = tmp if base else vPW
    return o + [ds_write("ds_write_b128", ad, PFR[n][4 * i:4 * i + 4], i * 1024, regBw(n)) for i in range(8)]

def blockA(t, buf, rev, s_first, zero=False):
    js = [0, 1, 2, 3] + ([4] if t in NINTH_T else [])
    if rev: js = js[::-1]
    out = []; s = s_first
    for j in js:
        for i, k in enumerate((s, 1 - s)): out.append(mfma(accA(t, j), Af(t, k), Bf(buf, j, k), 0 if (zero and i == 0) else None))
        s = 1 - s
    return out, s

XINL = 22
def epochA(e, groups, adv, g0, g1, endtags, extra=None, ndum=0):
    buf = e % 2
    mf = []; start = {}; end = {}
    s = 0
    for key, t, b in [("L6", 6, 1 - buf), ("L7", 7, 1 - buf)] + [(t, t, buf) for t in range(6)]:
        start[key] = len(mf)
        blk, s = blockA(t, b, rev=(t % 2 == 1), s_first=s, zero=(e == 0 or (e == 1 and t >= 6)))
        mf += blk; end[key] = len(mf) - 1
    n = len(mf)
    reg = regA(e)
    def rdA(t):
        tmp = vWb if t == 0 else vT[t % 2]
        o = [] if t == 0 else [valu("v_xor_b32", tmp, t << 5, vWb)]
        return o + [ds_read("ds_read_b64_tr_b16", Af(t, s_)[2 * h:2 * h + 2], tmp, s_ * 8192 + h * 1024, reg) for s_ in range(2) for h in range(2)]
    def rdB(j, s_):
        ad = vXa[s_] if j < 4 else vXa[2 + s_]
        return ds_read("ds_read_b128", Bf(buf, j, s_), ad, (j * 2048) if j < 4 else 0, reg)
    a0 = rdA(0)
    first = [rdB(0, 0), a0[0], a0[1], rdB(0, 1), a0[2], a0[3], rdB(1, 1), rdB(1, 0), rdB(2, 0), rdB(2, 1), rdB(3, 1), rdB(3, 0), rdB(4, 0), rdB(4, 1)]
    lds = spread(first, -1, 15, slack=1)
    lds += spread(rdA(1), 15, 20, slack=1)
    prev = {2: "L6", 3: "L7", 4: 0, 5: 1, 6: 2, 7: 3}
    pos = 20
    for t in range(2, 8):
        lo = max(end[prev[t]], pos)
        lds += spread(rdA(t), lo, lo + 6, slack=1); pos = lo + 6
        assert t >= 6 or pos + 1 <= start[t] - 4, (t, pos, start[t])
    if ndum:
        lds += spread([ds_read("ds_read_b32", V(161 + i), vL16) for i in range(ndum)], pos + 1, pos + 1 + ndum // 2, slack=1)
    fl = {"lds": lds, "end": end_stream(n, endtags, lg=ndum)}
    vm = vm_fillers(groups, g0, g1) if groups else []
    vm += [F(x, g1, n - 6) for x in adv]
    if e < 15:
        sel = F([scmp("s_cmp_eq_u32", sSlotR, 2 * ASLOT), salu("s_cselect_b32", sDelta, -2 * ASLOT, sC1)], g1, n - 6)
        vm += [F(salu("s_mov_b32", sSlotW, sSlotR), g1, n - 6), sel, F(salu("s_add_u32", sSlotR, sSlotR, sDelta), g1, n - 5)]
        lds += [F(valu("v_add_u32", r, sDelta, r), pos + 1, n - 1, [sel]) for r in [vWb] + vXa]
    fl["vm"] = vm
    if extra: fl.update(extra(start, end, n))
    out = interleave(mf, fl)
    if e == 0:
        lead = set(id(x) for x in mf[:16])
        out = [x for x in out if id(x) not in lead]
    return out

def split_at_mfma(ins, k):
    idx = [i for i, x in enumerate(ins) if x.kind == "mfma"][k]
    return ins[:idx], ins[idx:]

def q_convert(j, s, pk=False):
    t0, t1 = 2 * s, 2 * s + 1
    a0, a1, q = accA(t0, j), accA(t1, j), Qf(j, s)
    o = []
    for a_ in (a0, a1):
        if pk:
            for r in (0, 2): o.append(valu("v_pk_mul_f32", a_[r:r + 2], a_[r:r + 2], sSC2))
        else:
            for r in range(4): o.append(valu("v_mul_f32", a_[r], sSC, a_[r]))
    o += [valu("v_cvt_pk_bf16_f32", q[0], a0[0], a0[1]), valu("v_cvt_pk_bf16_f32", q[2], a1[0], a1[1]),
          valu("v_cvt_pk_bf16_f32", q[1], a0[2], a0[3]), valu("v_cvt_pk_bf16_f32", q[3], a1[2], a1[3])]
    sw1 = [valu("v_permlane32_swap_b32", q[0], q[2]), valu("v_permlane32_swap_b32", q[1], q[3])]
    sw2 = [valu("v_permlane16_swap_b32", q[0], q[2]), valu("v_permlane16_swap_b32", q[1], q[3])]
    return o, sw1, sw2
def q_convert_seq(items):
    out = []; pend1 = pend2 = None
    for it in items:
        o, s1, s2 = q_convert(*it)
        out += o[:len(o) // 2]
        if pend2: out += pend2
        pend2 = None
        out += o[len(o) // 2:]
        if pend1: out += pend1[0]; pend2 = pend1[1]
        pend1 = (s1, s2)
    if pend2: out += pend2
    out += pend1[0] + pend1[1]
    return out

def phaseA(p):
    p.emit(salu("s_mov_b32", sSlotW, 0))
    g, adv = dma_batchA(0)
    p.emit(g, adv)
    if OPT("CW", "1") == "1":
        p.emit(raw("s_getpc_b64 s[16:17]", wr=[S(16, 2)]), label("mha_pc"), salu("s_and_b32", S(17), S(17), 0xffff),
               raw("s_mov_b32 s18, mha_code_end-mha_pc", wr=[S(18)]), salu("s_mov_b32", S(19), 0x20000))
        p.emit(salu("s_lshr_b32", sT0, sWG, 3), salu("s_lshl_b32", sT0, sT0, 2), salu("s_add_u32", sT0, sT0, sW), salu("s_lshl_b32", sT0, sT0, 7),
               valu("v_lshlrev_b32", vT[0], 14, vLane), vload(V(200), vT[0], S(16, 4), sT0))
    if OPT("TXW") == "1":
        p.emit(salu("s_lshl_b32", sT0, sWG, 2), salu("s_add_u32", sT0, sT0, sW), salu("s_lshl_b32", sT0, sT0, 13),
               valu("v_lshlrev_b32", vT[0], 7, vLane), vload(V(201), vT[0], SRD_WQ, sT0), vload(V(202), vT[0], SRD_X, sT0))
    q = Prog("tmp"); setup2(q)
    g, adv = dma_batchA(1)
    rest = list(q.static); k = len(rest) // (len(g) + 1)
    p.emit(salu("s_mov_b32", sSlotW, ASLOT))
    for i, grp in enumerate(g):
        p.emit(rest[i * k:(i + 1) * k], grp)
    p.emit(adv, rest[len(g) * k:])
    p.emit(salu("s_lshl_b32", sT0, sB2, 4), salu("s_add_u32", sT0, sT0, sCT), salu("s_lshl_b32", sT0, sT0, 8), salu("s_add_u32", sFl, sT0, FLG),
           scmp("s_cmp_eq_u32", sW, 0), salu("s_cselect_b32", sT0, sFl, OOB), salu("s_mov_b64", EXEC, 1),
           vstore(V(203), V(203), SRD_WS, sT0, flags="sc0 sc1", tag="ZF"), salu("s_mov_b64", EXEC, -1))
    p.emit(wait_vm([("A", 0)]), barrier(), stamp(), diag("a0"))
    pf = [pf_load(n, i) for n in PARK[::-1] + list(range(1, NPF + 1)) for i in range(8)]
    if OPT("TWO", "1") == "1":
        tw = [[salu("s_add_u32", sSP, sTG, (i >> 2) * 4096), vload(V(160 + 4 * i, 4), vL16, SRD_WO, sSP, (i & 3) * 1024)] for i in range(8)]
        m = len(pf) + len(tw); mix = []
        if OPT("TWP", "mix") == "mix":
            for k in range(m):
                mix.append(tw.pop(0) if (tw and ((k + 1) * 8 // m > k * 8 // m)) else pf.pop(0))
        else: mix = tw + pf
        pf = mix
    if OPT("PRE", "0") == "1":
        pre = []
        for s_ in range(4):
            for j in range(4):
                pre.append([salu("s_lshl_b32", sSP, sQH, 12), salu("s_add_u32", sSP, sSP, sOb0 if s_ % 2 == 0 else sOb1),
                            salu("s_add_u32", sSP, sSP, (s_ >> 1) * 18432), vstore(V(240, 4), vL16, SRD_WS, sSP, j * 1024, flags=OSF)])
        for i in range(2): pre.append([salu("s_add_u32", sSP, sOb0, 8192 + i * 18432), vstore(V(240, 4), vL16, SRD_WS, sSP, 0, flags=OSF)])
        m = len(pf) + len(pre); mix = []; np_ = len(pre)
        for k in range(m):
            mix.append(pre.pop(0) if (pre and ((k + 1) * np_ // m > k * np_ // m)) else pf.pop(0))
        pf = mix
    PF0 = int(OPT("PF0", "1"))
    pos = [PF0 * 72 + (14 - PF0) * 72 * (2 * k + 1) // (2 * len(pf)) for k in range(len(pf))]
    PFC = int(OPT("PFC", "0"))
    if PFC:
        eps = [e for e in range(PF0, 14) if (e - PF0) % PFC == 0]
        per = -(-len(pf) // len(eps))
        pos = [eps[k // per] * 72 + int(OPT("PFP", "50")) + 2 * (k % per) for k in range(len(pf))]
    for e in range(14):
        g, adv = dma_batchA(e + 2)
        def extra(start, end, n):
            o = []
            for k, x in enumerate(pf):
                if pos[k] // 72 == e:
                    t = min(max(pos[k] % 72, 3), n - 6)
                    o += vm_fillers([x], t, t)
            if e == 2:
                o = [F([wait_vm(["ZF"]), salu("s_lshl_b32", sT0, sB2, 4), scmp("s_cmp_eq_u32", sW, 0), salu("s_cselect_b32", sT0, sT0, OOB),
                        valu("v_mov_b32", V(204), 0), valu("v_mov_b32", V(205), 1), salu("s_mov_b64", EXEC, 1),
                        vstore(V(205), V(204), SRD_DBG, sT0, flags="sc1", op="buffer_atomic_add"), salu("s_mov_b64", EXEC, -1)], 40, 44)] + o
                o.sort(key=lambda f: f.e)
            return {"pf": o} if o else {}
        p.emit(epochA(e, g, adv, int(OPT("AG0", "2")) + (14 if e == 0 else 0), int(OPT("AG1", "62")), [("A", e + 1)], extra))
    p.emit(diag("a14"))
    p.emit(epochA(14, kv_batch(0), [], 4, 60, [("A", 15)]))
    def extra15(start, end, n):
        d = {}
        w = []
        for m in (1, 2):
            if m <= NPF: w += pf_write(m, vT[2 + m])
        if w: d["pw"] = spread(w, 16, 60, slack=2)
        cv = [F(x, end[1] + 4, n - 1) for x in q_convert_seq([(4, 0)] + [(j, 0) for j in range(4)])]
        d["cv"] = cv
        return d
    g = []
    for m in (1, 2):
        if m > NPF: g += kv_batch(m)
    p.emit(epochA(15, g, [], 4, 64, [], extra15))
    mf = []; s = 0
    for t in (6, 7):
        blk, s = blockA(t, 1, rev=(t % 2 == 1), s_first=s); mf += blk
    p.emit(salu("s_lshl_b32", sT0, sB, 4), valu("v_mov_b32", V(8), 0), salu("s_mov_b64", EXEC, 1),
           vload(V(9), V(8), SRD_DBG, sT0, flags="sc1"), salu("s_mov_b64", EXEC, -1))
    fl = {}
    if NPF >= 3: fl["pw"] = spread(pf_write(3, vT[2]), 0, 15, slack=1)
    else: fl["vm"] = vm_fillers(kv_batch(3), 2, 14, slack=0)
    fl["cv"] = [F(x, 2, 15) for x in q_convert_seq([(4, 2)] + [(j, 1) for j in range(4)])]
    p.emit(interleave(mf, fl))
    reg = (gran(SG, SG), "X", True)
    p.emit(valu("v_xor_b32", vT[0], SG + 8192, vPW))
    p.emit(ds_write("ds_write_b128", vT[0], Qf(4, 0), 0, reg), ds_write("ds_write_b128", vT[0], Qf(4, 2), 1024, reg))
    p.emit(q_convert_seq([(j, s_, True) for j in range(4) for s_ in (2, 3)]))
    p.emit(valu("v_readfirstlane_b32", sT1, V(9)), scmp("s_cmp_lt_u32", sT1, 16), raw("s_cbranch_scc1 mha_gate", "branch"), label("mha_gate_ok"))
    p.emit(stamp(), wait_both([("B", 0)]), barrier(), stamp())
    reg = reg + ("own",)
    p.emit(ds_read("ds_read_b128", Qf(4, 1), vPW, SG, reg), ds_read("ds_read_b128", Qf(4, 3), vPW, SG + 1024, reg))
    if NPF >= 4: p.emit(pf_write(4, vT[2]))

def blockQ(kt, czero=False):
    js = [0, 1, 2, 3] + ([4] if kt < 2 else [])
    out = []; last = {}; first = {}; fwd = True
    for j in js:
        ss = [0, 1, 2, 3] if fwd else [3, 2, 1, 0]
        first[j] = len(out)
        for i, s in enumerate(ss):
            c = None if i else (0 if czero else Cb(j))
            out.append(mfma(St(kt, j), Kf(kt, s), Qf(j, s), c))
        last[j] = len(out) - 1
        fwd = not fwd
    return out, first, last

def blockP(b, buf, zero=False):
    out = []
    for t in (2 * b, 2 * b + 1):
        nin = mfma(Oa(t, 4), Vf(t, 0), Pf(buf, 0, 4), 0 if zero else None)
        if t % 2: out.append(nin)
        u = 0
        for j in ((0, 1, 2, 3) if t % 2 == 0 else (3, 2, 1, 0)):
            for i, k in enumerate((u, 1 - u)): out.append(mfma(Oa(t, j), Vf(t, k), Pf(buf, k, j), 0 if (zero and i == 0) else None))
            u = 1 - u
        if t % 2 == 0: out.append(nin)
    return out

def softmax_tile(kt, j, buf, e, d, ex, rest, sub=False):
    s = St(kt, j); pf = Pf(buf, kt // 2, j)[2 * (kt % 2):2 * (kt % 2) + 2]
    E = []
    for r in range(4):
        ins = [valu("v_exp_f32", s[r], s[r])]
        if sub: ins = [valu("v_add_f32", s[r], s[r], Cb(j)[0])] + ins
        E.append(F(ins, e, d))
    ex += E
    rest += [F(valu("v_add_f32", vL(j), vL(j), s[0]), e, d, [E[1]]), F(valu("v_cvt_pk_bf16_f32", pf[0], s[0], s[1]), e, d, [E[2]]),
             F(valu("v_add_f32", vL(j), vL(j), s[1]), e, d), F(valu("v_add_f32", vL(j), vL(j), s[2]), e, d, [E[3]]),
             F(valu("v_cvt_pk_bf16_f32", pf[1], s[2], s[3]), e, d), F(valu("v_add_f32", vL(j), vL(j), s[3]), e, d)]

def rdK(kt, n):
    return [ds_read("ds_read_b128", Kf(kt, s), vKa(s & 1, kt >> 1), (kt & 1) * 4096 + (s >> 1) * 512, regB(n)) for s in range(4)]
def rdV(t, n):
    return [ds_read("ds_read_b64_tr_b16", Vf(t, u)[2 * h:2 * h + 2], vVa(t & 3, u), h * 4096 + (t >> 2) * 512, regB(n))
            for u in range(2) for h in range(2)]

def rowmax(j):
    s = St(0, j); m, t = vT[2 * (j % 2)], vT[1 + 2 * (j % 2)]
    o = [valu("v_max3_f32", m, s[0], s[1], s[2]), valu("v_max3_f32", m, m, s[3], vMin(j)),
         valu("v_mov_b32", t, m), valu("v_permlane32_swap_b32", m, t), valu("v_max_f32", m, m, t),
         valu("v_mov_b32", t, m), valu("v_permlane16_swap_b32", m, t), valu("v_max_f32", m, m, t)]
    o += [valu("v_sub_f32", Cb(j)[r], 0, m) for r in range(4)]
    return o

def prologueB(p):
    for j in range(5): p.emit(valu("v_mov_b32", vMin(j), 0xff800000))
    p.emit(salu("s_mov_b32", sRetry, 0))
    p.emit(label("mha_attn_entry"))
    KALT[0] = True
    p.emit(rdK(0, 0), rdK(1, 0))
    for j in range(5): p.emit(valu("v_mov_b32", vL(j), 0))
    mf = []; st = {}; fi = {}; la = {}
    for kt in range(4):
        q, f_, l_ = blockQ(kt, czero=(kt == 0))
        st[kt] = len(mf); fi[kt] = {j: v + len(mf) for j, v in f_.items()}; la[kt] = {j: v + len(mf) for j, v in l_.items()}
        mf += q
    n = len(mf)
    mx = {}
    m0_, m1_ = [], []
    for j in range(5):
        lst = [F(x, la[0][j] + 3, fi[1][j] - 2) for x in rowmax(j)]
        (m0_ if j % 2 == 0 else m1_).extend(lst); mx[j] = lst[-1]
    ex, rest = [], []
    for j in range(5):
        k = len(ex)
        softmax_tile(0, j, 0, la[0][j] + 3, (fi[2][j] - 1) if j < 4 else n - 1, ex, rest, sub=True)
        ex[k].deps.append(mx[j])
    for j in range(5): softmax_tile(1, j, 0, la[1][j] + 3, (fi[3][j] - 1) if j < 4 else n - 1, ex, rest)
    for j in range(4): softmax_tile(2, j, 0, la[2][j] + 3, n - 1, ex, rest)
    lds = spread(rdK(2, 0), st[1] - 1, st[1] + 8) + spread(rdK(3, 0), st[2] - 1, st[2] + 6)
    lds += [F(valu("v_add_u32", vKa(s0, u), SG, vKa(s0, u)), st[2] + 8, n - 1) for u in range(2) for s0 in range(2)]
    vm = []
    KALT[0] = False
    tags = [("B", m) for m in (1, 2) if m > NPF]
    if NPF < 4: vm += [F(wait_lgkm0(), 21, 21)] + vm_fillers(kv_batch(4), 24, n - 8)
    fl = {"m0": m0_, "m1": m1_, "ex": ex, "rest": rest, "lds": lds, "vm": vm}
    p.emit(interleave(mf, fl))
    p.emit(stamp(), wait_both(tags), barrier(), stamp())

def lsum(j):
    l, t = vL(j), vT[2 + j % 2]
    return [valu("v_mov_b32", t, l), valu("v_permlane32_swap_b32", l, t), valu("v_add_f32", l, l, t),
            valu("v_mov_b32", t, l), valu("v_permlane16_swap_b32", l, t), valu("v_add_f32", l, l, t)]

_cvk = [0]
def o_convert(s, j, pk=False):
    k = _cvk[0]; _cvk[0] += 1
    T = V(16 + (k % 4) * 8, 8); Pk = V(56 + (k % 8) * 4, 4)
    o = []
    for h in range(2):
        for r in range(4): o.append(valu("v_accvgpr_read_b32", T[4 * h + r], Oa(2 * s + h, j)[r]))
    if pk:
        lp = V(148 + (j & ~1), 2)
        for r in range(0, 8, 2): o.append(valu("v_pk_mul_f32", T[r:r + 2], T[r:r + 2], lp, mods=" op_sel:[0,1] op_sel_hi:[1,1]" if j & 1 else " op_sel_hi:[1,0]"))
    else:
        for r in range(8): o.append(valu("v_mul_f32", T[r], T[r], vL(j)))
    for r in range(4): o.append(valu("v_cvt_pk_bf16_f32", Pk[r], T[2 * r], T[2 * r + 1]))
    o.append(vstore(Pk, vL16, SRD_WS, sSP, j * 1024, flags=OSF, tag="OST"))
    return o
def o_group(s, pk=False):
    o = [salu("s_lshl_b32", sSP, sQH, 12), salu("s_add_u32", sSP, sSP, sOb0 if s % 2 == 0 else sOb1)]
    if s >> 1: o.append(salu("s_add_u32", sSP, sSP, 18432))
    for j in range(4): o += o_convert(s, j, pk)
    return o

LMAX = f32(2.0 ** 24)
MSG = 1 * SG
FLAGS_LDS = MSG + 6144
regM = (gran(MSG, SG), "M", True)

def b_plan():
    ents = [m for m in range(6, 16) if m not in PARK]
    pieces = [(m, g) for m in ents for g in kv_batch(m)]
    span = float(OPT("BSPAN", "5.5"))
    plan = {e: [] for e in range(8)}
    dt = span / len(pieces)
    free = lambda m: (m - 4) // 2
    need = lambda m: 7 if m == 15 else (m - 1) // 2
    ts = []; t = 1.0
    for m, g in pieces:
        t = max(t, float(free(m))); ts.append(t); t += dt
    marg = float(OPT("BMARG", "0.3"))
    for k in range(len(ts) - 1, -1, -1):
        ts[k] = min(ts[k], need(pieces[k][0]) - marg)
        if k + 1 < len(ts): ts[k] = min(ts[k], ts[k + 1] - 0.06)
        assert ts[k] >= free(pieces[k][0]) - 1e-9, (k, ts[k])
    for t, (m, g) in zip(ts, pieces):
        plan[int(t)].append(((t - int(t)) * 0.93, g, m))
    return plan

def epochB(e):
    final = (e == 7)
    bufc, bufn = e % 2, (e + 1) % 2
    nK, nV = 2 * e + 1, (2 * e + 2 if e < 7 else 15)
    mf = []; st = {}; en = {}; fi = {}; la = {}
    if e > 0:
        st["L"] = 0; mf += blockP(3, bufn, zero=(e == 1)); en["L"] = len(mf) - 1
    VALT[0] = final
    for b in range(4):
        if not final:
            q, f_, l_ = blockQ(b)
            st["Q%d" % b] = len(mf); fi[b] = {j: v + len(mf) for j, v in f_.items()}; la[b] = {j: v + len(mf) for j, v in l_.items()}
            mf += q; en["Q%d" % b] = len(mf) - 1
        if b < 3 or final:
            st["P%d" % b] = len(mf); mf += blockP(b, bufc, zero=(e == 0)); en["P%d" % b] = len(mf) - 1
    n = len(mf)
    ex, rest = [], []
    for j in range(4): softmax_tile(3, j, bufc, -1, st["P0"] - 2, ex, rest)
    fl = {"ex": ex, "rest": rest}
    if not final:
        for j in range(5): softmax_tile(0, j, bufn, la[0][j] + 3, (fi[2][j] - 1) if j < 4 else n - 1, ex, rest)
        for j in range(5): softmax_tile(1, j, bufn, la[1][j] + 3, (fi[3][j] - 1) if j < 4 else n - 1, ex, rest)
        for j in range(4): softmax_tile(2, j, bufn, la[2][j] + 3, n - 1, ex, rest)
        vm = []
        if e == 0: mine = [(0.02 + 0.11 * i, g, 5) for i, g in enumerate(kv_batch(5))]
        else: mine = b_plan()[e]
        for k, (fr, g, m) in enumerate(mine):
            if k == 0 and len(g) == 1:
                pass
            if OPT("BTH", "5"): g.insert(len(g) - 1, raw("s_waitcnt vmcnt(%s)" % OPT("BTH", "5"), "salu"))
            t = max(3, int(fr * n))
            vm += vm_fillers([g], t, t)
        if e == 6:
            vm += vm_fillers(wo_batch(0) + wo_batch(1), int(0.48 * n), n - 8)
        fl["vm"] = vm
        if e == 5: fl["wa"] = [F(x, 10, n - 1) for x in d_addr_setup()]
        for m in PARK:
            if (m - 4) // 2 == e: fl["pw"] = spread(pf_write(m, vT[0]), 20, n - 30)
        lds = []
        last = {}
        for b in range(4):
            lo = -1 if b == 0 else en["Q%d" % (b - 1)]
            hi = st["Q%d" % b]
            kk = spread(rdK(b, nK), lo, max(lo, min(lo + 8, hi - 9)), slack=1)
            pb = ("P%d" % (b - 1)) if b else ("L" if e else None)
            lo0 = (st[pb] + 8) if pb else 0
            lo1 = en[pb] if pb else 4
            lo0 = max(lo0, kk[-1].e)
            v0 = spread(rdV(2 * b, nV), lo0, max(lo0 + 4, lo1), slack=1)
            v1 = spread(rdV(2 * b + 1, nV), lo1, lo1 + 7, slack=1)
            lds += kk + v0 + v1
            last["K%d" % b] = kk[-1]; last["V%d" % (2 * b)] = v0[-1]; last["V%d" % (2 * b + 1)] = v1[-1]
        fl["lds"] = lds
        dk = (sigB(nK + 2) - sigB(nK)) * SG
        dv = (sigB(nV + 2 if e < 6 else 15) - sigB(nV)) * SG
        ad = []
        ad += [F(valu("v_add_u32", vKa(s0, 0), dk, vKa(s0, 0)), 0, n - 1, [last["K1"]]) for s0 in range(2)]
        ad += [F(valu("v_add_u32", vVa(t, u), dv, vVa(t, u)), 0, n - 1, [last["V5"]]) for t in (0, 1) for u in range(2)]
        ad += [F(valu("v_add_u32", vKa(s0, 1), dk, vKa(s0, 1)), 0, n - 1, [last["K3"]]) for s0 in range(2)]
        ad += [F(valu("v_add_u32", vVa(t, u), dv, vVa(t, u)), 0, n - 1, [last["V%d" % (4 + t)]]) for t in (2, 3) for u in range(2)]
        fl["ad"] = ad
        need = (2 * e + 3, 2 * e + 4) if e < 6 else (15,)
        tags = [("B", m) for m in need if m > NPF and m not in PARK]
        fl["end"] = end_stream(n, tags)
        return interleave(mf, fl, margin=16)
    lds = spread(rdV(0, nV) + rdV(1, nV), -1, st["P0"] - 6)
    for b in (1, 2, 3):
        lo = en["L"] if b == 1 else en["P%d" % (b - 2)]
        lds += spread(rdV(2 * b, nV) + rdV(2 * b + 1, nV), lo, st["P%d" % b] - 6)
    fl["lds"] = lds
    R0 = rdW(0); R1 = rdW(1)
    r0 = [F(wait_vm([("W", 0)]), 4, 6)] + spread(R0, 6, 30) + [F(wait_vm([("W", 1)]), 30, 32)] + spread(R1, 32, 56)
    w0 = F(wait_lgkm0(), 38, 39, [r0[len(R0)]]); w1 = F(wait_lgkm0(), 64, 65, [r0[-1]])
    fl["wr"] = r0
    fl["vm"] = vm_fillers(wo_batch(2), 8, 36) + [w0] + vm_fillers(wo_batch(3), 46, 64) + [w1] + vm_fillers(wo_batch(4), 72, n - 2, slack=0)
    epi = []
    for j in range(5): epi += [F(x, st["P0"] - 2, n - 1, [rest[-1]]) for x in lsum(j)]
    chk = [valu("v_add_f32", vT[2], vL(0), vL(1)), valu("v_add_f32", vT[3], vL(2), vL(3)), valu("v_add_f32", vT[2], vT[2], vL(4)),
           valu("v_add_f32", vT[2], vT[2], vT[3]), salu("s_mov_b32", sT2, LMAX),
           I("v_cmp_nge_f32 vcc, %s, %s" % (sT2, vT[2]), "valu", regs_of(sT2, vT[2]), regs_of(VCC)),
           valu("v_mov_b32", Cb(4)[1], vL(4)), valu("v_xor_b32", vT[0], MSG + 8192, vPW),
           I("s_or_b32 %s, vcc_lo, vcc_hi" % sT2, "salu", regs_of(VCC), regs_of(sT2)),
           valu("v_mov_b32", vT[2], sT2), salu("s_lshl_b32", sT3, sW, 2), salu("s_add_u32", sT3, sT3, FLAGS_LDS),
           valu("v_and_b32", vT[3], 3, vLane), valu("v_lshlrev_b32", vT[3], 13, vT[3]), valu("v_add_u32", vT[3], sT3, vT[3]),
           ds_write("ds_write_b32", vT[3], vT[2], 0, regM), ds_write("ds_write_b64", vT[0], Cb(4)[0:2], 4096, regM)]
    chk += [valu("v_rcp_f32", vL(j), vL(j)) for j in range(4)]
    epi += [F(x, st["P0"], n - 1) for x in chk]
    epi += [F(x, en["P0"] + 4, n - 1) for x in o_group(0)]
    epi += [F(ds_write("ds_write_b128", vT[0], Oa(t, 4), i * 1024, regM), en["P1"] + 4, n - 1) for i, t in enumerate((2, 3))]
    epi += [F(x, en["P1"] + 4, n - 1) for x in o_group(1)]
    fl["epi"] = epi
    return interleave(mf, fl)

def epilogueB(p):
    p.emit(stamp())
    g2 = o_group(2, True)
    p.emit(g2[:20])
    for i, t in ((2, 6), (3, 7)): p.emit(ds_write("ds_write_b128", vT[0], Oa(t, 4), i * 1024, regM))
    p.emit(salu("s_add_u32", sT3, sCkv, FLAGS_LDS), valu("v_mov_b32", vT[3], sT3), valu("v_add_u32", vT[1], MSG, vPW))
    p.emit(g2[20:])
    p.emit(wait_lgkm0(), barrier())
    X = V(128, 16); ML = V(48, 2); FL = V(52, 4)
    own = regM + ("own",)
    p.emit(ds_read("ds_read_b128", FL, vT[3], 0, own))
    p.emit(ds_read("ds_read_b64", ML, vT[1], 4096, own))
    for i in range(4): p.emit(ds_read("ds_read_b128", X[4 * i:4 * i + 4], vT[1], i * 1024, own))
    p.emit(o_group(3, True))
    p.emit(valu("v_or3_b32", FL[0], FL[0], FL[1], FL[2]), valu("v_or_b32", FL[0], FL[0], FL[3]), valu("v_readfirstlane_b32", sT2, FL[0]))
    na, la_, nb, lb = Cb(4)[0], vL(4), ML[0], ML[1]
    mn, fa, fb = vT[2], vT[3], vT[4]
    p.emit(valu("v_min_f32", mn, na, nb), valu("v_sub_f32", fa, mn, na), valu("v_sub_f32", fb, mn, nb),
           valu("v_exp_f32", fa, fa), valu("v_exp_f32", fb, fb))
    p.emit(salu("s_andn2_b32", sT2, sT2, sRetry), scmp("s_cmp_lg_u32", sT2, 0), raw("s_cbranch_scc1 mha_fallback", "branch"))
    p.emit(valu("v_mul_f32", la_, la_, fa), valu("v_fmac_f32", la_, lb, fb),
           valu("v_rcp_f32", la_, la_), salu("s_add_u32", sSP, sOb0, 8192), valu("v_mul_f32", fa, fa, la_), valu("v_mul_f32", fb, fb, la_))
    for i, s in enumerate((0, 2)):
        T = V(96 + i * 8, 8); Pk = V(112 + i * 4, 4)
        for h in range(2):
            for r in range(4): p.emit(valu("v_accvgpr_read_b32", T[4 * h + r], Oa(2 * s + h, 4)[r]))
        for r in range(8): p.emit(valu("v_mul_f32", T[r], T[r], fa))
        for r in range(8): p.emit(valu("v_fmac_f32", T[r], X[8 * i + r], fb))
        for r in range(4): p.emit(valu("v_cvt_pk_bf16_f32", Pk[r], T[2 * r], T[2 * r + 1]))
        p.emit(vstore(Pk, vL16, SRD_WS, sSP, 0, flags=OSF, tag="OST"))
        if i == 0: p.emit(salu("s_add_u32", sSP, sSP, 18432))

def phaseB(p):
    prologueB(p)
    for e in range(8): p.emit(diag("b%d" % e), epochB(e))
    epilogueB(p)

def fallback():
    p = Prog("mha_fb"); p.hoist = False
    p.emit(label("mha_gate"), salu("s_mov_b32", sT2, 1 << 14), salu("s_mov_b64", EXEC, 1), label("mha_gate_l"))
    p.emit(raw("s_sleep 64"), vload(V(9), V(8), SRD_DBG, sT0, flags="sc1"), wait_all_vm(), valu("v_readfirstlane_b32", sT1, V(9)),
           salu("s_sub_u32", sT2, sT2, 1), scmp("s_cmp_eq_u32", sT2, 0), raw("s_cbranch_scc1 mha_gate_x", "branch"),
           scmp("s_cmp_lt_u32", sT1, 16), raw("s_cbranch_scc1 mha_gate_l", "branch"))
    p.emit(label("mha_gate_x"), salu("s_mov_b64", EXEC, -1), raw("s_branch mha_gate_ok", "branch"))
    p.emit(label("mha_fallback"), wait_all_vm(), wait_lgkm0(), barrier())
    p.emit(salu("s_mov_b32", sRetry, -1))
    c_, g_ = vT[2], vT[3]
    p.emit(valu("v_and_b32", c_, 15, vLane), valu("v_lshrrev_b32", g_, 4, vLane), valu("v_lshlrev_b32", c_, 8, c_), valu("v_lshl_add_u32", c_, g_, 4, c_),
           salu("s_lshl_b32", sT0, sQH, 6), valu("v_add_u32", vT[0], sT0, c_), valu("v_xor_b32", vT[1], 64, vT[0]))
    p.emit(salu("s_lshl_b32", sT0, sQH, 13), salu("s_sub_u32", sT1, sKVbase, sT0))
    def body(it):
        o = [vload(Kf(0, s_), vT[s_ & 1], SRD_K, sT1, (s_ >> 1) * 128) for s_ in range(4)]
        o += blockQ(0, czero=True)[0]
        for j in range(5):
            st_ = St(0, j)
            o += [valu("v_max3_f32", vMin(j), vMin(j), st_[0], st_[1]), valu("v_max3_f32", vMin(j), vMin(j), st_[2], st_[3])]
        o.append(salu("s_add_u32", sT1, sT1, 4096))
        return o
    p.loop(32, body, sCNT)
    for t2 in range(4):
        for u in range(2): p.emit(valu("v_add_u32", vVa(t2, u), 2 * SG, vVa(t2, u)))
    for m in range(4): p.emit(kv_batch(m))
    for m in PARK:
        for i in range(8): p.emit(pf_load(m, i))
    p.emit(wait_all_vm(), barrier(), raw("s_branch mha_attn_entry", "branch"))
    return p

def accD(j, t): return V(16 + (j * 4 + t) * 4, 4)
SEQ = [(t, j) for t in range(14) for j in range(9)] + [(t, j) for j in range(9) for t in (14, 15)]
SLOT = {tj: i % 9 for i, tj in enumerate(SEQ)}
def Of(t, j, s): return A((SLOT[(t, j)] * 2 + s) * 4, 4)
WBLK = [A(192, 32), A(224, 32), A(160, 32), A(72, 32), A(104, 32), V(186, 32), V(218, 32)]
def Wf(t, tt, s): return WBLK[t % 7][(tt * 2 + s) * 4:(tt * 2 + s) * 4 + 4]
vO = [V(160 + i) for i in range(5)]
vWa = [V(5 + i) for i in range(4)]
vRw = [V(170 + i) for i in range(6)]
vRr = [V(176 + i) for i in range(6)]
vOut = V(182)
OFLAGS = OPT("OF", "sc1")
SIGW = [3, 4, 0, 3, 4, 1, 2, 0, 3, 4, 1, 2, 0, 3, 4, 1]
def regW(t): return (gran(SIGW[t] * SG, SG), ("W", t), False)
sOrd, sObase, sKt = sLw, sWOend, sDw
_wgrp = [0]

def d_addr_setup():
    g_, r_, cp, r8 = vT[1], vT[2], vT[3], vT[4]
    o = [valu("v_lshrrev_b32", g_, 4, vLane), valu("v_bfe_u32", r_, vLane, 2, 2), valu("v_and_b32", cp, 3, vLane),
         valu("v_and_b32", r8, 1, g_), valu("v_lshl_add_u32", r8, r8, 2, r_),
         valu("v_lshrrev_b32", r_, 1, r8), valu("v_lshlrev_b32", r_, 5, r_), valu("v_lshl_add_u32", r_, cp, 3, r_),
         valu("v_lshl_add_u32", r_, r8, 7, r_), valu("v_lshrrev_b32", g_, 1, g_), valu("v_lshl_add_u32", r_, g_, 10, r_),
         valu("v_add_u32", vWa[0], sCkv, r_)]
    o += [valu("v_xor_b32", vWa[i], i << 5, vWa[0]) for i in range(1, 4)]
    o += [salu("s_lshl_b32", sWOoff, sW, 21), salu("s_lshl_b32", sT0, sCT, 7), salu("s_add_u32", sWOoff, sWOoff, sT0),
          salu("s_lshl_b32", sT0, sB2, 7), salu("s_lshl_b32", sT1, sW, 5), salu("s_add_u32", sT0, sT0, sT1), salu("s_mul_i32", sObase, sT0, 9216)]
    DS = OPT("DSKEW", "2")
    if DS == "0": o += [salu("s_mov_b32", sOrd, 0)]
    elif DS == "1": o += [salu("s_and_b32", sOrd, sB2, 3)]
    else: o += [salu("s_xor_b32", sOrd, sB2, sCT), salu("s_and_b32", sOrd, sOrd, 3)]
    _wgrp[0] = 0
    return o
def kstep(t, dst):
    if OPT("DPH", "0") == "1": return [salu("s_add_u32", dst, sW, t), salu("s_and_b32", dst, dst, 15), salu("s_xor_b32", dst, dst, sOrd)]
    return [salu("s_xor_b32", dst, sOrd, t)]
def wo_batch(t):
    g = []
    for i in range(8):
        if i: pre = [salu("s_add_u32", M0, M0, 1024), salu("s_add_u32", sSO, sSO, 16384)]
        else: pre = kstep(t, sSO) + [salu("s_lshl_b32", sSO, sSO, 17), salu("s_add_u32", sSO, sSO, sWOoff), salu("s_add_u32", M0, sCkv, SIGW[t] * SG)]
        g.append(pre + [dma(vOffX, SRD_WO, sSO, flags=OPT("WOF"), tag=("W", t), region=regW(t))])
    return g
def sOo(t): return sOoff if t % 2 == 0 else sOffA
def o_base(t): return kstep(t, sKt) + [salu("s_mul_i32", sKt, sKt, 18432), salu("s_add_u32", sOo(t), sObase, sKt)]
def o_load(t, j, s):
    o = s * 9216 + j * 1024
    return vload(Of(t, j, s), vO[o >> 12], SRD_WS, sOo(t), o & 4095, flags=OFLAGS)
def rdW(t):
    grp = SIGW[t] >> 1
    o = []
    if grp != _wgrp[0]:
        o += [valu("v_add_u32", vWa[i], (grp - _wgrp[0]) * 2 * SG, vWa[i]) for i in range(4)]
        _wgrp[0] = grp
    return o + [ds_read("ds_read_b64_tr_b16", Wf(t, tt, s)[2 * h:2 * h + 2], vWa[tt], (SIGW[t] & 1) * SG + s * 4096 + h * 2048, regW(t))
                for tt in range(4) for s in range(2) for h in range(2)]
def red_write(j, tt):
    reg = (gran((j >> 1) * SG, SG), "R", True, "own")
    return ds_write("ds_write_b128", vRw[(j >> 2) * 2 + (tt & 1)], accD(j, tt), ((j >> 1) & 1) * SG + (j & 1) * 4096 + (tt >> 1) * 128, reg)

NPRE = int(OPT("NPRE", "12"))
def stepD(t):
    units = SEQ[9 * t:9 * t + 9]
    mf = []; en = []; s = 0
    for i, (tt_, j) in enumerate(units):
        for tt in (range(4) if (9 * t + i) % 2 == 0 else range(3, -1, -1)):
            for q, k in enumerate((s, 1 - s)): mf.append(mfma(accD(j, tt), Wf(tt_, tt, k), Of(tt_, j, k), 0 if (tt_ == 0 and q == 0) else None))
            s = 1 - s
        en.append(len(mf) - 1)
    n = len(mf)
    fl = {}
    tr = t + 6
    if t >= 1 and tr <= 15:
        fl["lds"] = [F(wait_vm([("W", tr)]), 8, 10)] + spread(rdW(tr), 10, n - 16) + [F(wait_lgkm0(), n - 4, n - 3)]
    vm = []
    if t < 15:
        b = o_base(t + 1) if t < 14 else []
        if t == 13: b += o_base(15)
        vm += [F(x, min(i, 6), 6) for i, x in enumerate(b)]
        for i in range(9):
            nt, nj = SEQ[9 * t + 9 + i]
            vm += [F(o_load(nt, nj, 0), en[i], n - 1), F(o_load(nt, nj, 1), min(en[i] + 3, n - 1), n - 1)]
    fl["vm"] = vm
    tw = WSCHED.get(t)
    if tw is not None: fl["w"] = vm_fillers(wo_batch(tw), 12, n - 4)
    if t >= 14:
        red = [F(x, -1 + 4 * i, n - 1) for i, x in enumerate(stepD.carry)]; stepD.carry = []
        for i, (tt_, j) in enumerate(units):
            if tt_ == 15:
                for tt in range(4):
                    e = en[i] + 4 + 4 * tt
                    if e < n - 1 or t == 15: red.append(F(red_write(j, tt), min(e, n - 1), n - 1))
                    else: stepD.carry.append(red_write(j, tt))
        fl["red"] = red
    return interleave(mf, fl)
stepD.carry = []
WSCHED = {}

def phaseD(p):
    p.emit(wait_vm([("W", 2)]))
    p.emit(wo_batch(5), wo_batch(6))
    p.emit(rdW(2))
    for i in range(5): p.emit(valu("v_add_u32", vO[i], i * 4096, vL16))
    p.emit(salu("s_lshl_b32", sT0, sB, 12), salu("s_add_u32", sT0, sT0, FLG), scmp("s_cmp_eq_u32", sW, 0), salu("s_cselect_b32", sT0, sT0, OOB),
           valu("v_lshlrev_b32", V(184), 8, vLane), valu("v_mov_b32", V(185), 1))
    p.emit(wait_vm(["OST"]), barrier())
    p.emit(salu("s_mov_b64", EXEC, 0xffff), vstore(V(185), V(184), SRD_WS, sT0, flags="sc1", op="buffer_atomic_add"), salu("s_mov_b64", EXEC, -1))
    p.emit(stamp())
    def more(t):
        return wo_batch(t) if t < NPRE else []
    rest = [t for t in range(7, 16) if t >= NPRE]
    st_ = 0
    for t in rest:
        st_ = max(st_, t - 10, 0); WSCHED[st_] = t; assert st_ <= t - 7; st_ += int(OPT("WGAP", "1"))
    g_ = vT[2]
    ra = [valu("v_lshrrev_b32", g_, 4, vLane),
          valu("v_and_b32", vT[0], 15, vLane), valu("v_and_b32", vT[1], 7, vLane), valu("v_xor_b32", vT[4], vT[1], g_),
          valu("v_lshlrev_b32", vT[4], 4, vT[4]), valu("v_lshl_add_u32", vT[4], vT[0], 8, vT[4]), valu("v_add_u32", vRw[0], sCkv, vT[4]),
          valu("v_xor_b32", vRw[1], 64, vRw[0])]
    ra += [valu("v_add_u32", vRw[i], 2 * SG, vRw[i - 2]) for i in range(2, 6)]
    ra += [valu("v_lshrrev_b32", vT[0], 3, vLane), valu("v_lshlrev_b32", vT[4], 1, vT[1]), valu("v_xor_b32", vT[4], vT[4], vT[0]),
           valu("v_lshlrev_b32", vT[4], 4, vT[4]), salu("s_lshl_b32", sT0, sW, 3), valu("v_add_u32", vT[0], sT0, vT[0]),
           valu("v_lshl_add_u32", vRr[0], vT[0], 8, vT[4]), valu("v_xor_b32", vRr[1], 16, vRr[0])]
    ra += [valu("v_add_u32", vRr[i], 2 * SG, vRr[i - 2]) for i in range(2, 6)]
    ra += [valu("v_lshlrev_b32", vOut, 11, vT[0]), valu("v_lshl_add_u32", vOut, vT[1], 4, vOut), valu("v_mov_b32", V(184), 0)]
    pl = [salu("s_mov_b64", EXEC, 1), vload(V(183), V(184), SRD_WS, sFl, flags="sc1"), salu("s_mov_b64", EXEC, -1)]
    p.emit(rdW(3), wait_both([], lg=16), more(7), rdW(4), ra, wait_both([], lg=16), more(8))
    p.emit(wait_vm([("W", 5)]), rdW(5), wait_both([], lg=16), more(9))
    p.emit(wait_vm([("W", 6)]), rdW(6), wait_both([], lg=16), more(10), pl, wait_lgkm0(), more(11))
    p.emit(o_base(0), stamp())
    p.emit(valu("v_readfirstlane_b32", sT1, V(183)), scmp("s_cmp_ge_u32", sT1, 16), raw("s_cbranch_scc1 mha_polled", "branch"))
    p.emit(salu("s_mov_b32", sPoll, 1 << 17), salu("s_mov_b64", EXEC, 1))
    p.emit(label("mha_poll"))
    p.emit(raw("buffer_load_dword v183, v184, %s, %s offen sc1" % (SRD_WS, sFl), "other"), raw("s_waitcnt vmcnt(0)", "other"))
    p.emit(valu("v_readfirstlane_b32", sT1, V(183)), scmp("s_cmp_ge_u32", sT1, 16), raw("s_cbranch_scc1 mha_pollok", "branch"))
    p.emit(raw("s_sleep %s" % OPT("SLP", "4")), salu("s_sub_u32", sPoll, sPoll, 1), scmp("s_cmp_lg_u32", sPoll, 0), raw("s_cbranch_scc1 mha_poll", "branch"))
    p.emit(label("mha_pollok"), salu("s_mov_b64", EXEC, -1))
    p.emit(label("mha_polled"), stamp(), diag("d"))
    for j in range(9): p.emit(o_load(0, j, 0), o_load(0, j, 1))
    for t in range(16):
        p.emit(stepD(t))
        if t % 2: p.emit(stamp())
    p.emit(salu("s_mul_i32", sT0, sB2, 294912), salu("s_lshl_b32", sT1, sCT, 7), salu("s_add_u32", sT0, sT0, sT1))
    p.emit(wait_lgkm0(), barrier(), stamp())
    def buf(rd, i, h): return V(16 + (rd % 4) * 32 + i * 8 + h * 4, 4)
    def reads(rd):
        reg = (gran(rd * SG, SG), "R", True)
        return [ds_read("ds_read_b128", buf(rd, i, h), vRr[(rd >> 1) * 2 + h], (rd & 1) * SG + i * 8192, reg) for i in range(4) for h in range(2)]
    p.emit(reads(0))
    for rd in range(5):
        if rd + 1 < 5: p.emit(reads(rd + 1))
        if rd == 4: p.emit(scmp("s_cmp_ge_u32", sW, 2), raw("s_cbranch_scc1 mha_fin", "branch"))
        b0 = V(16 + (rd % 4) * 32, 32)
        for r in range(0, 8, 2): p.emit(valu("v_pk_add_f32", b0[r:r + 2], b0[r:r + 2], b0[8 + r:10 + r]))
        for r in range(0, 8, 2): p.emit(valu("v_pk_add_f32", b0[16 + r:18 + r], b0[16 + r:18 + r], b0[24 + r:26 + r]))
        for r in range(0, 8, 2): p.emit(valu("v_pk_add_f32", b0[r:r + 2], b0[r:r + 2], b0[16 + r:18 + r]))
        Pk = V(192 + rd * 4, 4)
        for r in range(4): p.emit(valu("v_cvt_pk_bf16_f32", Pk[r], b0[2 * r], b0[2 * r + 1]))
        p.emit(vstore(Pk, vOut, SRD_OUT, sT0, flags=OPT("OUTF", "sc1")))
        if rd < 4: p.emit(salu("s_add_u32", sT0, sT0, 32 * 2048))
    p.emit(label("mha_fin"), diag("end"))

KNAME = "standalone__mha_block_cached__near_ridge_kernel"
def build():
    k = Prog("mha"); setup(k)
    phaseA(k); phaseB(k); k.emit(stamp())
    phaseD(k); k.emit(stamp_store(32 << 20))
    k.emit(label("mha_end"), raw("s_endpgm"))
    fb = fallback()
    hdr = open("standalone__mha_block_cached__near_ridge.s.ref").read().split("; Override launch")[0]
    out = hdr
    out += "; @launch grid=(256,1,1) block=(256,1,1) lds=163840\n"
    out += '.amdgcn_target "amdgcn-amd-amdhsa--gfx950"\n.text\n'
    t = k.text()
    print(k.stats(), "est cycles", est_cycles([x for _, x in k.expanded(k.trace)]))
    out += ".globl %s\n.p2align 8\n.type %s,@function\n%s:\n%s" % (KNAME, KNAME, KNAME, t)
    out += "mha_code_end:\n" + fb.text()
    out += '.section .rodata,"a"\n.p2align 6\n' + kernel_desc(KNAME, 512, 102, 256)
    return out

if __name__ == "__main__":
    if "--stamps" in sys.argv:
        sys.argv.remove("--stamps"); STAMPS = True
    dst = sys.argv[1] if len(sys.argv) > 1 else "standalone__mha_block_cached__near_ridge.s"
    open(dst, "w").write(build())
```

```python
import struct, sys, os
from fw import *
from asmlib import kernel_desc
OPT = lambda k, d="": os.environ.get(k, d)

def f32(x): return struct.unpack("<I", struct.pack("<f", x))[0]
CSCALE = f32(1.4426950408889634 / (128 ** 0.5))

sWG = S(2)
sB2 = S(3)
SRD_X, SRD_WQ, SRD_K, SRD_V = S(4, 4), S(8, 4), S(12, 4), S(16, 4)
SRD_WS, SRD_WO, SRD_OUT, SRD_DBG = S(20, 4), S(24, 4), S(28, 4), S(32, 4)
PTR = S(36, 16)
sLINK = S(52, 2)
sTG, sKVend = S(54), S(55)
sW, sHD, sQH, sB, sHP = S(56), S(57), S(58), S(59), S(60)
sCNT = S(61)
sT0, sT1, sT2, sT3 = S(62), S(63), S(64), S(65)
sEX9 = S(66, 2)
sXoff, sX9off, sWoff = S(68), S(69), S(70)
sCx, sCx9, sCw = S(71), S(72), S(73)
sSlotR, sSlotW, sDelta = S(74), S(75), S(76)
sKVbase, sCkv = S(77), S(78)
sKs, sVs, sWa, sWb, sDk, sDv = S(79), S(80), S(81), S(82), S(83), S(84)
sOffA, sOffB = S(85), S(86)
sOb0, sOb1 = S(87), S(88)
sSC = S(89)
sSP = S(90)
sSO = S(91)
sOoff, sWOoff, sCT, sLw = S(92), S(93), S(94), S(95)
sC1 = S(96)
sFl = S(46)
sSC2 = S(44, 2)
sRot = S(47)
sRetry, sWOend, sPoll, sDw = S(66), S(67), S(68), S(69)

OOB = 0x10000000
ASLOT = 51200
XBYTES = 18432
SG = 32768
FLG = 24 << 20
KVFLAGS = OPT("KVF", "nt")
NPF = int(OPT("NPF", "2"))
assert NPF <= 2
OSF = OPT("OSF", "sc1")
DP = int(OPT("DP", "0"))
WFIN = int(OPT("WFIN", "5"))
NPRE = int(OPT("NPRE", "12"))

vLane = V(0)
vOffX, vOffW, vOffKV, vL16 = V(1), V(2), V(3), V(4)
vXa = [V(5), V(6), V(7), V(8)]
vWb = V(9)
vT = [V(10), V(11), V(12), V(13), V(14), V(15)]
vPW, vTch = V(254), V(255)
vOffKV1 = V(15)
def accA(t, j):
    if j < 4: return V(16 + (t * 4 + j) * 4, 4)
    return V(144 + {0: 0, 1: 1, 4: 2, 5: 3}[t] * 4, 4)
def Bf(buf, j, s): return A(buf * 40 + (j * 2 + s) * 4, 4)
def Af(t, s): return A(80 + (t % 4) * 8 + s * 4, 4)
def Qf(j, s): return V(160 + (j * 4 + s) * 4, 4)
PARK = [int(x) for x in OPT("PARK", "8,12").split(",") if x]
PFR = {1: A(120, 32), 2: A(152, 32)}
for _i, _n in enumerate(PARK): PFR[_n] = A(192 + 32 * _i, 32)
def St(kt, j): return V(16 + (kt % 2) * 20 + j * 4, 4)
def Pf(buf, u, j): return V(56 + buf * 36 + (u * 5 + j) * 4, 4)
def Cb(j): return V(128 + 4 * j, 4)
def vL(j): return V(148 + j)
def vMin(j): return V(153 + j)
def Oa(t, j): return A((t * 5 + j) * 4, 4)
KALT = [False]; VALT = [False]
def Kf(kt, s): return A(160 + (16 if (KALT[0] and kt % 2) else 0) + s * 4, 4)
def Vf(t, u): return A((160 if (VALT[0] and (t >> 1) % 2 == 0) else 176) + (t % 2) * 8 + u * 4, 4)
def vKa(s0, u): return V(240 + s0 * 2 + u)
def vVa(t2, u): return V(244 + t2 * 2 + u)
NINTH_T = (0, 1, 4, 5)

STAMPS = False
def stamp():
    if not STAMPS: return []
    return [raw("s_memrealtime s[100:101]"), raw("s_memtime s[98:99]"), wait_lgkm0(), raw("s_mov_b32 s101, m0"), raw("s_mov_b32 m0, s97"),
            raw("v_writelane_b32 v252, s100, m0", "valu"), raw("v_writelane_b32 v253, s98, m0", "valu"), raw("s_add_u32 s97, s97, 1"),
            raw("s_mov_b32 m0, s101"), raw("s_nop 0")]
DIAG = OPT("DIAG")
def diag_start():
    return [raw("s_memrealtime s[98:99]")] if DIAG else []
def diag(point):
    if not DIAG or DIAG.split(":")[0] != point: return []
    return [label("mha_diag"), raw("s_memrealtime s[100:101]"), wait_lgkm0(), raw("s_sub_u32 s100, s100, s98"),
            raw("s_cmp_lt_u32 s100, %s" % DIAG.split(":")[1]), raw("s_cbranch_scc1 mha_diag", "branch")]
def stamp_init():
    if not STAMPS: return []
    return [raw("s_mov_b32 s97, 0"), raw("v_mov_b32 v252, 0", "valu"), raw("v_mov_b32 v253, 0", "valu")] + stamp()
def stamp_store(base):
    if not STAMPS: return []
    o = [raw("s_mov_b64 exec, -1"), wait_all_vm()] + stamp()
    o += srd(SRD_DBG, 7, 1 << 28)
    o += [salu("s_lshl_b32", sT0, sWG, 2), salu("s_add_u32", sT0, sT0, sW), salu("s_lshl_b32", sT0, sT0, 9), salu("s_add_u32", sT0, sT0, base),
          valu("v_lshlrev_b32", vT[0], 3, vLane), raw("s_nop 4"), vstore(V(252, 2), vT[0], SRD_DBG, sT0)]
    return o

def srd(dst, ptr_idx, nbytes):
    return [salu("s_mov_b32", dst[0], PTR[2 * ptr_idx]), salu("s_mov_b32", dst[1], PTR[2 * ptr_idx + 1]),
            salu("s_mov_b32", dst[2], nbytes), salu("s_mov_b32", dst[3], 0x20000)]

def gran(lo, n): return list(range(lo // 2048, (lo + n + 2047) // 2048))
def regA(st): return (gran((st % 3) * ASLOT, ASLOT), ("A", st), True)
def sigB(n): return (n + 2) % 5
def regB(n): return (gran(sigB(n) * SG, SG), ("B", n), True)
def regBw(n): return regB(n) + ("own",)

def vm_fillers(groups, g0, g1, slack=2):
    out = []; n = len(groups)
    for i, grp in enumerate(groups):
        t = g0 + (g1 - g0) * i // max(1, n)
        isv = [any(y.kind in VM for y in flatten([x])) for x in grp]
        k = isv.index(True) if True in isv else len(grp) - 1
        for q, x in enumerate(grp):
            e = max(0, t + q - k)
            out.append(F(x, e, max(e, t) + slack))
    return out

def end_stream(n, tags, loop=False, lg=0):
    o = []
    if loop: o += [F(loopctl(), n - 5, n - 5)] + ([] if STAMPS else [F(loopcmp(), n - 4, n - 4)])
    o += [F(wait_both(tags, lg), n - 3, n - 3), F([barrier()] + stamp(), n - 2, n - 2)]
    return o

def setup(p):
    p.emit(scmp("s_cmp_ge_u32", sWG, 256), raw("s_cbranch_scc1 mha_end", "branch"))
    p.emit(diag_start(), raw("s_load_dwordx16 %s, s[0:1], 0" % PTR, wr=[PTR]))
    p.emit(valu("v_lshrrev_b32", vT[0], 6, V(0)), valu("v_and_b32", vLane, 63, V(0)))
    p.emit(valu("v_readfirstlane_b32", sW, vT[0]))
    p.emit(valu("v_lshlrev_b32", vL16, 4, vLane))
    p.emit(valu("v_lshrrev_b32", vT[2], 4, vLane), valu("v_lshlrev_b32", vT[3], 1, vT[2]),
           valu("v_and_b32", vT[1], 7, vLane), valu("v_xor_b32", vT[1], vT[1], vT[3]), valu("v_lshlrev_b32", vT[1], 4, vT[1]))
    p.emit(valu("v_lshrrev_b32", vT[4], 3, vLane))
    p.emit(valu("v_lshl_add_u32", vOffX, vT[4], 11, vT[1]))
    p.emit(salu("s_lshr_b32", sHD, sW, 1), salu("s_and_b32", sQH, sW, 1))
    p.emit(salu("s_and_b32", sT0, sWG, 7), salu("s_lshr_b32", sT1, sWG, 3))
    p.emit(salu("s_and_b32", sB, sT0, 1), salu("s_lshl_b32", sB, sB, 3), salu("s_and_b32", sT2, sT1, 7), salu("s_add_u32", sB, sB, sT2))
    p.emit(salu("s_lshr_b32", sHP, sT0, 1), salu("s_lshl_b32", sHP, sHP, 2), salu("s_lshr_b32", sT2, sT1, 3), salu("s_add_u32", sHP, sHP, sT2))
    p.emit(salu("s_mul_i32", sT0, sB, 294912))
    p.emit(salu("s_lshl_b32", sT1, sW, 16), salu("s_add_u32", sXoff, sT0, sT1))
    p.emit(salu("s_add_u32", sT1, sHD, 16), salu("s_lshl_b32", sCx9, sT1, 10), salu("s_lshl_b32", sT1, sT1, 14), salu("s_add_u32", sX9off, sT0, sT1))
    p.emit(salu("s_lshl_b32", sCx, sW, 12))
    p.emit(salu("s_lshl_b32", sWoff, sQH, 16), salu("s_lshl_b32", sT1, sHP, 9), salu("s_add_u32", sWoff, sWoff, sT1),
           salu("s_lshl_b32", sT1, sHD, 8), salu("s_add_u32", sWoff, sWoff, sT1))
    p.emit(salu("s_lshl_b32", sCw, sHD, 14), salu("s_lshl_b32", sT1, sQH, 11), salu("s_add_u32", sCw, sCw, sT1), salu("s_add_u32", sCw, sCw, XBYTES))
    SK = OPT("SKEW", "6")
    if SK != "0":
        if SK == "1":
            p.emit(salu("s_lshl_b32", sT1, sB, 1), salu("s_lshl_b32", sT2, sHP, 2), salu("s_xor_b32", sT1, sT1, sT2))
        elif SK == "2":
            p.emit(salu("s_lshl_b32", sT1, sB, 1), salu("s_lshr_b32", sT2, sB, 3), salu("s_or_b32", sT1, sT1, sT2),
                   salu("s_lshl_b32", sT2, sHP, 2), salu("s_xor_b32", sT1, sT1, sT2), salu("s_lshr_b32", sT2, sHP, 2), salu("s_xor_b32", sT1, sT1, sT2))
        elif SK == "3":
            p.emit(salu("s_lshl_b32", sT2, sHP, 1), salu("s_xor_b32", sT1, sB, sT2), salu("s_and_b32", sT1, sT1, 7))
        elif SK == "6":
            p.emit(salu("s_xor_b32", sT1, sB, sHP), salu("s_max_u32", sKs, sT1, DP), salu("s_mov_b32", sVs, sXoff), salu("s_mov_b32", sWa, sX9off),
                   salu("s_mov_b32", sWb, sWoff))
            if DP: p.emit(salu("s_mov_b32", sT1, 0))
        elif SK in ("4", "5"):
            p.emit(salu("s_xor_b32", sT1, sB, sHP), salu("s_and_b32", sT1, sT1, 3 if SK == "4" else 1))
        p.emit(salu("s_and_b32", sT1, sT1, 15), salu("s_lshl_b32", sT2, sT1, 7), salu("s_add_u32", sXoff, sXoff, sT2), salu("s_add_u32", sX9off, sX9off, sT2),
               salu("s_lshl_b32", sT2, sT1, 19), salu("s_add_u32", sWoff, sWoff, sT2))
    p.emit(scmp("s_cmp_eq_u32", sQH, 0), salu("s_cselect_b32", sEX9[0], -1, 0), salu("s_cselect_b32", sEX9[1], 0, -1))
    p.emit(salu("s_lshl_b32", sT1, sQH, 2), valu("v_or_b32", vT[3], sT1, vT[2]), valu("v_lshlrev_b32", vT[3], 1, vT[3]),
           valu("v_and_b32", vT[4], 15, vLane), valu("v_xor_b32", vT[3], vT[3], vT[4]), valu("v_lshlrev_b32", vT[3], 4, vT[3]),
           valu("v_lshl_add_u32", vOffW, vT[2], 13, vT[3]))
    p.emit(wait_lgkm0(), stamp_init())
    p.emit(srd(SRD_X, 0, 16 * 144 * 2048), srd(SRD_WQ, 3, 1024 * 8192))

def setup2(p):
    p.emit(srd(SRD_K, 1, 1 << 26), srd(SRD_V, 2, 1 << 26), srd(SRD_WS, 7, FLG + 65536))
    p.emit(srd(SRD_WO, 4, 4096 * 2048), srd(SRD_OUT, 5, 16 * 144 * 2048), srd(SRD_DBG, 6, 256))
    p.emit(valu("v_lshrrev_b32", vT[3], 1, vT[4]), valu("v_and_b32", vT[3], 3, vT[3]), valu("v_lshlrev_b32", vT[3], 1, vT[3]),
           valu("v_xor_b32", vT[3], vT[3], vT[2]), valu("v_lshlrev_b32", vT[3], 4, vT[3]))
    p.emit(valu("v_lshrrev_b32", vT[5], 2, vT[4]), valu("v_lshlrev_b32", vT[5], 10, vT[5]), valu("v_and_b32", vT[0], 3, vT[4]),
           valu("v_lshl_add_u32", vT[5], vT[0], 7, vT[5]), valu("v_add_u32", vT[5], vT[5], vT[3]))
    p.emit(salu("s_lshl_b32", sT0, sHD, 14), salu("s_add_u32", sT0, sT0, 2 * SG), valu("v_add_u32", vT[5], sT0, vT[5]))
    p.emit(salu("s_mul_i32", sT1, sQH, 8192 + 64), valu("v_xor_b32", vKa(0, 0), sT1, vT[5]))
    p.emit(valu("v_xor_b32", vKa(0, 1), 8192, vKa(0, 0)), valu("v_xor_b32", vKa(1, 0), 64, vKa(0, 0)), valu("v_xor_b32", vKa(1, 1), 64, vKa(0, 1)))
    p.emit(valu("v_lshl_add_u32", vT[3], vT[4], 7, vT[3]))
    p.emit(salu("s_lshl_b32", sT1, sQH, 13), valu("v_add_u32", vXa[0], sT1, vT[3]),
           valu("v_xor_b32", vXa[1], 64, vXa[0]), valu("v_add_u32", vXa[2], 128 * 128, vT[3]), valu("v_xor_b32", vXa[3], 64, vXa[2]))
    r_, cp = vT[0], vT[1]
    p.emit(valu("v_bfe_u32", r_, vLane, 2, 2), valu("v_and_b32", cp, 3, vLane))
    p.emit(valu("v_and_b32", vT[3], 1, vT[2]), valu("v_lshl_add_u32", vT[3], vT[3], 2, r_))
    p.emit(salu("s_lshl_b32", sT1, sQH, 1), valu("v_xor_b32", vT[5], sT1, vT[3]), valu("v_lshlrev_b32", vT[5], 5, vT[5]),
           valu("v_lshl_add_u32", vT[5], cp, 3, vT[5]), valu("v_lshl_add_u32", vT[4], vT[2], 3, r_), valu("v_lshl_add_u32", vT[5], vT[4], 8, vT[5]))
    p.emit(salu("s_lshl_b32", sT0, sHD, 14), salu("s_add_u32", sT0, sT0, XBYTES), valu("v_add_u32", vWb, sT0, vT[5]))
    p.emit(valu("v_lshrrev_b32", vT[4], 1, vT[3]), valu("v_xor_b32", vT[4], sT1, vT[4]), valu("v_lshlrev_b32", vT[4], 5, vT[4]),
           valu("v_lshl_add_u32", vT[4], cp, 3, vT[4]), valu("v_lshl_add_u32", vT[4], r_, 7, vT[4]),
           valu("v_lshl_add_u32", vT[4], vT[2], 10, vT[4]))
    p.emit(salu("s_lshl_b32", sCkv, sW, 13), salu("s_add_u32", sT0, sCkv, 4 * SG), valu("v_add_u32", vVa(0, 0), sT0, vT[4]))
    for t2 in range(4):
        if t2: p.emit(valu("v_xor_b32", vVa(t2, 0), t2 << 5, vVa(0, 0)))
        p.emit(valu("v_xor_b32", vVa(t2, 1), 8192, vVa(t2, 0)))
    p.emit(salu("s_lshl_b32", sT0, sB, 5), salu("s_lshl_b32", sT1, sHP, 1), salu("s_add_u32", sT0, sT0, sT1), salu("s_add_u32", sT0, sT0, sHD))
    p.emit(salu("s_lshl_b32", sKVbase, sT0, 17), salu("s_lshl_b32", sT1, sQH, 13), salu("s_add_u32", sKVbase, sKVbase, sT1),
           salu("s_add_u32", sKVend, sKVbase, 8 * 16384))
    p.emit(salu("s_lshl_b32", sT0, sT0, 2), salu("s_add_u32", sT1, sT0, sQH), salu("s_mul_i32", sOb0, sT1, 9216),
           salu("s_xor_b32", sT1, sT1, 1), salu("s_mul_i32", sOb1, sT1, 9216))
    p.emit(salu("s_and_b32", sT0, sWG, 7), salu("s_lshr_b32", sT1, sWG, 3))
    p.emit(salu("s_and_b32", sB2, sT0, 3), salu("s_lshl_b32", sB2, sB2, 2), salu("s_and_b32", sT2, sT1, 3), salu("s_add_u32", sB2, sB2, sT2))
    p.emit(salu("s_lshr_b32", sCT, sT0, 2), salu("s_lshl_b32", sCT, sCT, 3), salu("s_lshr_b32", sT2, sT1, 2), salu("s_add_u32", sCT, sCT, sT2))
    if OPT("CTX"): p.emit(salu("s_xor_b32", sCT, sCT, int(OPT("CTX"))))
    if OPT("TWB", "1") == "1":
        p.emit(salu("s_lshr_b32", sTG, sHP, 1), salu("s_lshl_b32", sTG, sTG, 4), salu("s_add_u32", sTG, sTG, sB), salu("s_lshl_b32", sTG, sTG, 2),
               salu("s_add_u32", sTG, sTG, sW), salu("s_lshl_b32", sTG, sTG, 14),
               salu("s_and_b32", sT2, sHP, 1), salu("s_xor_b32", sT2, sT2, 1), salu("s_lshl_b32", sT2, sT2, 28), salu("s_or_b32", sTG, sTG, sT2))
    else:
        p.emit(salu("s_lshl_b32", sTG, sWG, 15), salu("s_add_u32", sTG, sTG, sCkv))
    p.emit(valu("v_add_u32", vPW, sCkv, vL16))
    p.emit(valu("v_bfe_u32", vT[0], vLane, 3, 2), valu("v_and_b32", vT[1], 2, vT[0]), valu("v_and_b32", vT[3], 7, vLane),
           valu("v_xor_b32", vT[1], vT[1], vT[3]), valu("v_lshlrev_b32", vT[1], 4, vT[1]), valu("v_lshl_add_u32", vT[1], vT[0], 8, vT[1]),
           valu("v_lshrrev_b32", vT[0], 5, vLane), valu("v_lshl_add_u32", vOffKV, vT[0], 7, vT[1]), valu("v_xor_b32", vOffKV1, 64, vOffKV))
    if OPT("ROT", "1") == "1": p.emit(salu("s_add_u32", sRot, sT1, sWG), salu("s_and_b32", sRot, sRot, 7), salu("s_lshl_b32", sRot, sRot, 14))
    else: p.emit(salu("s_mov_b32", sRot, 0))
    p.emit(salu("s_mov_b32", sSC, CSCALE), salu("s_mov_b32", sSlotR, 0), salu("s_mov_b32", sSlotW, 2 * ASLOT), salu("s_mov_b32", sC1, ASLOT))
    p.emit(valu("v_mov_b32", V(203), 0), salu("s_mov_b32", sSC2[0], CSCALE), salu("s_mov_b32", sSC2[1], CSCALE))

def dma_batchA(st):
    reg = regA(st); tag = ("A", st)
    g = []
    rows = [0, 4, 16, 20, 32, 36, 48, 52]
    def wq(i):
        pi = rows[i] // 4
        m = salu("s_add_u32", M0, sSlotW, sCw) if i == 0 else salu("s_add_u32", M0, M0, (pi - rows[i - 1] // 4) * 1024)
        return [m, salu("s_add_u32", sSO, sWoff, rows[i] * 8192), dma(vOffW, SRD_WQ, sSO, flags=OPT("WQF"), tag=tag, region=reg)]
    def xx(i):
        m = salu("s_add_u32", M0, sSlotW, sCx) if i == 0 else salu("s_add_u32", M0, M0, 1024)
        return [m, salu("s_add_u32", sSO, sXoff, i * 16384), dma(vOffX, SRD_X, sSO, flags=OPT("XF"), tag=tag, region=reg)]
    for i in range(4): g.append(xx(i))
    g.append([salu("s_add_u32", M0, sSlotW, sCx9),
              [salu("s_mov_b64", EXEC, sEX9), dma(vOffX, SRD_X, sX9off, flags=OPT("XF"), tag=tag, region=reg), salu("s_mov_b64", EXEC, -1)]])
    for i in range(8): g.append(wq(i))
    dl = (st ^ (st + 1)) & 15
    adv = [salu("s_xor_b32", sXoff, sXoff, dl * 128), salu("s_xor_b32", sX9off, sX9off, dl * 128), salu("s_xor_b32", sWoff, sWoff, dl * 64 * 8192)]
    if OPT("SKEW", "6") == "6":
        nxt = [scmp("s_cmp_gt_u32", sKs, st), salu("s_cselect_b32", sDk, st, st + 1)]
        if st + 1 < DP: nxt = [salu("s_mov_b32", sDk, st + 1)]
        elif st + 1 == DP: nxt = [salu("s_mov_b32", sDk, sKs)]
        adv = [nxt, salu("s_lshl_b32", sDv, sDk, 7),
               salu("s_add_u32", sXoff, sVs, sDv), salu("s_add_u32", sX9off, sWa, sDv), salu("s_lshl_b32", sDv, sDk, 19), salu("s_add_u32", sWoff, sWb, sDv)]
    return g, adv

def entry_src(n):
    if n == 0: return SRD_K, 0
    if n == 15: return SRD_V, 7
    return (SRD_K, (n + 1) // 2) if n % 2 else (SRD_V, n // 2 - 1)

def kv_batch(n, srd_=None, soff=None, ldsbase=None):
    const = 0
    if srd_ is None:
        srd_, ch = entry_src(n); soff = sKVbase; const = ch * 16384; ldsbase = sigB(n) * SG
    g = []
    KVCL = int(OPT("KVCL", "1"))
    for i in range(8):
        grp = []
        if i % 4 == 0:
            m = salu("s_add_u32", M0, sCkv, ldsbase) if i == 0 else salu("s_add_u32", M0, M0, 4096)
            grp += [m, salu("s_add_u32", sSO, soff, const + i * 1024), salu("s_xor_b32", sSO, sSO, sRot)]
        grp.append(dma(vOffKV1 if i % 2 else vOffKV, srd_, sSO, (i % 4) * 1024, flags=KVFLAGS, tag=("B", n), region=regBw(n)))
        if i % KVCL == 0: g.append(grp)
        else: g[-1] += grp
    return g

def thr(groups, key, dflt=""):
    v = OPT(key, dflt)
    if v:
        for g in groups: g.insert(len(g) - 1, raw("s_waitcnt vmcnt(%s)" % v, "salu"))
    return groups
def pf_load(n, i):
    srd_, ch = entry_src(n)
    return [salu("s_add_u32", sSP, sKVbase, ch * 16384 + (i >> 2) * 4096), salu("s_xor_b32", sSP, sSP, sRot),
            vload(PFR[n][4 * i:4 * i + 4], vOffKV1 if i % 2 else vOffKV, srd_, sSP, (i % 4) * 1024, flags=KVFLAGS)]
def pf_write(n, tmp):
    base = sigB(n) * SG
    o = [valu("v_add_u32", tmp, base, vPW)] if base else []
    ad = tmp if base else vPW
    return o + [ds_write("ds_write_b128", ad, PFR[n][4 * i:4 * i + 4], i * 1024, regBw(n)) for i in range(8)]

def blockA(t, buf, rev, s_first, zero=False):
    js = [0, 1, 2, 3] + ([4] if t in NINTH_T else [])
    if rev: js = js[::-1]
    out = []; s = s_first
    for j in js:
        for i, k in enumerate((s, 1 - s)): out.append(mfma(accA(t, j), Af(t, k), Bf(buf, j, k), 0 if (zero and i == 0) else None))
        s = 1 - s
    return out, s

XINL = 22
def epochA(e, groups, adv, g0, g1, endtags, extra=None, ndum=0):
    buf = e % 2
    mf = []; start = {}; end = {}
    s = 0
    for key, t, b in [("L6", 6, 1 - buf), ("L7", 7, 1 - buf)] + [(t, t, buf) for t in range(6)]:
        start[key] = len(mf)
        blk, s = blockA(t, b, rev=(t % 2 == 1), s_first=s, zero=(e == 0 or (e == 1 and t >= 6)))
        mf += blk; end[key] = len(mf) - 1
    n = len(mf)
    reg = regA(e)
    def rdA(t):
        tmp = vWb if t == 0 else vT[t % 2]
        o = [] if t == 0 else [valu("v_xor_b32", tmp, t << 5, vWb)]
        return o + [ds_read("ds_read_b64_tr_b16", Af(t, s_)[2 * h:2 * h + 2], tmp, s_ * 8192 + h * 1024, reg) for s_ in range(2) for h in range(2)]
    def rdB(j, s_):
        ad = vXa[s_] if j < 4 else vXa[2 + s_]
        return ds_read("ds_read_b128", Bf(buf, j, s_), ad, (j * 2048) if j < 4 else 0, reg)
    a0 = rdA(0)
    first = [rdB(0, 0), a0[0], a0[1], rdB(0, 1), a0[2], a0[3], rdB(1, 1), rdB(1, 0), rdB(2, 0), rdB(2, 1), rdB(3, 1), rdB(3, 0), rdB(4, 0), rdB(4, 1)]
    lds = spread(first, -1, 15, slack=1)
    lds += spread(rdA(1), 15, 20, slack=1)
    prev = {2: "L6", 3: "L7", 4: 0, 5: 1, 6: 2, 7: 3}
    pos = 20
    for t in range(2, 8):
        lo = max(end[prev[t]], pos)
        lds += spread(rdA(t), lo, lo + 6, slack=1); pos = lo + 6
        assert t >= 6 or pos + 1 <= start[t] - 4, (t, pos, start[t])
    if ndum:
        lds += spread([ds_read("ds_read_b32", V(161 + i), vL16) for i in range(ndum)], pos + 1, pos + 1 + ndum // 2, slack=1)
    fl = {"lds": lds, "end": end_stream(n, endtags, lg=ndum)}
    vm = vm_fillers(groups, g0, g1) if groups else []
    vm += [F(x, g1, n - 6) for x in adv]
    if e < 15:
        sel = F([scmp("s_cmp_eq_u32", sSlotR, 2 * ASLOT), salu("s_cselect_b32", sDelta, -2 * ASLOT, sC1)], g1, n - 6)
        vm += [F(salu("s_mov_b32", sSlotW, sSlotR), g1, n - 6), sel, F(salu("s_add_u32", sSlotR, sSlotR, sDelta), g1, n - 5)]
        lds += [F(valu("v_add_u32", r, sDelta, r), pos + 1, n - 1, [sel]) for r in [vWb] + vXa]
    fl["vm"] = vm
    if extra: fl.update(extra(start, end, n))
    out = interleave(mf, fl)
    if e == 0:
        lead = set(id(x) for x in mf[:16])
        out = [x for x in out if id(x) not in lead]
    return out

def split_at_mfma(ins, k):
    idx = [i for i, x in enumerate(ins) if x.kind == "mfma"][k]
    return ins[:idx], ins[idx:]

def q_convert(j, s, pk=False):
    t0, t1 = 2 * s, 2 * s + 1
    a0, a1, q = accA(t0, j), accA(t1, j), Qf(j, s)
    o = []
    for a_ in (a0, a1):
        if pk:
            for r in (0, 2): o.append(valu("v_pk_mul_f32", a_[r:r + 2], a_[r:r + 2], sSC2))
        else:
            for r in range(4): o.append(valu("v_mul_f32", a_[r], sSC, a_[r]))
    o += [valu("v_cvt_pk_bf16_f32", q[0], a0[0], a0[1]), valu("v_cvt_pk_bf16_f32", q[2], a1[0], a1[1]),
          valu("v_cvt_pk_bf16_f32", q[1], a0[2], a0[3]), valu("v_cvt_pk_bf16_f32", q[3], a1[2], a1[3])]
    sw1 = [valu("v_permlane32_swap_b32", q[0], q[2]), valu("v_permlane32_swap_b32", q[1], q[3])]
    sw2 = [valu("v_permlane16_swap_b32", q[0], q[2]), valu("v_permlane16_swap_b32", q[1], q[3])]
    return o, sw1, sw2
def q_convert_seq(items):
    out = []; pend1 = pend2 = None
    for it in items:
        o, s1, s2 = q_convert(*it)
        out += o[:len(o) // 2]
        if pend2: out += pend2
        pend2 = None
        out += o[len(o) // 2:]
        if pend1: out += pend1[0]; pend2 = pend1[1]
        pend1 = (s1, s2)
    if pend2: out += pend2
    out += pend1[0] + pend1[1]
    return out

def phaseA(p):
    p.emit(salu("s_mov_b32", sSlotW, 0))
    g, adv = dma_batchA(0)
    p.emit(g, adv)
    if OPT("CW", "1") == "1":
        p.emit(raw("s_getpc_b64 s[16:17]", wr=[S(16, 2)]), label("mha_pc"), salu("s_and_b32", S(17), S(17), 0xffff),
               raw("s_mov_b32 s18, mha_code_end-mha_pc", wr=[S(18)]), salu("s_mov_b32", S(19), 0x20000))
        p.emit(salu("s_lshr_b32", sT0, sWG, 3), salu("s_lshl_b32", sT0, sT0, 2), salu("s_add_u32", sT0, sT0, sW), salu("s_lshl_b32", sT0, sT0, 7),
               valu("v_lshlrev_b32", vT[0], 14, vLane), vload(V(200), vT[0], S(16, 4), sT0))
    if OPT("TXW") == "1":
        p.emit(salu("s_lshl_b32", sT0, sWG, 2), salu("s_add_u32", sT0, sT0, sW), salu("s_lshl_b32", sT0, sT0, 13),
               valu("v_lshlrev_b32", vT[0], 7, vLane), vload(V(201), vT[0], SRD_WQ, sT0), vload(V(202), vT[0], SRD_X, sT0))
    q = Prog("tmp"); setup2(q)
    g, adv = dma_batchA(1)
    rest = list(q.static); k = len(rest) // (len(g) + 1)
    p.emit(salu("s_mov_b32", sSlotW, ASLOT))
    for i, grp in enumerate(g):
        p.emit(rest[i * k:(i + 1) * k], grp)
    p.emit(adv, rest[len(g) * k:])
    p.emit(salu("s_lshl_b32", sT0, sB2, 4), salu("s_add_u32", sT0, sT0, sCT), salu("s_lshl_b32", sT0, sT0, 8), salu("s_add_u32", sFl, sT0, FLG),
           scmp("s_cmp_eq_u32", sW, 0), salu("s_cselect_b32", sT0, sFl, OOB), salu("s_mov_b64", EXEC, 1),
           vstore(V(203), V(203), SRD_WS, sT0, flags="sc0 sc1", tag="ZF"), salu("s_mov_b64", EXEC, -1))
    p.emit(wait_vm([("A", 0)]), barrier(), stamp(), diag("a0"))
    pf = [pf_load(n, i) for n in PARK[::-1] + list(range(1, NPF + 1)) for i in range(8)]
    if OPT("TWO", "1") == "1":
        ntw = 16 if OPT("TWB", "1") == "1" else 8
        tw = [[salu("s_add_u32", sSP, sTG, (i >> 2) * 4096), vload(V(160 + 4 * (i % 8), 4), vL16, SRD_WO, sSP, (i & 3) * 1024)] for i in range(ntw)]
        m = len(pf) + len(tw); mix = []
        if OPT("TWP", "mix") == "mix":
            for k in range(m):
                mix.append(tw.pop(0) if (tw and ((k + 1) * ntw // m > k * ntw // m)) else pf.pop(0))
        else: mix = tw + pf
        pf = mix
    if OPT("PRE", "0") == "1":
        pre = []
        for s_ in range(4):
            for j in range(4):
                pre.append([salu("s_lshl_b32", sSP, sQH, 12), salu("s_add_u32", sSP, sSP, sOb0 if s_ % 2 == 0 else sOb1),
                            salu("s_add_u32", sSP, sSP, (s_ >> 1) * 18432), vstore(V(240, 4), vL16, SRD_WS, sSP, j * 1024, flags=OSF)])
        for i in range(2): pre.append([salu("s_add_u32", sSP, sOb0, 8192 + i * 18432), vstore(V(240, 4), vL16, SRD_WS, sSP, 0, flags=OSF)])
        m = len(pf) + len(pre); mix = []; np_ = len(pre)
        for k in range(m):
            mix.append(pre.pop(0) if (pre and ((k + 1) * np_ // m > k * np_ // m)) else pf.pop(0))
        pf = mix
    PF0 = int(OPT("PF0", "1"))
    pos = [PF0 * 72 + (14 - PF0) * 72 * (2 * k + 1) // (2 * len(pf)) for k in range(len(pf))]
    PFC = int(OPT("PFC", "0"))
    if PFC:
        eps = [e for e in range(PF0, 14) if (e - PF0) % PFC == 0]
        per = -(-len(pf) // len(eps))
        pos = [eps[k // per] * 72 + int(OPT("PFP", "50")) + 2 * (k % per) for k in range(len(pf))]
    for e in range(14):
        g, adv = dma_batchA(e + 2)
        def extra(start, end, n):
            o = []
            for k, x in enumerate(pf):
                if pos[k] // 72 == e:
                    t = min(max(pos[k] % 72, 3), n - 6)
                    o += vm_fillers([x], t, t)
            if e == 2:
                o = [F([wait_vm(["ZF"]), salu("s_lshl_b32", sT0, sB2, 4), scmp("s_cmp_eq_u32", sW, 0), salu("s_cselect_b32", sT0, sT0, OOB),
                        valu("v_mov_b32", V(204), 0), valu("v_mov_b32", V(205), 1), salu("s_mov_b64", EXEC, 1),
                        vstore(V(205), V(204), SRD_DBG, sT0, flags="sc1", op="buffer_atomic_add"), salu("s_mov_b64", EXEC, -1)], 40, 44)] + o
                o.sort(key=lambda f: f.e)
            return {"pf": o} if o else {}
        p.emit(epochA(e, g, adv, int(OPT("AG0", "2")) + (14 if e == 0 else 0), int(OPT("AG1", "62")), [("A", e + 1)], extra))
    p.emit(diag("a14"))
    p.emit(epochA(14, kv_batch(0), [], 4, 60, [("A", 15)]))
    def extra15(start, end, n):
        d = {}
        w = []
        for m in (1, 2):
            if m <= NPF: w += pf_write(m, vT[2 + m])
        if w: d["pw"] = spread(w, 16, 60, slack=2)
        cv = [F(x, end[1] + 4, n - 1) for x in q_convert_seq([(4, 0)] + [(j, 0) for j in range(4)])]
        d["cv"] = cv
        return d
    g = []
    for m in (1, 2):
        if m > NPF: g += kv_batch(m)
    p.emit(epochA(15, g, [], 4, 64, [], extra15))
    mf = []; s = 0
    for t in (6, 7):
        blk, s = blockA(t, 1, rev=(t % 2 == 1), s_first=s); mf += blk
    p.emit(salu("s_lshl_b32", sT0, sB, 4), valu("v_mov_b32", V(8), 0), salu("s_mov_b64", EXEC, 1),
           vload(V(9), V(8), SRD_DBG, sT0, flags="sc1"), salu("s_mov_b64", EXEC, -1))
    fl = {}
    if NPF >= 3: fl["pw"] = spread(pf_write(3, vT[2]), 0, 15, slack=1)
    else: fl["vm"] = vm_fillers(thr(kv_batch(3), "JTH"), 2, 14, slack=0)
    fl["cv"] = [F(x, 2, 15) for x in q_convert_seq([(4, 2)] + [(j, 1) for j in range(4)])]
    p.emit(interleave(mf, fl))
    reg = (gran(SG, SG), "X", True)
    p.emit(valu("v_xor_b32", vT[0], SG + 8192, vPW))
    p.emit(ds_write("ds_write_b128", vT[0], Qf(4, 0), 0, reg), ds_write("ds_write_b128", vT[0], Qf(4, 2), 1024, reg))
    p.emit(q_convert_seq([(j, s_, True) for j in range(4) for s_ in (2, 3)]))
    p.emit(valu("v_readfirstlane_b32", sT1, V(9)), scmp("s_cmp_lt_u32", sT1, 16), raw("s_cbranch_scc1 mha_gate", "branch"), label("mha_gate_ok"))
    p.emit(stamp(), wait_both([("B", 0)]), barrier(), stamp())
    reg = reg + ("own",)
    p.emit(ds_read("ds_read_b128", Qf(4, 1), vPW, SG, reg), ds_read("ds_read_b128", Qf(4, 3), vPW, SG + 1024, reg))
    if NPF >= 4: p.emit(pf_write(4, vT[2]))

def blockQ(kt, czero=False):
    js = [0, 1, 2, 3] + ([4] if kt < 2 else [])
    out = []; last = {}; first = {}; fwd = True
    for j in js:
        ss = [0, 1, 2, 3] if fwd else [3, 2, 1, 0]
        first[j] = len(out)
        for i, s in enumerate(ss):
            c = None if i else (0 if czero else Cb(j))
            out.append(mfma(St(kt, j), Kf(kt, s), Qf(j, s), c))
        last[j] = len(out) - 1
        fwd = not fwd
    return out, first, last

def blockP(b, buf, zero=False):
    out = []
    for t in (2 * b, 2 * b + 1):
        nin = mfma(Oa(t, 4), Vf(t, 0), Pf(buf, 0, 4), 0 if zero else None)
        if t % 2: out.append(nin)
        u = 0
        for j in ((0, 1, 2, 3) if t % 2 == 0 else (3, 2, 1, 0)):
            for i, k in enumerate((u, 1 - u)): out.append(mfma(Oa(t, j), Vf(t, k), Pf(buf, k, j), 0 if (zero and i == 0) else None))
            u = 1 - u
        if t % 2 == 0: out.append(nin)
    return out

def softmax_tile(kt, j, buf, e, d, ex, rest, sub=False):
    s = St(kt, j); pf = Pf(buf, kt // 2, j)[2 * (kt % 2):2 * (kt % 2) + 2]
    E = []
    for r in range(4):
        ins = [valu("v_exp_f32", s[r], s[r])]
        if sub: ins = [valu("v_add_f32", s[r], s[r], Cb(j)[0])] + ins
        E.append(F(ins, e, d))
    ex += E
    rest += [F(valu("v_add_f32", vL(j), vL(j), s[0]), e, d, [E[1]]), F(valu("v_cvt_pk_bf16_f32", pf[0], s[0], s[1]), e, d, [E[2]]),
             F(valu("v_add_f32", vL(j), vL(j), s[1]), e, d), F(valu("v_add_f32", vL(j), vL(j), s[2]), e, d, [E[3]]),
             F(valu("v_cvt_pk_bf16_f32", pf[1], s[2], s[3]), e, d), F(valu("v_add_f32", vL(j), vL(j), s[3]), e, d)]

def rdK(kt, n):
    return [ds_read("ds_read_b128", Kf(kt, s), vKa(s & 1, kt >> 1), (kt & 1) * 4096 + (s >> 1) * 512, regB(n)) for s in range(4)]
def rdV(t, n):
    return [ds_read("ds_read_b64_tr_b16", Vf(t, u)[2 * h:2 * h + 2], vVa(t & 3, u), h * 4096 + (t >> 2) * 512, regB(n))
            for u in range(2) for h in range(2)]

def rowmax(j):
    s = St(0, j); m, t = vT[2 * (j % 2)], vT[1 + 2 * (j % 2)]
    o = [valu("v_max3_f32", m, s[0], s[1], s[2]), valu("v_max3_f32", m, m, s[3], vMin(j)),
         valu("v_mov_b32", t, m), valu("v_permlane32_swap_b32", m, t), valu("v_max_f32", m, m, t),
         valu("v_mov_b32", t, m), valu("v_permlane16_swap_b32", m, t), valu("v_max_f32", m, m, t)]
    o += [valu("v_sub_f32", Cb(j)[r], 0, m) for r in range(4)]
    return o

def prologueB(p):
    for j in range(5): p.emit(valu("v_mov_b32", vMin(j), 0xff800000))
    p.emit(salu("s_mov_b32", sRetry, 0))
    p.emit(label("mha_attn_entry"))
    KALT[0] = True
    p.emit(rdK(0, 0), rdK(1, 0))
    for j in range(5): p.emit(valu("v_mov_b32", vL(j), 0))
    mf = []; st = {}; fi = {}; la = {}
    for kt in range(4):
        q, f_, l_ = blockQ(kt, czero=(kt == 0))
        st[kt] = len(mf); fi[kt] = {j: v + len(mf) for j, v in f_.items()}; la[kt] = {j: v + len(mf) for j, v in l_.items()}
        mf += q
    n = len(mf)
    mx = {}
    m0_, m1_ = [], []
    for j in range(5):
        lst = [F(x, la[0][j] + 3, fi[1][j] - 2) for x in rowmax(j)]
        (m0_ if j % 2 == 0 else m1_).extend(lst); mx[j] = lst[-1]
    ex, rest = [], []
    for j in range(5):
        k = len(ex)
        softmax_tile(0, j, 0, la[0][j] + 3, (fi[2][j] - 1) if j < 4 else n - 1, ex, rest, sub=True)
        ex[k].deps.append(mx[j])
    for j in range(5): softmax_tile(1, j, 0, la[1][j] + 3, (fi[3][j] - 1) if j < 4 else n - 1, ex, rest)
    for j in range(4): softmax_tile(2, j, 0, la[2][j] + 3, n - 1, ex, rest)
    lds = spread(rdK(2, 0), st[1] - 1, st[1] + 8) + spread(rdK(3, 0), st[2] - 1, st[2] + 6)
    lds += [F(valu("v_add_u32", vKa(s0, u), SG, vKa(s0, u)), st[2] + 8, n - 1) for u in range(2) for s0 in range(2)]
    vm = []
    KALT[0] = False
    tags = [("B", m) for m in (1, 2) if m > NPF]
    if NPF < 4: vm += [F(wait_lgkm0(), 21, 21)] + vm_fillers(thr(kv_batch(4), "JTH"), 24, n - 8)
    fl = {"m0": m0_, "m1": m1_, "ex": ex, "rest": rest, "lds": lds, "vm": vm}
    p.emit(interleave(mf, fl))
    p.emit(stamp(), wait_both(tags), barrier(), stamp())

def lsum(j):
    l, t = vL(j), vT[2 + j % 2]
    return [valu("v_mov_b32", t, l), valu("v_permlane32_swap_b32", l, t), valu("v_add_f32", l, l, t),
            valu("v_mov_b32", t, l), valu("v_permlane16_swap_b32", l, t), valu("v_add_f32", l, l, t)]

_cvk = [0]
def o_convert(s, j, pk=False):
    k = _cvk[0]; _cvk[0] += 1
    T = V(16 + (k % 4) * 8, 8); Pk = V(56 + (k % 8) * 4, 4)
    o = []
    for h in range(2):
        for r in range(4): o.append(valu("v_accvgpr_read_b32", T[4 * h + r], Oa(2 * s + h, j)[r]))
    if pk:
        lp = V(148 + (j & ~1), 2)
        for r in range(0, 8, 2): o.append(valu("v_pk_mul_f32", T[r:r + 2], T[r:r + 2], lp, mods=" op_sel:[0,1] op_sel_hi:[1,1]" if j & 1 else " op_sel_hi:[1,0]"))
    else:
        for r in range(8): o.append(valu("v_mul_f32", T[r], T[r], vL(j)))
    for r in range(4): o.append(valu("v_cvt_pk_bf16_f32", Pk[r], T[2 * r], T[2 * r + 1]))
    o.append(vstore(Pk, vL16, SRD_WS, sSP, j * 1024, flags=OSF, tag="OST"))
    return o
def o_group(s, pk=False):
    o = [salu("s_lshl_b32", sSP, sQH, 12), salu("s_add_u32", sSP, sSP, sOb0 if s % 2 == 0 else sOb1)]
    if s >> 1: o.append(salu("s_add_u32", sSP, sSP, 18432))
    for j in range(4): o += o_convert(s, j, pk)
    return o

LMAX = f32(2.0 ** 24)
MSG = 1 * SG
FLAGS_LDS = MSG + 6144
regM = (gran(MSG, SG), "M", True)

def b_plan():
    ents = [m for m in range(6, 16) if m not in PARK]
    pieces = [(m, g) for m in ents for g in kv_batch(m)]
    span = float(OPT("BSPAN", "5.5"))
    plan = {e: [] for e in range(8)}
    dt = span / len(pieces)
    free = lambda m: (m - 4) // 2
    need = lambda m: 7 if m == 15 else (m - 1) // 2
    ts = []; t = 1.0
    for m, g in pieces:
        t = max(t, float(free(m))); ts.append(t); t += dt
    marg = float(OPT("BMARG", "0.3"))
    for k in range(len(ts) - 1, -1, -1):
        ts[k] = min(ts[k], need(pieces[k][0]) - marg)
        if k + 1 < len(ts): ts[k] = min(ts[k], ts[k + 1] - 0.06)
        assert ts[k] >= free(pieces[k][0]) - 1e-9, (k, ts[k])
    for t, (m, g) in zip(ts, pieces):
        plan[int(t)].append(((t - int(t)) * 0.93, g, m))
    return plan

def epochB(e):
    final = (e == 7)
    bufc, bufn = e % 2, (e + 1) % 2
    nK, nV = 2 * e + 1, (2 * e + 2 if e < 7 else 15)
    mf = []; st = {}; en = {}; fi = {}; la = {}
    if e > 0:
        st["L"] = 0; mf += blockP(3, bufn, zero=(e == 1)); en["L"] = len(mf) - 1
    VALT[0] = final
    for b in range(4):
        if not final:
            q, f_, l_ = blockQ(b)
            st["Q%d" % b] = len(mf); fi[b] = {j: v + len(mf) for j, v in f_.items()}; la[b] = {j: v + len(mf) for j, v in l_.items()}
            mf += q; en["Q%d" % b] = len(mf) - 1
        if b < 3 or final:
            st["P%d" % b] = len(mf); mf += blockP(b, bufc, zero=(e == 0)); en["P%d" % b] = len(mf) - 1
    n = len(mf)
    ex, rest = [], []
    for j in range(4): softmax_tile(3, j, bufc, -1, st["P0"] - 2, ex, rest)
    fl = {"ex": ex, "rest": rest}
    if not final:
        for j in range(5): softmax_tile(0, j, bufn, la[0][j] + 3, (fi[2][j] - 1) if j < 4 else n - 1, ex, rest)
        for j in range(5): softmax_tile(1, j, bufn, la[1][j] + 3, (fi[3][j] - 1) if j < 4 else n - 1, ex, rest)
        for j in range(4): softmax_tile(2, j, bufn, la[2][j] + 3, n - 1, ex, rest)
        vm = []
        if e == 0: mine = [(0.02 + 0.11 * i, g, 5) for i, g in enumerate(kv_batch(5))]
        else: mine = b_plan()[e]
        for k, (fr, g, m) in enumerate(mine):
            if k == 0 and len(g) == 1:
                pass
            if OPT("BTH", "4"): g.insert(len(g) - 1, raw("s_waitcnt vmcnt(%s)" % OPT("BTH", "4"), "salu"))
            t = max(3, int(fr * n))
            vm += vm_fillers([g], t, t)
        if e == 6:
            vm += vm_fillers(wo_batch(0) + wo_batch(1), int(0.48 * n), n - 8)
        fl["vm"] = vm
        if e == 5: fl["wa"] = [F(x, 10, n - 1) for x in d_addr_setup()]
        L2W = int(OPT("L2W", "0"))
        L2E = int(OPT("L2E", "6")) - L2W
        if L2W and L2E <= e < L2E + L2W:
            k = e - L2E
            tq = [salu("s_lshr_b32", sT2, sWG, 3), salu("s_lshl_b32", sT2, sT2, 14), salu("s_lshl_b32", sT3, sW, 21), salu("s_add_u32", sT2, sT2, sT3),
                  salu("s_and_b32", sT3, sCT, 8), salu("s_lshl_b32", sT3, sT3, 7), salu("s_add_u32", sT2, sT2, sT3), salu("s_add_u32", sT2, sT2, k * 256 * 2048),
                  valu("v_lshrrev_b32", V(158), 3, vLane), valu("v_lshlrev_b32", V(158), 11, V(158)), valu("v_and_b32", V(159), 7, vLane),
                  valu("v_lshl_add_u32", V(158), V(159), 7, V(158)), vload(V(159), V(158), SRD_WO, sT2)]
            fl["l2w"] = [F(x, 60, 100) for x in tq]
        for m in PARK:
            if (m - 4) // 2 == e: fl["pw"] = spread(pf_write(m, vT[0]), 20, n - 30)
        lds = []
        last = {}
        for b in range(4):
            lo = -1 if b == 0 else en["Q%d" % (b - 1)]
            hi = st["Q%d" % b]
            kk = spread(rdK(b, nK), lo, max(lo, min(lo + 8, hi - 9)), slack=1)
            pb = ("P%d" % (b - 1)) if b else ("L" if e else None)
            lo0 = (st[pb] + 8) if pb else 0
            lo1 = en[pb] if pb else 4
            lo0 = max(lo0, kk[-1].e)
            v0 = spread(rdV(2 * b, nV), lo0, max(lo0 + 4, lo1), slack=1)
            v1 = spread(rdV(2 * b + 1, nV), lo1, lo1 + 7, slack=1)
            lds += kk + v0 + v1
            last["K%d" % b] = kk[-1]; last["V%d" % (2 * b)] = v0[-1]; last["V%d" % (2 * b + 1)] = v1[-1]
        fl["lds"] = lds
        dk = (sigB(nK + 2) - sigB(nK)) * SG
        dv = (sigB(nV + 2 if e < 6 else 15) - sigB(nV)) * SG
        ad = []
        ad += [F(valu("v_add_u32", vKa(s0, 0), dk, vKa(s0, 0)), 0, n - 1, [last["K1"]]) for s0 in range(2)]
        ad += [F(valu("v_add_u32", vVa(t, u), dv, vVa(t, u)), 0, n - 1, [last["V5"]]) for t in (0, 1) for u in range(2)]
        ad += [F(valu("v_add_u32", vKa(s0, 1), dk, vKa(s0, 1)), 0, n - 1, [last["K3"]]) for s0 in range(2)]
        ad += [F(valu("v_add_u32", vVa(t, u), dv, vVa(t, u)), 0, n - 1, [last["V%d" % (4 + t)]]) for t in (2, 3) for u in range(2)]
        fl["ad"] = ad
        need = (2 * e + 3, 2 * e + 4) if e < 6 else (15,)
        tags = [("B", m) for m in need if m > NPF and m not in PARK]
        fl["end"] = end_stream(n, tags)
        return interleave(mf, fl, margin=16)
    lds = spread(rdV(0, nV) + rdV(1, nV), -1, st["P0"] - 6)
    for b in (1, 2, 3):
        lo = en["L"] if b == 1 else en["P%d" % (b - 2)]
        lds += spread(rdV(2 * b, nV) + rdV(2 * b + 1, nV), lo, st["P%d" % b] - 6)
    fl["lds"] = lds
    R0 = rdW(0); R1 = rdW(1)
    r0 = [F(wait_vm([("W", 0)]), 4, 6)] + spread(R0, 6, 30) + [F(wait_vm([("W", 1)]), 30, 32)] + spread(R1, 32, 56)
    w0 = F(wait_lgkm0(), 38, 39, [r0[len(R0)]]); w1 = F(wait_lgkm0(), 64, 65, [r0[-1]])
    fl["wr"] = r0
    fl["vm"] = vm_fillers(wo_batch(2), 6, 30)
    if WFIN >= 4: fl["vm"] += [w0] + vm_fillers(wo_batch(3), 46, 64)
    if WFIN >= 5: fl["vm"] += [w1] + vm_fillers(wo_batch(4), 72, n - 2, slack=0)
    epi = []
    for j in range(5): epi += [F(x, st["P0"] - 2, n - 1, [rest[-1]]) for x in lsum(j)]
    chk = [valu("v_add_f32", vT[2], vL(0), vL(1)), valu("v_add_f32", vT[3], vL(2), vL(3)), valu("v_add_f32", vT[2], vT[2], vL(4)),
           valu("v_add_f32", vT[2], vT[2], vT[3]), salu("s_mov_b32", sT2, LMAX),
           I("v_cmp_nge_f32 vcc, %s, %s" % (sT2, vT[2]), "valu", regs_of(sT2, vT[2]), regs_of(VCC)),
           valu("v_mov_b32", Cb(4)[1], vL(4)), valu("v_xor_b32", vT[0], MSG + 8192, vPW),
           I("s_or_b32 %s, vcc_lo, vcc_hi" % sT2, "salu", regs_of(VCC), regs_of(sT2)),
           valu("v_mov_b32", vT[2], sT2), salu("s_lshl_b32", sT3, sW, 2), salu("s_add_u32", sT3, sT3, FLAGS_LDS),
           valu("v_and_b32", vT[3], 3, vLane), valu("v_lshlrev_b32", vT[3], 13, vT[3]), valu("v_add_u32", vT[3], sT3, vT[3]),
           ds_write("ds_write_b32", vT[3], vT[2], 0, regM), ds_write("ds_write_b64", vT[0], Cb(4)[0:2], 4096, regM)]
    chk += [valu("v_rcp_f32", vL(j), vL(j)) for j in range(4)]
    epi += [F(x, st["P0"], n - 1) for x in chk]
    epi += [F(x, en["P0"] + 4, n - 1) for x in o_group(0)]
    epi += [F(ds_write("ds_write_b128", vT[0], Oa(t, 4), i * 1024, regM), en["P1"] + 4, n - 1) for i, t in enumerate((2, 3))]
    epi += [F(x, en["P1"] + 4, n - 1) for x in o_group(1)]
    fl["epi"] = epi
    return interleave(mf, fl)

def w_items():
    more = lambda t: wo_batch(t) if t < NPRE else []
    it = []
    for t in range(WFIN, 5): it += wo_batch(t)
    it += wo_batch(5)
    it += [[wait_lgkm0()]] + wo_batch(6)
    it += [[wait_vm([("W", 3)])] + rdW(3)] + more(7)
    it += [[wait_vm([("W", 4)])] + rdW(4) + [wait_both([], lg=16)]] + more(8)
    it += [[wait_vm([("W", 5)])] + rdW(5) + [wait_both([], lg=16)]] + more(9)
    it += [[wait_vm([("W", 6)])] + rdW(6) + [wait_both([], lg=16)]] + more(10)
    it += ["POLL", [wait_lgkm0()]] + more(11)
    return it

def epilogueB(p):
    p.emit(stamp())
    g2 = o_group(2, True); g3 = o_group(3, True)
    U = 17
    p.emit(g2[:3 + U])
    for i, t in ((2, 6), (3, 7)): p.emit(ds_write("ds_write_b128", vT[0], Oa(t, 4), i * 1024, regM))
    p.emit(salu("s_add_u32", sT3, sCkv, FLAGS_LDS), valu("v_mov_b32", vT[3], sT3), valu("v_add_u32", vT[1], MSG, vPW))
    p.emit(wait_both([("W", 2)]), barrier())
    X = V(128, 16); ML = V(48, 2); FL = V(52, 4)
    own = regM + ("own",)
    p.emit(ds_read("ds_read_b128", FL, vT[3], 0, own))
    p.emit(ds_read("ds_read_b64", ML, vT[1], 4096, own))
    for i in range(4): p.emit(ds_read("ds_read_b128", X[4 * i:4 * i + 4], vT[1], i * 1024, own))
    p.emit(rdW(2))
    W = w_items()
    k0 = int(OPT("WP0", "0"))
    p.emit(W[:k0], g2[3 + U:3 + 2 * U]); W = W[k0:]
    p.emit(valu("v_or3_b32", FL[0], FL[0], FL[1], FL[2]), valu("v_or_b32", FL[0], FL[0], FL[3]), valu("v_readfirstlane_b32", sT2, FL[0]))
    na, la_, nb, lb = Cb(4)[0], vL(4), ML[0], ML[1]
    mn, fa, fb = vT[2], vT[3], vT[4]
    p.emit(valu("v_min_f32", mn, na, nb), valu("v_sub_f32", fa, mn, na), valu("v_sub_f32", fb, mn, nb),
           valu("v_exp_f32", fa, fa), valu("v_exp_f32", fb, fb))
    p.emit(salu("s_andn2_b32", sT2, sT2, sRetry), scmp("s_cmp_lg_u32", sT2, 0), raw("s_cbranch_scc1 mha_fallback", "branch"))
    p.emit(valu("v_mul_f32", la_, la_, fa), valu("v_fmac_f32", la_, lb, fb),
           valu("v_rcp_f32", la_, la_), salu("s_add_u32", sT3, sOb0, 8192), valu("v_mul_f32", fa, fa, la_), valu("v_mul_f32", fb, fb, la_))
    S_ = []
    for i, s in enumerate((0, 2)):
        T = V(96 + i * 8, 8); Pk = V(112 + i * 4, 4)
        u = [valu("v_accvgpr_read_b32", T[4 * h + r], Oa(2 * s + h, 4)[r]) for h in range(2) for r in range(4)]
        u += [valu("v_mul_f32", T[r], T[r], fa) for r in range(8)]
        u += [valu("v_fmac_f32", T[r], X[8 * i + r], fb) for r in range(8)]
        u += [valu("v_cvt_pk_bf16_f32", Pk[r], T[2 * r], T[2 * r + 1]) for r in range(4)]
        u += [vstore(Pk, vL16, SRD_WS, sT3, 0, flags=OSF, tag="OST")]
        if i == 0: u += [salu("s_add_u32", sT3, sT3, 18432)]
        S_.append(u)
    S_ += [g2[3 + U * j:3 + U * (j + 1)] for j in (2, 3)]
    S_ += [g3[:3 + U]] + [g3[3 + U * j:3 + U * (j + 1)] for j in (1, 2, 3)]
    k = int(OPT("WPS", "0"))
    for u in S_:
        p.emit(u, W[:k]); W = W[k:]
    return W

def phaseB(p):
    prologueB(p)
    for e in range(8): p.emit(diag("b%d" % e), epochB(e))
    return epilogueB(p)

def fallback():
    p = Prog("mha_fb"); p.hoist = False
    p.emit(label("mha_gate"), salu("s_mov_b32", sT2, 1 << 14), salu("s_mov_b64", EXEC, 1), label("mha_gate_l"))
    p.emit(raw("s_sleep 64"), vload(V(9), V(8), SRD_DBG, sT0, flags="sc1"), wait_all_vm(), valu("v_readfirstlane_b32", sT1, V(9)),
           salu("s_sub_u32", sT2, sT2, 1), scmp("s_cmp_eq_u32", sT2, 0), raw("s_cbranch_scc1 mha_gate_x", "branch"),
           scmp("s_cmp_lt_u32", sT1, 16), raw("s_cbranch_scc1 mha_gate_l", "branch"))
    p.emit(label("mha_gate_x"), salu("s_mov_b64", EXEC, -1), raw("s_branch mha_gate_ok", "branch"))
    p.emit(label("mha_fallback"), wait_all_vm(), wait_lgkm0(), barrier())
    p.emit(salu("s_mov_b32", sRetry, -1))
    c_, g_ = vT[2], vT[3]
    p.emit(valu("v_and_b32", c_, 15, vLane), valu("v_lshrrev_b32", g_, 4, vLane), valu("v_lshlrev_b32", c_, 8, c_), valu("v_lshl_add_u32", c_, g_, 4, c_),
           salu("s_lshl_b32", sT0, sQH, 6), valu("v_add_u32", vT[0], sT0, c_), valu("v_xor_b32", vT[1], 64, vT[0]))
    p.emit(salu("s_lshl_b32", sT0, sQH, 13), salu("s_sub_u32", sT1, sKVbase, sT0))
    def body(it):
        o = [vload(Kf(0, s_), vT[s_ & 1], SRD_K, sT1, (s_ >> 1) * 128) for s_ in range(4)]
        o += blockQ(0, czero=True)[0]
        for j in range(5):
            st_ = St(0, j)
            o += [valu("v_max3_f32", vMin(j), vMin(j), st_[0], st_[1]), valu("v_max3_f32", vMin(j), vMin(j), st_[2], st_[3])]
        o.append(salu("s_add_u32", sT1, sT1, 4096))
        return o
    p.loop(32, body, sCNT)
    for t2 in range(4):
        for u in range(2): p.emit(valu("v_add_u32", vVa(t2, u), 2 * SG, vVa(t2, u)))
    for m in range(4): p.emit(kv_batch(m))
    for m in PARK:
        for i in range(8): p.emit(pf_load(m, i))
    p.emit(wait_all_vm(), barrier(), raw("s_branch mha_attn_entry", "branch"))
    return p

def accD(j, t): return V(16 + (j * 4 + t) * 4, 4)
SEQ = [(t, j) for t in range(14) for j in range(9)] + [(t, j) for j in range(9) for t in (14, 15)]
SLOT = {tj: i % 9 for i, tj in enumerate(SEQ)}
def Of(t, j, s): return A(88 + (SLOT[(t, j)] * 2 + s) * 4, 4)
WBLK = [A(192, 32), A(224, 32), A(160, 32), V(186, 32), V(218, 32), A(0, 32), A(32, 32)]
def Wf(t, tt, s): return WBLK[t % 7][(tt * 2 + s) * 4:(tt * 2 + s) * 4 + 4]
vO = [V(160 + i) for i in range(5)]
vWa = [V(5 + i) for i in range(4)]
vRw = [V(170 + i) for i in range(6)]
vRr = [V(176 + i) for i in range(6)]
vOut = V(182)
OFLAGS = OPT("OF", "sc1")
SIGW = [3, 4, 0, 3, 4, 2, 1, 0, 3, 4, 2, 1, 0, 3, 4, 2]
def regW(t): return (gran(SIGW[t] * SG, SG), ("W", t), False)
sOrd, sObase, sKt = sLw, sWOend, sDw
_wgrp = [0]

def d_addr_setup():
    g_, r_, cp, r8 = vT[1], vT[2], vT[3], vT[4]
    o = [valu("v_lshrrev_b32", g_, 4, vLane), valu("v_bfe_u32", r_, vLane, 2, 2), valu("v_and_b32", cp, 3, vLane),
         valu("v_and_b32", r8, 1, g_), valu("v_lshl_add_u32", r8, r8, 2, r_),
         valu("v_lshrrev_b32", r_, 1, r8), valu("v_lshlrev_b32", r_, 5, r_), valu("v_lshl_add_u32", r_, cp, 3, r_),
         valu("v_lshl_add_u32", r_, r8, 7, r_), valu("v_lshrrev_b32", g_, 1, g_), valu("v_lshl_add_u32", r_, g_, 10, r_),
         valu("v_add_u32", vWa[0], sCkv, r_)]
    o += [valu("v_xor_b32", vWa[i], i << 5, vWa[0]) for i in range(1, 4)]
    o += [salu("s_lshl_b32", sWOoff, sW, 21), salu("s_lshl_b32", sT0, sCT, 7), salu("s_add_u32", sWOoff, sWOoff, sT0),
          salu("s_lshl_b32", sT0, sB2, 7), salu("s_lshl_b32", sT1, sW, 5), salu("s_add_u32", sT0, sT0, sT1), salu("s_mul_i32", sObase, sT0, 9216)]
    DS = OPT("DSKEW", "2")
    if DS == "0": o += [salu("s_mov_b32", sOrd, 0)]
    elif DS == "1": o += [salu("s_and_b32", sOrd, sB2, 3)]
    else: o += [salu("s_xor_b32", sOrd, sB2, sCT), salu("s_and_b32", sOrd, sOrd, 3)]
    _wgrp[0] = 0
    return o
def kstep(t, dst):
    if OPT("DPH", "0") == "1": return [salu("s_add_u32", dst, sW, t), salu("s_and_b32", dst, dst, 15), salu("s_xor_b32", dst, dst, sOrd)]
    return [salu("s_xor_b32", dst, sOrd, t)]
def wo_batch(t):
    g = []
    for i in range(8):
        if i: pre = [salu("s_add_u32", M0, M0, 1024), salu("s_add_u32", sSO, sSO, 16384)]
        else: pre = kstep(t, sSO) + [salu("s_lshl_b32", sSO, sSO, 17), salu("s_add_u32", sSO, sSO, sWOoff), salu("s_add_u32", M0, sCkv, SIGW[t] * SG)]
        g.append(pre + [dma(vOffX, SRD_WO, sSO, flags=OPT("WOF"), tag=("W", t), region=regW(t))])
    return g
def sOo(t): return sOoff if t % 2 == 0 else sOffA
def o_base(t): return kstep(t, sKt) + [salu("s_mul_i32", sKt, sKt, 18432), salu("s_add_u32", sOo(t), sObase, sKt)]
def o_load(t, j, s):
    o = s * 9216 + j * 1024
    return vload(Of(t, j, s), vO[o >> 12], SRD_WS, sOo(t), o & 4095, flags=OFLAGS)
def rdW(t):
    grp = SIGW[t] >> 1
    o = []
    if grp != _wgrp[0]:
        o += [valu("v_add_u32", vWa[i], (grp - _wgrp[0]) * 2 * SG, vWa[i]) for i in range(4)]
        _wgrp[0] = grp
    return o + [ds_read("ds_read_b64_tr_b16", Wf(t, tt, s)[2 * h:2 * h + 2], vWa[tt], (SIGW[t] & 1) * SG + s * 4096 + h * 2048, regW(t))
                for tt in range(4) for s in range(2) for h in range(2)]
def red_write(j, tt):
    reg = (gran((j >> 1) * SG, SG), "R", True, "own")
    return ds_write("ds_write_b128", vRw[(j >> 2) * 2 + (tt & 1)], accD(j, tt), ((j >> 1) & 1) * SG + (j & 1) * 4096 + (tt >> 1) * 128, reg)

def stepD(t):
    units = SEQ[9 * t:9 * t + 9]
    mf = []; en = []; s = 0
    for i, (tt_, j) in enumerate(units):
        for tt in (range(4) if (9 * t + i) % 2 == 0 else range(3, -1, -1)):
            for q, k in enumerate((s, 1 - s)): mf.append(mfma(accD(j, tt), Wf(tt_, tt, k), Of(tt_, j, k), 0 if (tt_ == 0 and q == 0) else None))
            s = 1 - s
        en.append(len(mf) - 1)
    n = len(mf)
    fl = {}
    tr = t + 6
    if t >= 1 and tr <= 15:
        fl["lds"] = [F(wait_vm([("W", tr)]), 8, 10)] + spread(rdW(tr), 10, n - 16) + [F(wait_lgkm0(), n - 4, n - 3)]
    vm = []
    if t < 15:
        b = o_base(t + 1) if t < 14 else []
        if t == 13: b += o_base(15)
        vm += [F(x, min(i, 6), 6) for i, x in enumerate(b)]
        for i in range(9):
            nt, nj = SEQ[9 * t + 9 + i]
            vm += [F(o_load(nt, nj, 0), en[i], n - 1), F(o_load(nt, nj, 1), min(en[i] + 3, n - 1), n - 1)]
    fl["vm"] = vm
    tw = WSCHED.get(t)
    if tw is not None: fl["w"] = vm_fillers(wo_batch(tw), 12, n - 4)
    if t >= 14:
        red = [F(x, -1 + 4 * i, n - 1) for i, x in enumerate(stepD.carry)]; stepD.carry = []
        for i, (tt_, j) in enumerate(units):
            if tt_ == 15:
                for tt in range(4):
                    e = en[i] + 4 + 4 * tt
                    if e < n - 1 or t == 15: red.append(F(red_write(j, tt), min(e, n - 1), n - 1))
                    else: stepD.carry.append(red_write(j, tt))
        fl["red"] = red
    return interleave(mf, fl)
stepD.carry = []
WSCHED = {}

def phaseD(p, W):
    k = int(OPT("WPA", "8"))
    k = min(k, W.index("POLL"))
    p.emit(W[:k]); W = W[k:]
    for i in range(5): p.emit(valu("v_add_u32", vO[i], i * 4096, vL16))
    p.emit(salu("s_lshl_b32", sT0, sB, 12), salu("s_add_u32", sT0, sT0, FLG), scmp("s_cmp_eq_u32", sW, 0), salu("s_cselect_b32", sT0, sT0, OOB),
           valu("v_lshlrev_b32", V(184), 8, vLane), valu("v_mov_b32", V(185), 1))
    p.emit(wait_vm(["OST"]), barrier())
    p.emit(salu("s_mov_b64", EXEC, 0xffff), vstore(V(185), V(184), SRD_WS, sT0, flags="sc1", op="buffer_atomic_add"), salu("s_mov_b64", EXEC, -1))
    p.emit(stamp())
    rest = [t for t in range(7, 16) if t >= NPRE]
    st_ = 0
    for t in rest:
        st_ = max(st_, t - 10, 0); WSCHED[st_] = t; assert st_ <= t - 7; st_ += int(OPT("WGAP", "1"))
    g_ = vT[2]
    ra = [valu("v_lshrrev_b32", g_, 4, vLane),
          valu("v_and_b32", vT[0], 15, vLane), valu("v_and_b32", vT[1], 7, vLane), valu("v_xor_b32", vT[4], vT[1], g_),
          valu("v_lshlrev_b32", vT[4], 4, vT[4]), valu("v_lshl_add_u32", vT[4], vT[0], 8, vT[4]), valu("v_add_u32", vRw[0], sCkv, vT[4]),
          valu("v_xor_b32", vRw[1], 64, vRw[0])]
    ra += [valu("v_add_u32", vRw[i], 2 * SG, vRw[i - 2]) for i in range(2, 6)]
    ra += [valu("v_lshrrev_b32", vT[0], 3, vLane), valu("v_lshlrev_b32", vT[4], 1, vT[1]), valu("v_xor_b32", vT[4], vT[4], vT[0]),
           valu("v_lshlrev_b32", vT[4], 4, vT[4]), salu("s_lshl_b32", sT0, sW, 3), valu("v_add_u32", vT[0], sT0, vT[0]),
           valu("v_lshl_add_u32", vRr[0], vT[0], 8, vT[4]), valu("v_xor_b32", vRr[1], 16, vRr[0])]
    ra += [valu("v_add_u32", vRr[i], 2 * SG, vRr[i - 2]) for i in range(2, 6)]
    ra += [valu("v_lshlrev_b32", vOut, 11, vT[0]), valu("v_lshl_add_u32", vOut, vT[1], 4, vOut), valu("v_mov_b32", V(184), 0)]
    pl = [salu("s_mov_b64", EXEC, 1), vload(V(183), V(184), SRD_WS, sFl, flags="sc1"), salu("s_mov_b64", EXEC, -1)]
    i = W.index("POLL")
    p.emit(W[:i], ra, pl, W[i + 1:])
    p.emit(o_base(0), stamp())
    p.emit(valu("v_readfirstlane_b32", sT1, V(183)), scmp("s_cmp_ge_u32", sT1, 16), raw("s_cbranch_scc1 mha_polled", "branch"))
    p.emit(salu("s_mov_b32", sPoll, 1 << 17), salu("s_mov_b64", EXEC, 1))
    p.emit(label("mha_poll"))
    p.emit(raw("buffer_load_dword v183, v184, %s, %s offen sc1" % (SRD_WS, sFl), "other"), raw("s_waitcnt vmcnt(0)", "other"))
    p.emit(valu("v_readfirstlane_b32", sT1, V(183)), scmp("s_cmp_ge_u32", sT1, 16), raw("s_cbranch_scc1 mha_pollok", "branch"))
    p.emit(raw("s_sleep %s" % OPT("SLP", "4")), salu("s_sub_u32", sPoll, sPoll, 1), scmp("s_cmp_lg_u32", sPoll, 0), raw("s_cbranch_scc1 mha_poll", "branch"))
    p.emit(label("mha_pollok"), salu("s_mov_b64", EXEC, -1))
    p.emit(label("mha_polled"), stamp(), diag("d"))
    for j in range(9): p.emit(o_load(0, j, 0), o_load(0, j, 1))
    for t in range(16):
        p.emit(stepD(t))
        if t % 2: p.emit(stamp())
    p.emit(salu("s_mul_i32", sT0, sB2, 294912), salu("s_lshl_b32", sT1, sCT, 7), salu("s_add_u32", sT0, sT0, sT1))
    p.emit(wait_lgkm0(), barrier(), stamp())
    def buf(rd, i, h): return V(16 + (rd % 4) * 32 + i * 8 + h * 4, 4)
    def reads(rd):
        reg = (gran(rd * SG, SG), "R", True)
        return [ds_read("ds_read_b128", buf(rd, i, h), vRr[(rd >> 1) * 2 + h], (rd & 1) * SG + i * 8192, reg) for i in range(4) for h in range(2)]
    p.emit(reads(0))
    for rd in range(5):
        if rd + 1 < 5: p.emit(reads(rd + 1))
        if rd == 4: p.emit(scmp("s_cmp_ge_u32", sW, 2), raw("s_cbranch_scc1 mha_fin", "branch"))
        b0 = V(16 + (rd % 4) * 32, 32)
        for r in range(0, 8, 2): p.emit(valu("v_pk_add_f32", b0[r:r + 2], b0[r:r + 2], b0[8 + r:10 + r]))
        for r in range(0, 8, 2): p.emit(valu("v_pk_add_f32", b0[16 + r:18 + r], b0[16 + r:18 + r], b0[24 + r:26 + r]))
        for r in range(0, 8, 2): p.emit(valu("v_pk_add_f32", b0[r:r + 2], b0[r:r + 2], b0[16 + r:18 + r]))
        Pk = V(192 + rd * 4, 4)
        for r in range(4): p.emit(valu("v_cvt_pk_bf16_f32", Pk[r], b0[2 * r], b0[2 * r + 1]))
        p.emit(vstore(Pk, vOut, SRD_OUT, sT0, flags=OPT("OUTF", "sc1")))
        if rd < 4: p.emit(salu("s_add_u32", sT0, sT0, 32 * 2048))
    p.emit(label("mha_fin"), diag("end"))

KNAME = "standalone__mha_block_cached__near_ridge_kernel"
def build():
    k = Prog("mha"); setup(k)
    phaseA(k); W = phaseB(k); k.emit(stamp())
    phaseD(k, W); k.emit(stamp_store(32 << 20))
    k.emit(label("mha_end"), raw("s_endpgm"))
    fb = fallback()
    hdr = open("standalone__mha_block_cached__near_ridge.s.ref").read().split("; Override launch")[0]
    out = hdr
    out += "; @launch grid=(256,1,1) block=(256,1,1) lds=163840\n"
    out += '.amdgcn_target "amdgcn-amd-amdhsa--gfx950"\n.text\n'
    t = k.text()
    print(k.stats(), "est cycles", est_cycles([x for _, x in k.expanded(k.trace)]))
    out += ".globl %s\n.p2align 8\n.type %s,@function\n%s:\n%s" % (KNAME, KNAME, KNAME, t)
    out += "mha_code_end:\n" + fb.text()
    out += '.section .rodata,"a"\n.p2align 6\n' + kernel_desc(KNAME, 512, 102, 256)
    return out

if __name__ == "__main__":
    if "--stamps" in sys.argv:
        sys.argv.remove("--stamps"); STAMPS = True
    dst = sys.argv[1] if len(sys.argv) > 1 else "standalone__mha_block_cached__near_ridge.s"
    open(dst, "w").write(build())
```

```python
import struct, sys, os
from fw import *
from asmlib import kernel_desc
OPT = lambda k, d="": os.environ.get(k, d)

def f32(x): return struct.unpack("<I", struct.pack("<f", x))[0]
CSCALE = f32(1.4426950408889634 / (128 ** 0.5))

sWG = S(2)
sB2 = S(3)
SRD_X, SRD_WQ, SRD_K, SRD_V = S(4, 4), S(8, 4), S(12, 4), S(16, 4)
SRD_WS, SRD_WO, SRD_OUT, SRD_DBG = S(20, 4), S(24, 4), S(28, 4), S(32, 4)
PTR = S(36, 16)
sLINK = S(52, 2)
sTG, sKVend = S(54), S(55)
sW, sHD, sQH, sB, sHP = S(56), S(57), S(58), S(59), S(60)
sCNT = S(61)
sT0, sT1, sT2, sT3 = S(62), S(63), S(64), S(65)
sEX9 = S(66, 2)
sXoff, sX9off, sWoff = S(68), S(69), S(70)
sCx, sCx9, sCw = S(71), S(72), S(73)
sSlotR, sSlotW, sDelta = S(74), S(75), S(76)
sKVbase, sCkv = S(77), S(78)
sKs, sVs, sWa, sWb, sDk, sDv = S(79), S(80), S(81), S(82), S(83), S(84)
sOffA, sOffB = S(85), S(86)
sOb0, sOb1 = S(87), S(88)
sSC = S(89)
sSP = S(90)
sSO = S(91)
sOoff, sWOoff, sCT, sLw = S(92), S(93), S(94), S(95)
sC1 = S(96)
sFl = S(46)
sSC2 = S(44, 2)
sRot = S(47)
sRetry, sWOend, sPoll, sDw = S(66), S(67), S(68), S(69)

OOB = 0x10000000
ASLOT = 51200
XBYTES = 18432
SG = 32768
FLG = 24 << 20
KVFLAGS = OPT("KVF", "nt")
NPF = int(OPT("NPF", "2"))
assert NPF <= 2
OSF = OPT("OSF", "sc1")
QP = int(OPT("QP", "1"))
DP = int(OPT("DP", "0"))
WFIN = int(OPT("WFIN", "5"))
NPRE = int(OPT("NPRE", "12"))

vLane = V(0)
vOffX, vOffW, vOffKV, vL16 = V(1), V(2), V(3), V(4)
vXa = [V(5), V(6), V(7), V(8)]
vWb = V(9)
vT = [V(10), V(11), V(12), V(13), V(14), V(15)]
vPW, vTch = V(254), V(255)
vOffKV1 = V(15)
def accA(t, j):
    if j < 4: return V(16 + (t * 4 + j) * 4, 4)
    return V(144 + {0: 0, 1: 1, 4: 2, 5: 3}[t] * 4, 4)
def Bf(buf, j, s): return A(buf * 40 + (j * 2 + s) * 4, 4)
def Af(t, s): return A(80 + (t % 4) * 8 + s * 4, 4)
def Qf(j, s): return V(160 + (j * 4 + s) * 4, 4)
PARK = [int(x) for x in OPT("PARK", "8,12").split(",") if x]
JP = OPT("JP", "A")
PFR = {"A": {1: A(120, 32), 2: A(152, 32)}, "B": {0: A(120, 32), 1: A(152, 32)},
       "C": {0: A(120, 32), 2: V(208, 32), 1: A(152, 32)}}[JP]
EARLY = list(PFR)
T6 = JP != "A"
if T6: PFR[6] = A(120, 32)
for _i, _n in enumerate(PARK): PFR[_n] = A(192 + 32 * _i, 32)
def St(kt, j): return V(16 + (kt % 2) * 20 + j * 4, 4)
def Pf(buf, u, j): return V(56 + buf * 36 + (u * 5 + j) * 4, 4)
def Cb(j): return V(128 + 4 * j, 4)
def vL(j): return V(148 + j)
def vMin(j): return V(153 + j)
def Oa(t, j): return A((t * 5 + j) * 4, 4)
KALT = [False]; VALT = [False]
def Kf(kt, s): return A(160 + (16 if (KALT[0] and kt % 2) else 0) + s * 4, 4)
def Vf(t, u): return A((160 if (VALT[0] and (t >> 1) % 2 == 0) else 176) + (t % 2) * 8 + u * 4, 4)
def vKa(s0, u): return V(240 + s0 * 2 + u)
def vVa(t2, u): return V(244 + t2 * 2 + u)
NINTH_T = (0, 1, 4, 5)

STAMPS = False
def stamp():
    if not STAMPS: return []
    return [raw("s_memrealtime s[100:101]"), raw("s_memtime s[98:99]"), wait_lgkm0(), raw("s_mov_b32 s101, m0"), raw("s_mov_b32 m0, s97"),
            raw("v_writelane_b32 v252, s100, m0", "valu"), raw("v_writelane_b32 v253, s98, m0", "valu"), raw("s_add_u32 s97, s97, 1"),
            raw("s_mov_b32 m0, s101"), raw("s_nop 0")]
DIAG = OPT("DIAG")
def diag_start():
    return [raw("s_memrealtime s[98:99]")] if DIAG else []
def diag(point):
    if not DIAG or DIAG.split(":")[0] != point: return []
    return [label("mha_diag"), raw("s_memrealtime s[100:101]"), wait_lgkm0(), raw("s_sub_u32 s100, s100, s98"),
            raw("s_cmp_lt_u32 s100, %s" % DIAG.split(":")[1]), raw("s_cbranch_scc1 mha_diag", "branch")]
def stamp_init():
    if not STAMPS: return []
    return [raw("s_mov_b32 s97, 0"), raw("v_mov_b32 v252, 0", "valu"), raw("v_mov_b32 v253, 0", "valu")] + stamp()
def stamp_store(base):
    if not STAMPS: return []
    o = [raw("s_mov_b64 exec, -1"), wait_all_vm()] + stamp()
    o += srd(SRD_DBG, 7, 1 << 28)
    o += [salu("s_lshl_b32", sT0, sWG, 2), salu("s_add_u32", sT0, sT0, sW), salu("s_lshl_b32", sT0, sT0, 9), salu("s_add_u32", sT0, sT0, base),
          valu("v_lshlrev_b32", vT[0], 3, vLane), raw("s_nop 4"), vstore(V(252, 2), vT[0], SRD_DBG, sT0)]
    return o

def srd(dst, ptr_idx, nbytes):
    return [salu("s_mov_b32", dst[0], PTR[2 * ptr_idx]), salu("s_mov_b32", dst[1], PTR[2 * ptr_idx + 1]),
            salu("s_mov_b32", dst[2], nbytes), salu("s_mov_b32", dst[3], 0x20000)]

def gran(lo, n): return list(range(lo // 2048, (lo + n + 2047) // 2048))
def regA(st): return (gran((st % 3) * ASLOT, ASLOT), ("A", st), True)
def sigB(n): return (n + 2) % 5
def regB(n): return (gran(sigB(n) * SG, SG), ("B", n), True)
def regBw(n): return regB(n) + ("own",)

def vm_fillers(groups, g0, g1, slack=2):
    out = []; n = len(groups)
    for i, grp in enumerate(groups):
        t = g0 + (g1 - g0) * i // max(1, n)
        isv = [any(y.kind in VM for y in flatten([x])) for x in grp]
        k = isv.index(True) if True in isv else len(grp) - 1
        for q, x in enumerate(grp):
            e = max(0, t + q - k)
            out.append(F(x, e, max(e, t) + slack))
    return out

def end_stream(n, tags, loop=False, lg=0):
    o = []
    if loop: o += [F(loopctl(), n - 5, n - 5)] + ([] if STAMPS else [F(loopcmp(), n - 4, n - 4)])
    o += [F(wait_both(tags, lg), n - 3, n - 3), F([barrier()] + stamp(), n - 2, n - 2)]
    return o

def setup(p):
    p.emit(scmp("s_cmp_ge_u32", sWG, 256), raw("s_cbranch_scc1 mha_end", "branch"))
    p.emit(diag_start(), raw("s_load_dwordx16 %s, s[0:1], 0" % PTR, wr=[PTR]))
    p.emit(valu("v_lshrrev_b32", vT[0], 6, V(0)), valu("v_and_b32", vLane, 63, V(0)))
    p.emit(valu("v_readfirstlane_b32", sW, vT[0]))
    p.emit(valu("v_lshlrev_b32", vL16, 4, vLane))
    p.emit(valu("v_lshrrev_b32", vT[2], 4, vLane), valu("v_lshlrev_b32", vT[3], 1, vT[2]),
           valu("v_and_b32", vT[1], 7, vLane), valu("v_xor_b32", vT[1], vT[1], vT[3]), valu("v_lshlrev_b32", vT[1], 4, vT[1]))
    p.emit(valu("v_lshrrev_b32", vT[4], 3, vLane))
    p.emit(valu("v_lshl_add_u32", vOffX, vT[4], 11, vT[1]))
    p.emit(salu("s_lshr_b32", sHD, sW, 1), salu("s_and_b32", sQH, sW, 1))
    p.emit(salu("s_and_b32", sT0, sWG, 7), salu("s_lshr_b32", sT1, sWG, 3))
    p.emit(salu("s_and_b32", sB, sT0, 1), salu("s_lshl_b32", sB, sB, 3), salu("s_and_b32", sT2, sT1, 7), salu("s_add_u32", sB, sB, sT2))
    p.emit(salu("s_lshr_b32", sHP, sT0, 1), salu("s_lshl_b32", sHP, sHP, 2), salu("s_lshr_b32", sT2, sT1, 3), salu("s_add_u32", sHP, sHP, sT2))
    p.emit(salu("s_mul_i32", sT0, sB, 294912))
    p.emit(salu("s_lshl_b32", sT1, sW, 16), salu("s_add_u32", sXoff, sT0, sT1))
    p.emit(salu("s_add_u32", sT1, sHD, 16), salu("s_lshl_b32", sCx9, sT1, 10), salu("s_lshl_b32", sT1, sT1, 14), salu("s_add_u32", sX9off, sT0, sT1))
    p.emit(salu("s_lshl_b32", sCx, sW, 12))
    p.emit(salu("s_lshl_b32", sWoff, sQH, 16), salu("s_lshl_b32", sT1, sHP, 9), salu("s_add_u32", sWoff, sWoff, sT1),
           salu("s_lshl_b32", sT1, sHD, 8), salu("s_add_u32", sWoff, sWoff, sT1))
    p.emit(salu("s_lshl_b32", sCw, sHD, 14), salu("s_lshl_b32", sT1, sQH, 11), salu("s_add_u32", sCw, sCw, sT1), salu("s_add_u32", sCw, sCw, XBYTES))
    SK = OPT("SKEW", "6")
    if SK != "0":
        if SK == "1":
            p.emit(salu("s_lshl_b32", sT1, sB, 1), salu("s_lshl_b32", sT2, sHP, 2), salu("s_xor_b32", sT1, sT1, sT2))
        elif SK == "2":
            p.emit(salu("s_lshl_b32", sT1, sB, 1), salu("s_lshr_b32", sT2, sB, 3), salu("s_or_b32", sT1, sT1, sT2),
                   salu("s_lshl_b32", sT2, sHP, 2), salu("s_xor_b32", sT1, sT1, sT2), salu("s_lshr_b32", sT2, sHP, 2), salu("s_xor_b32", sT1, sT1, sT2))
        elif SK == "3":
            p.emit(salu("s_lshl_b32", sT2, sHP, 1), salu("s_xor_b32", sT1, sB, sT2), salu("s_and_b32", sT1, sT1, 7))
        elif SK == "6":
            p.emit(salu("s_xor_b32", sT1, sB, sHP), salu("s_max_u32", sKs, sT1, DP), salu("s_mov_b32", sVs, sXoff), salu("s_mov_b32", sWa, sX9off),
                   salu("s_mov_b32", sWb, sWoff))
            if DP: p.emit(salu("s_mov_b32", sT1, 0))
        elif SK in ("4", "5"):
            p.emit(salu("s_xor_b32", sT1, sB, sHP), salu("s_and_b32", sT1, sT1, 3 if SK == "4" else 1))
        p.emit(salu("s_and_b32", sT1, sT1, 15), salu("s_lshl_b32", sT2, sT1, 7), salu("s_add_u32", sXoff, sXoff, sT2), salu("s_add_u32", sX9off, sX9off, sT2),
               salu("s_lshl_b32", sT2, sT1, 19), salu("s_add_u32", sWoff, sWoff, sT2))
    p.emit(scmp("s_cmp_eq_u32", sQH, 0), salu("s_cselect_b32", sEX9[0], -1, 0), salu("s_cselect_b32", sEX9[1], 0, -1))
    p.emit(salu("s_lshl_b32", sT1, sQH, 2), valu("v_or_b32", vT[3], sT1, vT[2]), valu("v_lshlrev_b32", vT[3], 1, vT[3]),
           valu("v_and_b32", vT[4], 15, vLane), valu("v_xor_b32", vT[3], vT[3], vT[4]), valu("v_lshlrev_b32", vT[3], 4, vT[3]),
           valu("v_lshl_add_u32", vOffW, vT[2], 13, vT[3]))
    p.emit(wait_lgkm0(), stamp_init())
    p.emit(srd(SRD_X, 0, 16 * 144 * 2048), srd(SRD_WQ, 3, 1024 * 8192))

def setup2(p):
    p.emit(srd(SRD_K, 1, 1 << 26), srd(SRD_V, 2, 1 << 26), srd(SRD_WS, 7, FLG + 65536))
    p.emit(srd(SRD_WO, 4, 4096 * 2048), srd(SRD_OUT, 5, 16 * 144 * 2048), srd(SRD_DBG, 6, 256))
    p.emit(valu("v_lshrrev_b32", vT[3], 1, vT[4]), valu("v_and_b32", vT[3], 3, vT[3]), valu("v_lshlrev_b32", vT[3], 1, vT[3]),
           valu("v_xor_b32", vT[3], vT[3], vT[2]), valu("v_lshlrev_b32", vT[3], 4, vT[3]))
    p.emit(valu("v_lshrrev_b32", vT[5], 2, vT[4]), valu("v_lshlrev_b32", vT[5], 10, vT[5]), valu("v_and_b32", vT[0], 3, vT[4]),
           valu("v_lshl_add_u32", vT[5], vT[0], 7, vT[5]), valu("v_add_u32", vT[5], vT[5], vT[3]))
    p.emit(salu("s_lshl_b32", sT0, sHD, 14), salu("s_add_u32", sT0, sT0, 2 * SG), valu("v_add_u32", vT[5], sT0, vT[5]))
    p.emit(salu("s_mul_i32", sT1, sQH, 8192 + 64), valu("v_xor_b32", vKa(0, 0), sT1, vT[5]))
    p.emit(valu("v_xor_b32", vKa(0, 1), 8192, vKa(0, 0)), valu("v_xor_b32", vKa(1, 0), 64, vKa(0, 0)), valu("v_xor_b32", vKa(1, 1), 64, vKa(0, 1)))
    p.emit(valu("v_lshl_add_u32", vT[3], vT[4], 7, vT[3]))
    p.emit(salu("s_lshl_b32", sT1, sQH, 13), valu("v_add_u32", vXa[0], sT1, vT[3]),
           valu("v_xor_b32", vXa[1], 64, vXa[0]), valu("v_add_u32", vXa[2], 128 * 128, vT[3]), valu("v_xor_b32", vXa[3], 64, vXa[2]))
    r_, cp = vT[0], vT[1]
    p.emit(valu("v_bfe_u32", r_, vLane, 2, 2), valu("v_and_b32", cp, 3, vLane))
    p.emit(valu("v_and_b32", vT[3], 1, vT[2]), valu("v_lshl_add_u32", vT[3], vT[3], 2, r_))
    p.emit(salu("s_lshl_b32", sT1, sQH, 1), valu("v_xor_b32", vT[5], sT1, vT[3]), valu("v_lshlrev_b32", vT[5], 5, vT[5]))
    if QP: p.emit(valu("v_lshlrev_b32", vT[4], 4, cp), valu("v_xor_b32", vT[5], vT[5], vT[4]))
    else: p.emit(valu("v_lshl_add_u32", vT[5], cp, 3, vT[5]))
    p.emit(valu("v_lshl_add_u32", vT[4], vT[2], 3, r_), valu("v_lshl_add_u32", vT[5], vT[4], 8, vT[5]))
    p.emit(salu("s_lshl_b32", sT0, sHD, 14), salu("s_add_u32", sT0, sT0, XBYTES), valu("v_add_u32", vWb, sT0, vT[5]))
    p.emit(valu("v_lshrrev_b32", vT[4], 1, vT[3]), valu("v_xor_b32", vT[4], sT1, vT[4]), valu("v_lshlrev_b32", vT[4], 5, vT[4]),
           valu("v_lshl_add_u32", vT[4], cp, 3, vT[4]), valu("v_lshl_add_u32", vT[4], r_, 7, vT[4]),
           valu("v_lshl_add_u32", vT[4], vT[2], 10, vT[4]))
    p.emit(salu("s_lshl_b32", sCkv, sW, 13), salu("s_add_u32", sT0, sCkv, 4 * SG), valu("v_add_u32", vVa(0, 0), sT0, vT[4]))
    for t2 in range(4):
        if t2: p.emit(valu("v_xor_b32", vVa(t2, 0), t2 << 5, vVa(0, 0)))
        p.emit(valu("v_xor_b32", vVa(t2, 1), 8192, vVa(t2, 0)))
    p.emit(salu("s_lshl_b32", sT0, sB, 5), salu("s_lshl_b32", sT1, sHP, 1), salu("s_add_u32", sT0, sT0, sT1), salu("s_add_u32", sT0, sT0, sHD))
    p.emit(salu("s_lshl_b32", sKVbase, sT0, 17), salu("s_lshl_b32", sT1, sQH, 13), salu("s_add_u32", sKVbase, sKVbase, sT1),
           salu("s_add_u32", sKVend, sKVbase, 8 * 16384))
    p.emit(salu("s_lshl_b32", sT0, sT0, 2), salu("s_add_u32", sT1, sT0, sQH), salu("s_mul_i32", sOb0, sT1, 9216),
           salu("s_xor_b32", sT1, sT1, 1), salu("s_mul_i32", sOb1, sT1, 9216))
    p.emit(salu("s_and_b32", sT0, sWG, 7), salu("s_lshr_b32", sT1, sWG, 3))
    p.emit(salu("s_and_b32", sB2, sT0, 3), salu("s_lshl_b32", sB2, sB2, 2), salu("s_and_b32", sT2, sT1, 3), salu("s_add_u32", sB2, sB2, sT2))
    p.emit(salu("s_lshr_b32", sCT, sT0, 2), salu("s_lshl_b32", sCT, sCT, 3), salu("s_lshr_b32", sT2, sT1, 2), salu("s_add_u32", sCT, sCT, sT2))
    if OPT("CTX"): p.emit(salu("s_xor_b32", sCT, sCT, int(OPT("CTX"))))
    if OPT("TWB", "1") == "1":
        p.emit(salu("s_lshr_b32", sTG, sHP, 1), salu("s_lshl_b32", sTG, sTG, 4), salu("s_add_u32", sTG, sTG, sB), salu("s_lshl_b32", sTG, sTG, 2),
               salu("s_add_u32", sTG, sTG, sW), salu("s_lshl_b32", sTG, sTG, 14),
               salu("s_and_b32", sT2, sHP, 1), salu("s_xor_b32", sT2, sT2, 1), salu("s_lshl_b32", sT2, sT2, 28), salu("s_or_b32", sTG, sTG, sT2))
    else:
        p.emit(salu("s_lshl_b32", sTG, sWG, 15), salu("s_add_u32", sTG, sTG, sCkv))
    p.emit(valu("v_add_u32", vPW, sCkv, vL16))
    p.emit(valu("v_bfe_u32", vT[0], vLane, 3, 2), valu("v_and_b32", vT[1], 2, vT[0]), valu("v_and_b32", vT[3], 7, vLane),
           valu("v_xor_b32", vT[1], vT[1], vT[3]), valu("v_lshlrev_b32", vT[1], 4, vT[1]), valu("v_lshl_add_u32", vT[1], vT[0], 8, vT[1]),
           valu("v_lshrrev_b32", vT[0], 5, vLane), valu("v_lshl_add_u32", vOffKV, vT[0], 7, vT[1]), valu("v_xor_b32", vOffKV1, 64, vOffKV))
    if OPT("ROT", "1") == "1": p.emit(salu("s_add_u32", sRot, sT1, sWG), salu("s_and_b32", sRot, sRot, 7), salu("s_lshl_b32", sRot, sRot, 14))
    else: p.emit(salu("s_mov_b32", sRot, 0))
    p.emit(salu("s_mov_b32", sSC, CSCALE), salu("s_mov_b32", sSlotR, 0), salu("s_mov_b32", sSlotW, 2 * ASLOT), salu("s_mov_b32", sC1, ASLOT))
    p.emit(valu("v_mov_b32", V(203), 0), salu("s_mov_b32", sSC2[0], CSCALE), salu("s_mov_b32", sSC2[1], CSCALE))

def dma_batchA(st):
    reg = regA(st); tag = ("A", st)
    g = []
    rows = [0, 4, 16, 20, 32, 36, 48, 52]
    def wq(i):
        pi = rows[i] // 4
        m = salu("s_add_u32", M0, sSlotW, sCw) if i == 0 else salu("s_add_u32", M0, M0, (pi - rows[i - 1] // 4) * 1024)
        return [m, salu("s_add_u32", sSO, sWoff, rows[i] * 8192), dma(vOffW, SRD_WQ, sSO, flags=OPT("WQF"), tag=tag, region=reg)]
    def xx(i):
        m = salu("s_add_u32", M0, sSlotW, sCx) if i == 0 else salu("s_add_u32", M0, M0, 1024)
        return [m, salu("s_add_u32", sSO, sXoff, i * 16384), dma(vOffX, SRD_X, sSO, flags=OPT("XF"), tag=tag, region=reg)]
    for i in range(4): g.append(xx(i))
    g.append([salu("s_add_u32", M0, sSlotW, sCx9),
              [salu("s_mov_b64", EXEC, sEX9), dma(vOffX, SRD_X, sX9off, flags=OPT("XF"), tag=tag, region=reg), salu("s_mov_b64", EXEC, -1)]])
    for i in range(8): g.append(wq(i))
    if st >= 3: thr(g, "ATH")
    dl = (st ^ (st + 1)) & 15
    adv = [salu("s_xor_b32", sXoff, sXoff, dl * 128), salu("s_xor_b32", sX9off, sX9off, dl * 128), salu("s_xor_b32", sWoff, sWoff, dl * 64 * 8192)]
    if OPT("SKEW", "6") == "6":
        nxt = [scmp("s_cmp_gt_u32", sKs, st), salu("s_cselect_b32", sDk, st, st + 1)]
        if st + 1 < DP: nxt = [salu("s_mov_b32", sDk, st + 1)]
        elif st + 1 == DP: nxt = [salu("s_mov_b32", sDk, sKs)]
        adv = [nxt, salu("s_lshl_b32", sDv, sDk, 7),
               salu("s_add_u32", sXoff, sVs, sDv), salu("s_add_u32", sX9off, sWa, sDv), salu("s_lshl_b32", sDv, sDk, 19), salu("s_add_u32", sWoff, sWb, sDv)]
    return g, adv

def entry_src(n):
    if n == 0: return SRD_K, 0
    if n == 15: return SRD_V, 7
    return (SRD_K, (n + 1) // 2) if n % 2 else (SRD_V, n // 2 - 1)

def kv_batch(n, srd_=None, soff=None, ldsbase=None):
    const = 0
    if srd_ is None:
        srd_, ch = entry_src(n); soff = sKVbase; const = ch * 16384; ldsbase = sigB(n) * SG
    g = []
    KVCL = int(OPT("KVCL", "1"))
    for i in range(8):
        grp = []
        if i % 4 == 0:
            m = salu("s_add_u32", M0, sCkv, ldsbase) if i == 0 else salu("s_add_u32", M0, M0, 4096)
            grp += [m, salu("s_add_u32", sSO, soff, const + i * 1024), salu("s_xor_b32", sSO, sSO, sRot)]
        grp.append(dma(vOffKV1 if i % 2 else vOffKV, srd_, sSO, (i % 4) * 1024, flags=KVFLAGS, tag=("B", n), region=regBw(n)))
        if i % KVCL == 0: g.append(grp)
        else: g[-1] += grp
    return g

def thr(groups, key, dflt=""):
    v = OPT(key, dflt)
    if v:
        for g in groups: g.insert(len(g) - 1, raw("s_waitcnt vmcnt(%s)" % v, "salu"))
    return groups
def pf_load(n, i):
    srd_, ch = entry_src(n)
    return [salu("s_add_u32", sSP, sKVbase, ch * 16384 + (i >> 2) * 4096), salu("s_xor_b32", sSP, sSP, sRot),
            vload(PFR[n][4 * i:4 * i + 4], vOffKV1 if i % 2 else vOffKV, srd_, sSP, (i % 4) * 1024, flags=KVFLAGS)]
def pf_write(n, tmp):
    base = sigB(n) * SG
    o = [valu("v_add_u32", tmp, base, vPW)] if base else []
    ad = tmp if base else vPW
    return o + [ds_write("ds_write_b128", ad, PFR[n][4 * i:4 * i + 4], i * 1024, regBw(n)) for i in range(8)]

def blockA(t, buf, rev, s_first, zero=False):
    js = [0, 1, 2, 3] + ([4] if t in NINTH_T else [])
    if rev: js = js[::-1]
    out = []; s = s_first
    for j in js:
        for i, k in enumerate((s, 1 - s)): out.append(mfma(accA(t, j), Af(t, k), Bf(buf, j, k), 0 if (zero and i == 0) else None))
        s = 1 - s
    return out, s

XINL = 22
def epochA(e, groups, adv, g0, g1, endtags, extra=None, ndum=0):
    buf = e % 2
    mf = []; start = {}; end = {}
    s = 0
    for key, t, b in [("L6", 6, 1 - buf), ("L7", 7, 1 - buf)] + [(t, t, buf) for t in range(6)]:
        start[key] = len(mf)
        blk, s = blockA(t, b, rev=(t % 2 == 1), s_first=s, zero=(e == 0 or (e == 1 and t >= 6)))
        mf += blk; end[key] = len(mf) - 1
    n = len(mf)
    reg = regA(e)
    def rdA(t):
        if QP:
            tmp = vWb if t < 2 else vT[(t >> 1) % 2]
            o = [] if (t < 2 or t % 2) else [valu("v_xor_b32", tmp, (t >> 1) << 6, vWb)]
            return o + [ds_read("ds_read_b64_tr_b16", Af(t, s_)[2 * h:2 * h + 2], tmp, s_ * 8192 + h * 1024 + (t & 1) * 8, reg) for s_ in range(2) for h in range(2)]
        tmp = vWb if t == 0 else vT[t % 2]
        o = [] if t == 0 else [valu("v_xor_b32", tmp, t << 5, vWb)]
        return o + [ds_read("ds_read_b64_tr_b16", Af(t, s_)[2 * h:2 * h + 2], tmp, s_ * 8192 + h * 1024, reg) for s_ in range(2) for h in range(2)]
    def rdB(j, s_):
        ad = vXa[s_] if j < 4 else vXa[2 + s_]
        return ds_read("ds_read_b128", Bf(buf, j, s_), ad, (j * 2048) if j < 4 else 0, reg)
    a0 = rdA(0)
    first = [rdB(0, 0), a0[0], a0[1], rdB(0, 1), a0[2], a0[3], rdB(1, 1), rdB(1, 0), rdB(2, 0), rdB(2, 1), rdB(3, 1), rdB(3, 0), rdB(4, 0), rdB(4, 1)]
    lds = spread(first, -1, 15, slack=1)
    lds += spread(rdA(1), 15, 20, slack=1)
    prev = {2: "L6", 3: "L7", 4: 0, 5: 1, 6: 2, 7: 3}
    pos = 20
    for t in range(2, 8):
        lo = max(end[prev[t]], pos)
        lds += spread(rdA(t), lo, lo + 6, slack=1); pos = lo + 6
        assert t >= 6 or pos + 1 <= start[t] - 4, (t, pos, start[t])
    if ndum:
        lds += spread([ds_read("ds_read_b32", V(161 + i), vL16) for i in range(ndum)], pos + 1, pos + 1 + ndum // 2, slack=1)
    fl = {"lds": lds, "end": end_stream(n, endtags, lg=ndum)}
    vm = vm_fillers(groups, g0, g1) if groups else []
    vm += [F(x, g1, n - 6) for x in adv]
    if e < 15:
        sel = F([scmp("s_cmp_eq_u32", sSlotR, 2 * ASLOT), salu("s_cselect_b32", sDelta, -2 * ASLOT, sC1)], g1, n - 6)
        vm += [F(salu("s_mov_b32", sSlotW, sSlotR), g1, n - 6), sel, F(salu("s_add_u32", sSlotR, sSlotR, sDelta), g1, n - 5)]
        lds += [F(valu("v_add_u32", r, sDelta, r), pos + 1, n - 1, [sel]) for r in [vWb] + vXa]
    fl["vm"] = vm
    if extra: fl.update(extra(start, end, n))
    out = interleave(mf, fl)
    if e == 0:
        lead = set(id(x) for x in mf[:16])
        out = [x for x in out if id(x) not in lead]
    return out

def split_at_mfma(ins, k):
    idx = [i for i, x in enumerate(ins) if x.kind == "mfma"][k]
    return ins[:idx], ins[idx:]

def q_convert(j, s, pk=False):
    t0, t1 = 2 * s, 2 * s + 1
    a0, a1, q = accA(t0, j), accA(t1, j), Qf(j, s)
    o = []
    for a_ in (a0, a1):
        if pk:
            for r in (0, 2): o.append(valu("v_pk_mul_f32", a_[r:r + 2], a_[r:r + 2], sSC2))
        else:
            for r in range(4): o.append(valu("v_mul_f32", a_[r], sSC, a_[r]))
    o += [valu("v_cvt_pk_bf16_f32", q[0], a0[0], a0[1]), valu("v_cvt_pk_bf16_f32", q[2], a1[0], a1[1]),
          valu("v_cvt_pk_bf16_f32", q[1], a0[2], a0[3]), valu("v_cvt_pk_bf16_f32", q[3], a1[2], a1[3])]
    sw1 = [valu("v_permlane32_swap_b32", q[0], q[2]), valu("v_permlane32_swap_b32", q[1], q[3])]
    sw2 = [valu("v_permlane16_swap_b32", q[0], q[2]), valu("v_permlane16_swap_b32", q[1], q[3])]
    if QP: sw1, sw2 = [], []
    return o, sw1, sw2
def q_convert_seq(items):
    out = []; pend1 = pend2 = None
    for it in items:
        o, s1, s2 = q_convert(*it)
        out += o[:len(o) // 2]
        if pend2: out += pend2
        pend2 = None
        out += o[len(o) // 2:]
        if pend1: out += pend1[0]; pend2 = pend1[1]
        pend1 = (s1, s2)
    if pend2: out += pend2
    out += pend1[0] + pend1[1]
    return out

def phaseA(p):
    p.emit(salu("s_mov_b32", sSlotW, 0))
    g, adv = dma_batchA(0)
    p.emit(g, adv)
    if OPT("CW", "1") == "1":
        p.emit(raw("s_getpc_b64 s[16:17]", wr=[S(16, 2)]), label("mha_pc"), salu("s_and_b32", S(17), S(17), 0xffff),
               raw("s_mov_b32 s18, mha_code_end-mha_pc", wr=[S(18)]), salu("s_mov_b32", S(19), 0x20000))
        p.emit(salu("s_lshr_b32", sT0, sWG, 3), salu("s_lshl_b32", sT0, sT0, 2), salu("s_add_u32", sT0, sT0, sW), salu("s_lshl_b32", sT0, sT0, 7),
               valu("v_lshlrev_b32", vT[0], 14, vLane), vload(V(200), vT[0], S(16, 4), sT0))
    if OPT("TXW") == "1":
        p.emit(salu("s_lshl_b32", sT0, sWG, 2), salu("s_add_u32", sT0, sT0, sW), salu("s_lshl_b32", sT0, sT0, 13),
               valu("v_lshlrev_b32", vT[0], 7, vLane), vload(V(201), vT[0], SRD_WQ, sT0), vload(V(202), vT[0], SRD_X, sT0))
    q = Prog("tmp"); setup2(q)
    g, adv = dma_batchA(1)
    rest = list(q.static); k = len(rest) // (len(g) + 1)
    p.emit(salu("s_mov_b32", sSlotW, ASLOT))
    for i, grp in enumerate(g):
        p.emit(rest[i * k:(i + 1) * k], grp)
    p.emit(adv, rest[len(g) * k:])
    p.emit(salu("s_lshl_b32", sT0, sB2, 4), salu("s_add_u32", sT0, sT0, sCT), salu("s_lshl_b32", sT0, sT0, 8), salu("s_add_u32", sFl, sT0, FLG),
           scmp("s_cmp_eq_u32", sW, 0), salu("s_cselect_b32", sT0, sFl, OOB), salu("s_mov_b64", EXEC, 1),
           vstore(V(203), V(203), SRD_WS, sT0, flags="sc0 sc1", tag="ZF"), salu("s_mov_b64", EXEC, -1))
    p.emit(wait_vm([("A", 0)]), barrier(), stamp(), diag("a0"))
    pf = [pf_load(n, i) for n in PARK[::-1] + EARLY for i in range(8)]
    if OPT("TWO", "1") == "1":
        ntw = 16 if OPT("TWB", "1") == "1" else 8
        tw = [[salu("s_add_u32", sSP, sTG, (i >> 2) * 4096), vload(V(160 + 4 * (i % 8), 4), vL16, SRD_WO, sSP, (i & 3) * 1024)] for i in range(ntw)]
        m = len(pf) + len(tw); mix = []
        if OPT("TWP", "mix") == "mix":
            for k in range(m):
                mix.append(tw.pop(0) if (tw and ((k + 1) * ntw // m > k * ntw // m)) else pf.pop(0))
        else: mix = tw + pf
        pf = mix
    if OPT("PRE", "0") == "1":
        pre = []
        for s_ in range(4):
            for j in range(4):
                pre.append([salu("s_lshl_b32", sSP, sQH, 12), salu("s_add_u32", sSP, sSP, sOb0 if s_ % 2 == 0 else sOb1),
                            salu("s_add_u32", sSP, sSP, (s_ >> 1) * 18432), vstore(V(240, 4), vL16, SRD_WS, sSP, j * 1024, flags=OSF)])
        for i in range(2): pre.append([salu("s_add_u32", sSP, sOb0, 8192 + i * 18432), vstore(V(240, 4), vL16, SRD_WS, sSP, 0, flags=OSF)])
        m = len(pf) + len(pre); mix = []; np_ = len(pre)
        for k in range(m):
            mix.append(pre.pop(0) if (pre and ((k + 1) * np_ // m > k * np_ // m)) else pf.pop(0))
        pf = mix
    PF0 = int(OPT("PF0", "1"))
    pos = [PF0 * 72 + (14 - PF0) * 72 * (2 * k + 1) // (2 * len(pf)) for k in range(len(pf))]
    PFC = int(OPT("PFC", "0"))
    if PFC:
        eps = [e for e in range(PF0, 14) if (e - PF0) % PFC == 0]
        per = -(-len(pf) // len(eps))
        pos = [eps[k // per] * 72 + int(OPT("PFP", "50")) + 2 * (k % per) for k in range(len(pf))]
    for e in range(14):
        g, adv = dma_batchA(e + 2)
        def extra(start, end, n):
            o = []
            for k, x in enumerate(pf):
                if pos[k] // 72 == e:
                    t = min(max(pos[k] % 72, 3), n - 6)
                    o += vm_fillers([x], t, t)
            if e == 2:
                o = [F([wait_vm(["ZF"]), salu("s_lshl_b32", sT0, sB2, 4), scmp("s_cmp_eq_u32", sW, 0), salu("s_cselect_b32", sT0, sT0, OOB),
                        valu("v_mov_b32", V(204), 0), valu("v_mov_b32", V(205), 1), salu("s_mov_b64", EXEC, 1),
                        vstore(V(205), V(204), SRD_DBG, sT0, flags="sc1", op="buffer_atomic_add"), salu("s_mov_b64", EXEC, -1)], 40, 44)] + o
                o.sort(key=lambda f: f.e)
            return {"pf": o} if o else {}
        p.emit(epochA(e, g, adv, int(OPT("AG0", "2")) + (14 if e == 0 else 0), int(OPT("AG1", "62")), [("A", e + 1)], extra))
    p.emit(diag("a14"))
    l6 = [pf_load(6, i) for i in range(8)] if T6 else []
    if 0 in EARLY:
        def extra14(start, end, n):
            w = spread(pf_write(0, vT[2]), 2, 44, slack=2)
            o = []
            for i in range(4):
                f = vm_fillers([l6[i]], 30 + 10 * i, 30 + 10 * i); f[-1].deps.append(w[min(i + 3, 8)]); o += f
            return {"pw": w, "pf": o}
        p.emit(epochA(14, [], [], 4, 60, [("A", 15)], extra14))
    else:
        p.emit(epochA(14, kv_batch(0), [], 4, 60, [("A", 15)]))
    def extra15(start, end, n):
        d = {}
        w = []
        for m in EARLY:
            if m: w += pf_write(m, vT[2 + m])
        d["pw"] = spread(w, 2, 66 if len(w) > 9 else 50, slack=2)
        cv = [F(x, end[1] + 4, n - 1) for x in q_convert_seq([(4, 0)] + [(j, 0) for j in range(4)])]
        if JP == "C": cv[0].deps.append(d["pw"][9])
        d["cv"] = cv
        if T6: d["pf"] = vm_fillers(l6[4:], 4, 60 if JP == "C" else 28)
        return d
    g = []
    for m in (1, 2):
        if m not in EARLY: g += thr(kv_batch(m), "JTH")
    p.emit(epochA(15, g, [], 30 if T6 else 4, 64, [], extra15))
    mf = []; s = 0
    for t in (6, 7):
        blk, s = blockA(t, 1, rev=(t % 2 == 1), s_first=s); mf += blk
    p.emit(salu("s_lshl_b32", sT0, sB, 4), valu("v_mov_b32", V(8), 0), salu("s_mov_b64", EXEC, 1),
           vload(V(9), V(8), SRD_DBG, sT0, flags="sc1"), salu("s_mov_b64", EXEC, -1))
    fl = {}
    fl["vm"] = vm_fillers(thr(kv_batch(3), "JTH"), 2, 14, slack=0)
    fl["cv"] = [F(x, 2, 15) for x in q_convert_seq([(4, 2)] + [(j, 1) for j in range(4)])]
    p.emit(interleave(mf, fl))
    reg = (gran(SG, SG), "X", True)
    p.emit(valu("v_xor_b32", vT[0], SG + 8192, vPW))
    p.emit(ds_write("ds_write_b128", vT[0], Qf(4, 0), 0, reg), ds_write("ds_write_b128", vT[0], Qf(4, 2), 1024, reg))
    p.emit(q_convert_seq([(j, s_, True) for j in range(4) for s_ in (2, 3)]))
    p.emit(valu("v_readfirstlane_b32", sT1, V(9)), scmp("s_cmp_lt_u32", sT1, 16), raw("s_cbranch_scc1 mha_gate", "branch"), label("mha_gate_ok"))
    p.emit(stamp(), wait_both([("B", 0)] if 0 not in EARLY else []), barrier(), stamp())
    reg = reg + ("own",)
    p.emit(ds_read("ds_read_b128", Qf(4, 1), vPW, SG, reg), ds_read("ds_read_b128", Qf(4, 3), vPW, SG + 1024, reg))

def blockQ(kt, czero=False):
    js = [0, 1, 2, 3] + ([4] if kt < 2 else [])
    out = []; last = {}; first = {}; fwd = True
    for j in js:
        ss = [0, 1, 2, 3] if fwd else [3, 2, 1, 0]
        first[j] = len(out)
        for i, s in enumerate(ss):
            c = None if i else (0 if czero else Cb(j))
            out.append(mfma(St(kt, j), Kf(kt, s), Qf(j, s), c))
        last[j] = len(out) - 1
        fwd = not fwd
    return out, first, last

def blockP(b, buf, zero=False, swap=False):
    out = []
    for t in ((2 * b + 1, 2 * b) if swap else (2 * b, 2 * b + 1)):
        nin = mfma(Oa(t, 4), Vf(t, 0), Pf(buf, 0, 4), 0 if zero else None)
        if t % 2: out.append(nin)
        u = 0
        for j in ((0, 1, 2, 3) if t % 2 == 0 else (3, 2, 1, 0)):
            for i, k in enumerate((u, 1 - u)): out.append(mfma(Oa(t, j), Vf(t, k), Pf(buf, k, j), 0 if (zero and i == 0) else None))
            u = 1 - u
        if t % 2 == 0: out.append(nin)
    return out

def softmax_tile(kt, j, buf, e, d, ex, rest, sub=False):
    s = St(kt, j); pf = Pf(buf, kt // 2, j)[2 * (kt % 2):2 * (kt % 2) + 2]
    E = []
    for r in range(4):
        ins = [valu("v_exp_f32", s[r], s[r])]
        if sub: ins = [valu("v_add_f32", s[r], s[r], Cb(j)[0])] + ins
        E.append(F(ins, e, d))
    ex += E
    rest += [F(valu("v_add_f32", vL(j), vL(j), s[0]), e, d, [E[1]]), F(valu("v_cvt_pk_bf16_f32", pf[0], s[0], s[1]), e, d, [E[2]]),
             F(valu("v_add_f32", vL(j), vL(j), s[1]), e, d), F(valu("v_add_f32", vL(j), vL(j), s[2]), e, d, [E[3]]),
             F(valu("v_cvt_pk_bf16_f32", pf[1], s[2], s[3]), e, d), F(valu("v_add_f32", vL(j), vL(j), s[3]), e, d)]

def rdK(kt, n):
    return [ds_read("ds_read_b128", Kf(kt, s), vKa(s & 1, kt >> 1), (kt & 1) * 4096 + (s >> 1) * 512, regB(n)) for s in range(4)]
def rdV(t, n):
    return [ds_read("ds_read_b64_tr_b16", Vf(t, u)[2 * h:2 * h + 2], vVa(t & 3, u), h * 4096 + (t >> 2) * 512, regB(n))
            for u in range(2) for h in range(2)]

def rowmax(j):
    s = St(0, j); m, t = vT[2 * (j % 2)], vT[1 + 2 * (j % 2)]
    o = [valu("v_max3_f32", m, s[0], s[1], s[2]), valu("v_max3_f32", m, m, s[3], vMin(j)),
         valu("v_mov_b32", t, m), valu("v_permlane32_swap_b32", m, t), valu("v_max_f32", m, m, t),
         valu("v_mov_b32", t, m), valu("v_permlane16_swap_b32", m, t), valu("v_max_f32", m, m, t)]
    o += [valu("v_sub_f32", Cb(j)[r], 0, m) for r in range(4)]
    return o

def prologueB(p):
    for j in range(5): p.emit(valu("v_mov_b32", vMin(j), 0xff800000))
    p.emit(salu("s_mov_b32", sRetry, 0))
    p.emit(label("mha_attn_entry"))
    KALT[0] = True
    p.emit(rdK(0, 0), rdK(1, 0))
    for j in range(5): p.emit(valu("v_mov_b32", vL(j), 0))
    mf = []; st = {}; fi = {}; la = {}
    for kt in range(4):
        q, f_, l_ = blockQ(kt, czero=(kt == 0))
        st[kt] = len(mf); fi[kt] = {j: v + len(mf) for j, v in f_.items()}; la[kt] = {j: v + len(mf) for j, v in l_.items()}
        mf += q
    n = len(mf)
    mx = {}
    m0_, m1_ = [], []
    for j in range(5):
        lst = [F(x, la[0][j] + 3, fi[1][j] - 2) for x in rowmax(j)]
        (m0_ if j % 2 == 0 else m1_).extend(lst); mx[j] = lst[-1]
    ex, rest = [], []
    for j in range(5):
        k = len(ex)
        softmax_tile(0, j, 0, la[0][j] + 3, (fi[2][j] - 1) if j < 4 else n - 1, ex, rest, sub=True)
        ex[k].deps.append(mx[j])
    for j in range(5): softmax_tile(1, j, 0, la[1][j] + 3, (fi[3][j] - 1) if j < 4 else n - 1, ex, rest)
    for j in range(4): softmax_tile(2, j, 0, la[2][j] + 3, n - 1, ex, rest)
    lds = spread(rdK(2, 0), st[1] - 1, st[1] + 8) + spread(rdK(3, 0), st[2] - 1, st[2] + 6)
    lds += [F(valu("v_add_u32", vKa(s0, u), SG, vKa(s0, u)), st[2] + 8, n - 1) for u in range(2) for s0 in range(2)]
    vm = []
    KALT[0] = False
    tags = [("B", m) for m in (1, 2) if m not in PFR]
    vm += [F(wait_lgkm0(), 21, 21)] + vm_fillers(thr(kv_batch(4), "JTH"), 24, n - 8)
    fl = {"m0": m0_, "m1": m1_, "ex": ex, "rest": rest, "lds": lds, "vm": vm}
    p.emit(interleave(mf, fl))
    p.emit(stamp(), wait_both(tags), barrier(), stamp())

def lsum(j):
    l, t = vL(j), vT[2 + j % 2]
    return [valu("v_mov_b32", t, l), valu("v_permlane32_swap_b32", l, t), valu("v_add_f32", l, l, t),
            valu("v_mov_b32", t, l), valu("v_permlane16_swap_b32", l, t), valu("v_add_f32", l, l, t)]

_cvk = [0]
def o_convert(s, j, pk=False):
    k = _cvk[0]; _cvk[0] += 1
    T = V(16 + (k % 4) * 8, 8); Pk = V(56 + (k % 8) * 4, 4)
    o = []
    for h in range(2):
        for r in range(4): o.append(valu("v_accvgpr_read_b32", T[4 * h + r], Oa(2 * s + h, j)[r]))
    if pk:
        lp = V(148 + (j & ~1), 2)
        for r in range(0, 8, 2): o.append(valu("v_pk_mul_f32", T[r:r + 2], T[r:r + 2], lp, mods=" op_sel:[0,1] op_sel_hi:[1,1]" if j & 1 else " op_sel_hi:[1,0]"))
    else:
        for r in range(8): o.append(valu("v_mul_f32", T[r], T[r], vL(j)))
    for r in range(4): o.append(valu("v_cvt_pk_bf16_f32", Pk[r], T[2 * r], T[2 * r + 1]))
    o.append(vstore(Pk, vL16, SRD_WS, sSP, j * 1024, flags=OSF, tag="OST"))
    return o
def o_group(s, pk=False):
    o = [salu("s_lshl_b32", sSP, sQH, 12), salu("s_add_u32", sSP, sSP, sOb0 if s % 2 == 0 else sOb1)]
    if s >> 1: o.append(salu("s_add_u32", sSP, sSP, 18432))
    for j in range(4): o += o_convert(s, j, pk)
    return o

LMAX = f32(2.0 ** 24)
MSG = 1 * SG
FLAGS_LDS = MSG + 6144
regM = (gran(MSG, SG), "M", True)

import functools
def b_plan():
    ents = [m for m in range(6, 16) if m not in PFR]
    pieces = [(m, g) for m in ents for g in kv_batch(m)]
    span = float(OPT("BSPAN", "5.5"))
    plan = {e: [] for e in range(8)}
    dt = span / len(pieces)
    free = lambda m: (m - 4) // 2
    need = lambda m: 7 if m == 15 else (m - 1) // 2
    marg = float(OPT("BMARG", "0.3"))
    lo = [float(free(m)) for m, g in pieces]; hi = [min(need(m) - marg, 1.0 + span - dt) for m, g in pieces]
    ts = [min(max(1.0 + k * dt, lo[k]), hi[k]) for k in range(len(pieces))]
    ts[-1] = hi[-1]
    for _ in range(3000):
        for k in range(1, len(ts) - 1): ts[k] = min(max(0.5 * (ts[k - 1] + ts[k + 1]), lo[k]), hi[k])
    for t, (m, g) in zip(ts, pieces):
        plan[int(t)].append(((t - int(t)) * 0.93, g, m))
    return plan

def epochB(e):
    final = (e == 7)
    bufc, bufn = e % 2, (e + 1) % 2
    nK, nV = 2 * e + 1, (2 * e + 2 if e < 7 else 15)
    mf = []; st = {}; en = {}; fi = {}; la = {}
    if e > 0:
        st["L"] = 0; mf += blockP(3, bufn, zero=(e == 1), swap=(e == 1 and T6)); en["L"] = len(mf) - 1
    VALT[0] = final
    for b in range(4):
        if not final:
            q, f_, l_ = blockQ(b)
            st["Q%d" % b] = len(mf); fi[b] = {j: v + len(mf) for j, v in f_.items()}; la[b] = {j: v + len(mf) for j, v in l_.items()}
            mf += q; en["Q%d" % b] = len(mf) - 1
        if b < 3 or final:
            st["P%d" % b] = len(mf); mf += blockP(b, bufc, zero=(e == 0)); en["P%d" % b] = len(mf) - 1
    n = len(mf)
    ex, rest = [], []
    for j in range(4): softmax_tile(3, j, bufc, -1, st["P0"] - 2, ex, rest)
    fl = {"ex": ex, "rest": rest}
    if not final:
        for j in range(5): softmax_tile(0, j, bufn, la[0][j] + 3, (fi[2][j] - 1) if j < 4 else n - 1, ex, rest)
        for j in range(5): softmax_tile(1, j, bufn, la[1][j] + 3, (fi[3][j] - 1) if j < 4 else n - 1, ex, rest)
        for j in range(4): softmax_tile(2, j, bufn, la[2][j] + 3, n - 1, ex, rest)
        vm = []
        if e == 0: mine = [(0.02 + 0.11 * i, g, 5) for i, g in enumerate(kv_batch(5))]
        else: mine = b_plan()[e]
        for k, (fr, g, m) in enumerate(mine):
            if k == 0 and len(g) == 1:
                pass
            if OPT("BTH", "4"): g.insert(len(g) - 1, raw("s_waitcnt vmcnt(%s)" % OPT("BTH", "4"), "salu"))
            t = max(3, int(fr * n))
            vm += vm_fillers([g], t, t)
        if e == 6:
            vm += vm_fillers(wo_batch(0), int(float(OPT("W0P", "0.48")) * n), int(float(OPT("W1P", "0.72")) * n)) + vm_fillers(wo_batch(1), int(float(OPT("W1P", "0.72")) * n), n - 8)
        fl["vm"] = vm
        if e == 5: fl["wa"] = [F(x, 10, n - 1) for x in d_addr_setup()]
        if OPT("S3E") and e == int(OPT("S3E")):
            tq = [salu("s_lshr_b32", sT2, sWG, 3), salu("s_lshl_b32", sT2, sT2, 2), salu("s_add_u32", sT2, sT2, sW), salu("s_lshl_b32", sT2, sT2, 16),
                  salu("s_and_b32", sT3, sCT, 8), salu("s_lshl_b32", sT3, sT3, 7), salu("s_add_u32", sT2, sT2, sT3), salu("s_add_u32", sT2, sT2, 384),
                  valu("v_lshlrev_b32", V(158), 11, vLane), [raw("s_mov_b32 exec_hi, 0", wr=[EXEC]), vload(V(159), V(158), SRD_WO, sT2), salu("s_mov_b64", EXEC, -1)]]
            t0 = int(float(OPT("S3P", "0.4")) * n)
            fl["s3"] = [F(x, t0 - 12, t0) for x in tq[:-1]] + [F(tq[-1], t0, t0 + 2)]
        L2W = int(OPT("L2W", "0"))
        L2E = int(OPT("L2E", "6")) - L2W
        if L2W and L2E <= e < L2E + L2W:
            k = e - L2E
            tq = [salu("s_lshr_b32", sT2, sWG, 3), salu("s_lshl_b32", sT2, sT2, 14), salu("s_lshl_b32", sT3, sW, 21), salu("s_add_u32", sT2, sT2, sT3),
                  salu("s_and_b32", sT3, sCT, 8), salu("s_lshl_b32", sT3, sT3, 7), salu("s_add_u32", sT2, sT2, sT3), salu("s_add_u32", sT2, sT2, k * 256 * 2048),
                  valu("v_lshrrev_b32", V(158), 3, vLane), valu("v_lshlrev_b32", V(158), 11, V(158)), valu("v_and_b32", V(159), 7, vLane),
                  valu("v_lshl_add_u32", V(158), V(159), 7, V(158)), vload(V(159), V(158), SRD_WO, sT2)]
            fl["l2w"] = [F(x, 60, 100) for x in tq]
        for m in PARK:
            if (m - 4) // 2 == e: fl["pw"] = spread(pf_write(m, vT[0]), 20, n - 30)
        lds = []
        last = {}
        if e == 1 and T6:
            w = pf_write(6, vT[0])
            order = [7, 6, 5, 0, 1, 2, 3, 4]; dl = [1, 3, 5, 7, 9, 11, 13, 15]
            fl["pw"] = [F(w[0], -1, -1)] + [F(w[1 + i], d_ - 2, d_ - 1) for i, d_ in zip(order, dl)]
        for b in range(4):
            lo = -1 if b == 0 else en["Q%d" % (b - 1)]
            hi = st["Q%d" % b]
            kk = spread(rdK(b, nK), lo, max(lo, min(lo + 8, hi - 9)), slack=1)
            pb = ("P%d" % (b - 1)) if b else ("L" if e else None)
            lo0 = (st[pb] + 8) if pb else 0
            if e == 1 and T6 and b == 0: lo0 = en["L"]
            lo1 = en[pb] if pb else 4
            lo0 = max(lo0, kk[-1].e)
            v0 = spread(rdV(2 * b, nV), lo0, max(lo0 + 4, lo1), slack=1)
            lo1 = max(lo1, v0[-1].e)
            v1 = spread(rdV(2 * b + 1, nV), lo1, lo1 + 7, slack=1)
            lds += kk + v0 + v1
            last["K%d" % b] = kk[-1]; last["V%d" % (2 * b)] = v0[-1]; last["V%d" % (2 * b + 1)] = v1[-1]
        fl["lds"] = lds
        dk = (sigB(nK + 2) - sigB(nK)) * SG
        dv = (sigB(nV + 2 if e < 6 else 15) - sigB(nV)) * SG
        ad = []
        ad += [F(valu("v_add_u32", vKa(s0, 0), dk, vKa(s0, 0)), 0, n - 1, [last["K1"]]) for s0 in range(2)]
        ad += [F(valu("v_add_u32", vVa(t, u), dv, vVa(t, u)), 0, n - 1, [last["V5"]]) for t in (0, 1) for u in range(2)]
        ad += [F(valu("v_add_u32", vKa(s0, 1), dk, vKa(s0, 1)), 0, n - 1, [last["K3"]]) for s0 in range(2)]
        ad += [F(valu("v_add_u32", vVa(t, u), dv, vVa(t, u)), 0, n - 1, [last["V%d" % (4 + t)]]) for t in (2, 3) for u in range(2)]
        fl["ad"] = ad
        need = (2 * e + 3, 2 * e + 4) if e < 6 else (15,)
        tags = [("B", m) for m in need if m not in PFR]
        fl["end"] = end_stream(n, tags)
        return interleave(mf, fl, margin=16)
    lds = spread(rdV(0, nV) + rdV(1, nV), -1, st["P0"] - 6)
    for b in (1, 2, 3):
        lo = en["L"] if b == 1 else en["P%d" % (b - 2)]
        lds += spread(rdV(2 * b, nV) + rdV(2 * b + 1, nV), lo, st["P%d" % b] - 6)
    fl["lds"] = lds
    R0 = rdW(0); R1 = rdW(1)
    r0 = [F(wait_vm([("W", 0)]), 4, 6)] + spread(R0, 6, 30) + [F(wait_vm([("W", 1)]), 30, 32)] + spread(R1, 32, 56)
    w0 = F(wait_lgkm0(), 38, 39, [r0[len(R0)]]); w1 = F(wait_lgkm0(), 64, 65, [r0[-1]])
    fl["wr"] = r0
    fl["vm"] = vm_fillers(wo_batch(2), 6, 30)
    if WFIN >= 4: fl["vm"] += [w0] + vm_fillers(wo_batch(3), 46, 64)
    if WFIN >= 5: fl["vm"] += [w1] + vm_fillers(wo_batch(4), 72, n - 2, slack=0)
    epi = []
    for j in range(5): epi += [F(x, st["P0"] - 2, n - 1, [rest[-1]]) for x in lsum(j)]
    chk = [valu("v_add_f32", vT[2], vL(0), vL(1)), valu("v_add_f32", vT[3], vL(2), vL(3)), valu("v_add_f32", vT[2], vT[2], vL(4)),
           valu("v_add_f32", vT[2], vT[2], vT[3]), salu("s_mov_b32", sT2, LMAX),
           I("v_cmp_nge_f32 vcc, %s, %s" % (sT2, vT[2]), "valu", regs_of(sT2, vT[2]), regs_of(VCC)),
           valu("v_mov_b32", Cb(4)[1], vL(4)), valu("v_xor_b32", vT[0], MSG + 8192, vPW),
           I("s_or_b32 %s, vcc_lo, vcc_hi" % sT2, "salu", regs_of(VCC), regs_of(sT2)),
           valu("v_mov_b32", vT[2], sT2), salu("s_lshl_b32", sT3, sW, 2), salu("s_add_u32", sT3, sT3, FLAGS_LDS),
           valu("v_and_b32", vT[3], 3, vLane), valu("v_lshlrev_b32", vT[3], 13, vT[3]), valu("v_add_u32", vT[3], sT3, vT[3]),
           ds_write("ds_write_b32", vT[3], vT[2], 0, regM), ds_write("ds_write_b64", vT[0], Cb(4)[0:2], 4096, regM)]
    chk += [valu("v_rcp_f32", vL(j), vL(j)) for j in range(4)]
    epi += [F(x, st["P0"], n - 1) for x in chk]
    epi += [F(x, en["P0"] + 4, n - 1) for x in o_group(0)]
    epi += [F(ds_write("ds_write_b128", vT[0], Oa(t, 4), i * 1024, regM), en["P1"] + 4, n - 1) for i, t in enumerate((2, 3))]
    epi += [F(x, en["P1"] + 4, n - 1) for x in o_group(1)]
    fl["epi"] = epi
    return interleave(mf, fl)

def w_items():
    more = lambda t: wo_batch(t) if t < NPRE else []
    it = []
    for t in range(WFIN, 5): it += wo_batch(t)
    it += wo_batch(5)
    it += [[wait_lgkm0()]] + wo_batch(6)
    it += [[wait_vm([("W", 3)])] + rdW(3)] + more(7)
    it += [[wait_vm([("W", 4)])] + rdW(4) + [wait_both([], lg=16)]] + more(8)
    it += [[wait_vm([("W", 5)])] + rdW(5) + [wait_both([], lg=16)]] + more(9)
    it += [[wait_vm([("W", 6)])] + rdW(6) + [wait_both([], lg=16)]] + more(10)
    it += ["POLL", [wait_lgkm0()]] + more(11)
    return it

def epilogueB(p):
    p.emit(stamp())
    g2 = o_group(2, True); g3 = o_group(3, True)
    U = 17
    p.emit(g2[:3 + U])
    for i, t in ((2, 6), (3, 7)): p.emit(ds_write("ds_write_b128", vT[0], Oa(t, 4), i * 1024, regM))
    p.emit(salu("s_add_u32", sT3, sCkv, FLAGS_LDS), valu("v_mov_b32", vT[3], sT3), valu("v_add_u32", vT[1], MSG, vPW))
    p.emit(wait_both([("W", 2)]), barrier())
    X = V(128, 16); ML = V(48, 2); FL = V(52, 4)
    own = regM + ("own",)
    p.emit(ds_read("ds_read_b128", FL, vT[3], 0, own))
    p.emit(ds_read("ds_read_b64", ML, vT[1], 4096, own))
    for i in range(4): p.emit(ds_read("ds_read_b128", X[4 * i:4 * i + 4], vT[1], i * 1024, own))
    p.emit(rdW(2))
    W = w_items()
    k0 = int(OPT("WP0", "0"))
    p.emit(W[:k0], g2[3 + U:3 + 2 * U]); W = W[k0:]
    p.emit(valu("v_or3_b32", FL[0], FL[0], FL[1], FL[2]), valu("v_or_b32", FL[0], FL[0], FL[3]), valu("v_readfirstlane_b32", sT2, FL[0]))
    na, la_, nb, lb = Cb(4)[0], vL(4), ML[0], ML[1]
    mn, fa, fb = vT[2], vT[3], vT[4]
    p.emit(valu("v_min_f32", mn, na, nb), valu("v_sub_f32", fa, mn, na), valu("v_sub_f32", fb, mn, nb),
           valu("v_exp_f32", fa, fa), valu("v_exp_f32", fb, fb))
    p.emit(salu("s_andn2_b32", sT2, sT2, sRetry), scmp("s_cmp_lg_u32", sT2, 0), raw("s_cbranch_scc1 mha_fallback", "branch"))
    p.emit(valu("v_mul_f32", la_, la_, fa), valu("v_fmac_f32", la_, lb, fb),
           valu("v_rcp_f32", la_, la_), salu("s_add_u32", sT3, sOb0, 8192), valu("v_mul_f32", fa, fa, la_), valu("v_mul_f32", fb, fb, la_))
    S_ = []
    for i, s in enumerate((0, 2)):
        T = V(96 + i * 8, 8); Pk = V(112 + i * 4, 4)
        u = [valu("v_accvgpr_read_b32", T[4 * h + r], Oa(2 * s + h, 4)[r]) for h in range(2) for r in range(4)]
        u += [valu("v_mul_f32", T[r], T[r], fa) for r in range(8)]
        u += [valu("v_fmac_f32", T[r], X[8 * i + r], fb) for r in range(8)]
        u += [valu("v_cvt_pk_bf16_f32", Pk[r], T[2 * r], T[2 * r + 1]) for r in range(4)]
        u += [vstore(Pk, vL16, SRD_WS, sT3, 0, flags=OSF, tag="OST")]
        if i == 0: u += [salu("s_add_u32", sT3, sT3, 18432)]
        S_.append(u)
    S_ += [g2[3 + U * j:3 + U * (j + 1)] for j in (2, 3)]
    S_ += [g3[:3 + U]] + [g3[3 + U * j:3 + U * (j + 1)] for j in (1, 2, 3)]
    k = int(OPT("WPS", "0"))
    for u in S_:
        p.emit(u, W[:k]); W = W[k:]
    return W

def phaseB(p):
    prologueB(p)
    for e in range(8): p.emit(diag("b%d" % e), epochB(e))
    return epilogueB(p)

def fallback():
    p = Prog("mha_fb"); p.hoist = False
    p.emit(label("mha_gate"), salu("s_mov_b32", sT2, 1 << 14), salu("s_mov_b64", EXEC, 1), label("mha_gate_l"))
    p.emit(raw("s_sleep 64"), vload(V(9), V(8), SRD_DBG, sT0, flags="sc1"), wait_all_vm(), valu("v_readfirstlane_b32", sT1, V(9)),
           salu("s_sub_u32", sT2, sT2, 1), scmp("s_cmp_eq_u32", sT2, 0), raw("s_cbranch_scc1 mha_gate_x", "branch"),
           scmp("s_cmp_lt_u32", sT1, 16), raw("s_cbranch_scc1 mha_gate_l", "branch"))
    p.emit(label("mha_gate_x"), salu("s_mov_b64", EXEC, -1), raw("s_branch mha_gate_ok", "branch"))
    p.emit(label("mha_fallback"), wait_all_vm(), wait_lgkm0(), barrier())
    p.emit(salu("s_mov_b32", sRetry, -1))
    c_, g_ = vT[2], vT[3]
    p.emit(valu("v_and_b32", c_, 15, vLane), valu("v_lshrrev_b32", g_, 4, vLane), valu("v_lshlrev_b32", c_, 8, c_), valu("v_lshl_add_u32", c_, g_, 4, c_),
           salu("s_lshl_b32", sT0, sQH, 6), valu("v_add_u32", vT[0], sT0, c_), valu("v_xor_b32", vT[1], 64, vT[0]))
    p.emit(salu("s_lshl_b32", sT0, sQH, 13), salu("s_sub_u32", sT1, sKVbase, sT0))
    def body(it):
        o = [vload(Kf(0, s_), vT[s_ & 1], SRD_K, sT1, (s_ >> 1) * 128) for s_ in range(4)]
        o += blockQ(0, czero=True)[0]
        for j in range(5):
            st_ = St(0, j)
            o += [valu("v_max3_f32", vMin(j), vMin(j), st_[0], st_[1]), valu("v_max3_f32", vMin(j), vMin(j), st_[2], st_[3])]
        o.append(salu("s_add_u32", sT1, sT1, 4096))
        return o
    p.loop(32, body, sCNT)
    for t2 in range(4):
        for u in range(2): p.emit(valu("v_add_u32", vVa(t2, u), 2 * SG, vVa(t2, u)))
    for m in range(4): p.emit(kv_batch(m))
    for m in PARK + ([6] if T6 else []):
        for i in range(8): p.emit(pf_load(m, i))
    p.emit(wait_all_vm(), barrier(), raw("s_branch mha_attn_entry", "branch"))
    return p

def accD(j, t): return V(16 + (j * 4 + t) * 4, 4)
SEQ = [(t, j) for t in range(14) for j in range(9)] + [(t, j) for j in range(9) for t in (14, 15)]
SLOT = {tj: i % 9 for i, tj in enumerate(SEQ)}
def Of(t, j, s): return A(88 + (SLOT[(t, j)] * 2 + s) * 4, 4)
WBLK = [A(192, 32), A(224, 32), A(160, 32), V(186, 32), V(218, 32), A(0, 32), A(32, 32)]
def Wf(t, tt, s): return WBLK[t % 7][(tt * 2 + s) * 4:(tt * 2 + s) * 4 + 4]
vO = [V(160 + i) for i in range(5)]
vWa = [V(5 + i) for i in range(4)]
vRw = [V(170 + i) for i in range(6)]
vRr = [V(176 + i) for i in range(6)]
vOut = V(182)
OFLAGS = OPT("OF", "sc1")
SIGW = [3, 4, 0, 3, 4, 2, 1, 0, 3, 4, 2, 1, 0, 3, 4, 2]
def regW(t): return (gran(SIGW[t] * SG, SG), ("W", t), False)
sOrd, sObase, sKt = sLw, sWOend, sDw
_wgrp = [0]

def d_addr_setup():
    g_, r_, cp, r8 = vT[1], vT[2], vT[3], vT[4]
    o = [valu("v_lshrrev_b32", g_, 4, vLane), valu("v_bfe_u32", r_, vLane, 2, 2), valu("v_and_b32", cp, 3, vLane),
         valu("v_and_b32", r8, 1, g_), valu("v_lshl_add_u32", r8, r8, 2, r_),
         valu("v_lshrrev_b32", r_, 1, r8), valu("v_lshlrev_b32", r_, 5, r_), valu("v_lshl_add_u32", r_, cp, 3, r_),
         valu("v_lshl_add_u32", r_, r8, 7, r_), valu("v_lshrrev_b32", g_, 1, g_), valu("v_lshl_add_u32", r_, g_, 10, r_),
         valu("v_add_u32", vWa[0], sCkv, r_)]
    o += [valu("v_xor_b32", vWa[i], i << 5, vWa[0]) for i in range(1, 4)]
    o += [salu("s_lshl_b32", sWOoff, sW, 21), salu("s_lshl_b32", sT0, sCT, 7), salu("s_add_u32", sWOoff, sWOoff, sT0),
          salu("s_lshl_b32", sT0, sB2, 7), salu("s_lshl_b32", sT1, sW, 5), salu("s_add_u32", sT0, sT0, sT1), salu("s_mul_i32", sObase, sT0, 9216)]
    DS = OPT("DSKEW", "2")
    if DS == "0": o += [salu("s_mov_b32", sOrd, 0)]
    elif DS == "1": o += [salu("s_and_b32", sOrd, sB2, 3)]
    elif DS == "3": o += [salu("s_and_b32", sOrd, sCT, 3), salu("s_xor_b32", sOrd, sOrd, sB2)]
    else: o += [salu("s_xor_b32", sOrd, sB2, sCT), salu("s_and_b32", sOrd, sOrd, 3)]
    _wgrp[0] = 0
    return o
def kstep(t, dst):
    if OPT("DPH", "0") == "1": return [salu("s_add_u32", dst, sW, t), salu("s_and_b32", dst, dst, 15), salu("s_xor_b32", dst, dst, sOrd)]
    return [salu("s_xor_b32", dst, sOrd, t)]
def wo_batch(t):
    g = []
    for i in range(8):
        if i: pre = [salu("s_add_u32", M0, M0, 1024), salu("s_add_u32", sSO, sSO, 16384)]
        else: pre = kstep(t, sSO) + [salu("s_lshl_b32", sSO, sSO, 17), salu("s_add_u32", sSO, sSO, sWOoff), salu("s_add_u32", M0, sCkv, SIGW[t] * SG)]
        g.append(pre + [dma(vOffX, SRD_WO, sSO, flags=OPT("WOF"), tag=("W", t), region=regW(t))])
    return g
def sOo(t): return sOoff if t % 2 == 0 else sOffA
def o_base(t): return kstep(t, sKt) + [salu("s_mul_i32", sKt, sKt, 18432), salu("s_add_u32", sOo(t), sObase, sKt)]
def o_load(t, j, s):
    o = s * 9216 + j * 1024
    return vload(Of(t, j, s), vO[o >> 12], SRD_WS, sOo(t), o & 4095, flags=OFLAGS)
def rdW(t):
    grp = SIGW[t] >> 1
    o = []
    if grp != _wgrp[0]:
        o += [valu("v_add_u32", vWa[i], (grp - _wgrp[0]) * 2 * SG, vWa[i]) for i in range(4)]
        _wgrp[0] = grp
    return o + [ds_read("ds_read_b64_tr_b16", Wf(t, tt, s)[2 * h:2 * h + 2], vWa[tt], (SIGW[t] & 1) * SG + s * 4096 + h * 2048, regW(t))
                for tt in range(4) for s in range(2) for h in range(2)]
def red_write(j, tt):
    reg = (gran((j >> 1) * SG, SG), "R", True, "own")
    return ds_write("ds_write_b128", vRw[(j >> 2) * 2 + (tt & 1)], accD(j, tt), ((j >> 1) & 1) * SG + (j & 1) * 4096 + (tt >> 1) * 128, reg)

def stepD(t):
    units = SEQ[9 * t:9 * t + 9]
    mf = []; en = []; s = 0
    for i, (tt_, j) in enumerate(units):
        for tt in (range(4) if (9 * t + i) % 2 == 0 else range(3, -1, -1)):
            for q, k in enumerate((s, 1 - s)): mf.append(mfma(accD(j, tt), Wf(tt_, tt, k), Of(tt_, j, k), 0 if (tt_ == 0 and q == 0) else None))
            s = 1 - s
        en.append(len(mf) - 1)
    n = len(mf)
    fl = {}
    tr = t + 6
    if t >= 1 and tr <= 15:
        fl["lds"] = [F(wait_vm([("W", tr)]), 8, 10)] + spread(rdW(tr), 10, n - 16) + [F(wait_lgkm0(), n - 4, n - 3)]
    vm = []
    if t < 15:
        b = o_base(t + 1) if t < 14 else []
        if t == 13: b += o_base(15)
        vm += [F(x, min(i, 6), 6) for i, x in enumerate(b)]
        for i in range(9):
            nt, nj = SEQ[9 * t + 9 + i]
            d2 = int(OPT("DGAP", "3"))
            th = lambda e_: [F(raw("s_waitcnt vmcnt(%s)" % OPT("DTH"), "salu"), e_, n - 1)] if OPT("DTH") else []
            vm += th(en[i]) + [F(o_load(nt, nj, 0), en[i], n - 1)]
            if not OPT("FAKE2"): vm += th(min(en[i] + d2, n - 1)) + [F(o_load(nt, nj, 1), min(en[i] + d2, n - 1), n - 1)]
    fl["vm"] = vm
    tw = WSCHED.get(t)
    if tw is not None: fl["w"] = vm_fillers(wo_batch(tw), 12, n - 4)
    if t >= 14:
        red = [F(x, -1 + 4 * i, n - 1) for i, x in enumerate(stepD.carry)]; stepD.carry = []
        for i, (tt_, j) in enumerate(units):
            if tt_ == 15:
                for tt in range(4):
                    e = en[i] + 4 + 4 * tt
                    if e < n - 1 or t == 15: red.append(F(red_write(j, tt), min(e, n - 1), n - 1))
                    else: stepD.carry.append(red_write(j, tt))
        fl["red"] = red
    return interleave(mf, fl)
stepD.carry = []
WSCHED = {}

def phaseD(p, W):
    k = int(OPT("WPA", "8"))
    k = min(k, W.index("POLL"))
    p.emit(W[:k]); W = W[k:]
    for i in range(5): p.emit(valu("v_add_u32", vO[i], i * 4096, vL16))
    p.emit(salu("s_lshl_b32", sT0, sB, 12), salu("s_add_u32", sT0, sT0, FLG), scmp("s_cmp_eq_u32", sW, 0), salu("s_cselect_b32", sT0, sT0, OOB),
           valu("v_lshlrev_b32", V(184), 8, vLane), valu("v_mov_b32", V(185), 1))
    p.emit(wait_vm(["OST"]), barrier())
    p.emit(salu("s_mov_b64", EXEC, 0xffff), vstore(V(185), V(184), SRD_WS, sT0, flags="sc1", op="buffer_atomic_add"), salu("s_mov_b64", EXEC, -1))
    p.emit(stamp())
    rest = [t for t in range(7, 16) if t >= NPRE]
    st_ = 0
    for t in rest:
        st_ = max(st_, t - 10, 0); WSCHED[st_] = t; assert st_ <= t - 7; st_ += int(OPT("WGAP", "1"))
    g_ = vT[2]
    ra = [valu("v_lshrrev_b32", g_, 4, vLane),
          valu("v_and_b32", vT[0], 15, vLane), valu("v_and_b32", vT[1], 7, vLane), valu("v_xor_b32", vT[4], vT[1], g_),
          valu("v_lshlrev_b32", vT[4], 4, vT[4]), valu("v_lshl_add_u32", vT[4], vT[0], 8, vT[4]), valu("v_add_u32", vRw[0], sCkv, vT[4]),
          valu("v_xor_b32", vRw[1], 64, vRw[0])]
    ra += [valu("v_add_u32", vRw[i], 2 * SG, vRw[i - 2]) for i in range(2, 6)]
    ra += [valu("v_lshrrev_b32", vT[0], 3, vLane), valu("v_lshlrev_b32", vT[4], 1, vT[1]), valu("v_xor_b32", vT[4], vT[4], vT[0]),
           valu("v_lshlrev_b32", vT[4], 4, vT[4]), salu("s_lshl_b32", sT0, sW, 3), valu("v_add_u32", vT[0], sT0, vT[0]),
           valu("v_lshl_add_u32", vRr[0], vT[0], 8, vT[4]), valu("v_xor_b32", vRr[1], 16, vRr[0])]
    ra += [valu("v_add_u32", vRr[i], 2 * SG, vRr[i - 2]) for i in range(2, 6)]
    ra += [valu("v_lshlrev_b32", vOut, 11, vT[0]), valu("v_lshl_add_u32", vOut, vT[1], 4, vOut), valu("v_mov_b32", V(184), 0)]
    pl = [salu("s_mov_b64", EXEC, 1), vload(V(183), V(184), SRD_WS, sFl, flags="sc1"), salu("s_mov_b64", EXEC, -1)]
    i = W.index("POLL")
    p.emit(W[:i], ra, pl, W[i + 1:])
    p.emit(o_base(0), stamp())
    p.emit(valu("v_readfirstlane_b32", sT1, V(183)), scmp("s_cmp_ge_u32", sT1, 16), raw("s_cbranch_scc1 mha_polled", "branch"))
    p.emit(salu("s_mov_b32", sPoll, 1 << 17), salu("s_mov_b64", EXEC, 1))
    p.emit(label("mha_poll"))
    p.emit(raw("buffer_load_dword v183, v184, %s, %s offen sc1" % (SRD_WS, sFl), "other"), raw("s_waitcnt vmcnt(0)", "other"))
    p.emit(valu("v_readfirstlane_b32", sT1, V(183)), scmp("s_cmp_ge_u32", sT1, 16), raw("s_cbranch_scc1 mha_pollok", "branch"))
    p.emit(raw("s_sleep %s" % OPT("SLP", "4")), salu("s_sub_u32", sPoll, sPoll, 1), scmp("s_cmp_lg_u32", sPoll, 0), raw("s_cbranch_scc1 mha_poll", "branch"))
    p.emit(label("mha_pollok"), salu("s_mov_b64", EXEC, -1))
    p.emit(label("mha_polled"), stamp(), diag("d"))
    for j in range(9): p.emit(o_load(0, j, 0), o_load(0, j, 1))
    for t in range(16):
        p.emit(stepD(t))
        if t % 2: p.emit(stamp())
    p.emit(salu("s_mul_i32", sT0, sB2, 294912), salu("s_lshl_b32", sT1, sCT, 7), salu("s_add_u32", sT0, sT0, sT1))
    p.emit(wait_lgkm0(), barrier(), stamp())
    def buf(rd, i, h): return V(16 + (rd % 4) * 32 + i * 8 + h * 4, 4)
    def reads(rd):
        reg = (gran(rd * SG, SG), "R", True)
        return [ds_read("ds_read_b128", buf(rd, i, h), vRr[(rd >> 1) * 2 + h], (rd & 1) * SG + i * 8192, reg) for i in range(4) for h in range(2)]
    p.emit(reads(0))
    for rd in range(5):
        if rd + 1 < 5: p.emit(reads(rd + 1))
        if rd == 4: p.emit(scmp("s_cmp_ge_u32", sW, 2), raw("s_cbranch_scc1 mha_fin", "branch"))
        b0 = V(16 + (rd % 4) * 32, 32)
        for r in range(0, 8, 2): p.emit(valu("v_pk_add_f32", b0[r:r + 2], b0[r:r + 2], b0[8 + r:10 + r]))
        for r in range(0, 8, 2): p.emit(valu("v_pk_add_f32", b0[16 + r:18 + r], b0[16 + r:18 + r], b0[24 + r:26 + r]))
        for r in range(0, 8, 2): p.emit(valu("v_pk_add_f32", b0[r:r + 2], b0[r:r + 2], b0[16 + r:18 + r]))
        Pk = V(192 + rd * 4, 4)
        for r in range(4): p.emit(valu("v_cvt_pk_bf16_f32", Pk[r], b0[2 * r], b0[2 * r + 1]))
        p.emit(vstore(Pk, vOut, SRD_OUT, sT0, flags=OPT("OUTF", "sc1")))
        if rd < 4: p.emit(salu("s_add_u32", sT0, sT0, 32 * 2048))
    p.emit(label("mha_fin"), diag("end"))

KNAME = "standalone__mha_block_cached__near_ridge_kernel"
def build():
    k = Prog("mha"); setup(k)
    phaseA(k); W = phaseB(k); k.emit(stamp())
    phaseD(k, W); k.emit(stamp_store(32 << 20))
    k.emit(label("mha_end"), raw("s_endpgm"))
    fb = fallback()
    hdr = open("standalone__mha_block_cached__near_ridge.s.ref").read().split("; Override launch")[0]
    out = hdr
    out += "; @launch grid=(256,1,1) block=(256,1,1) lds=163840\n"
    out += '.amdgcn_target "amdgcn-amd-amdhsa--gfx950"\n.text\n'
    t = k.text()
    print(k.stats(), "est cycles", est_cycles([x for _, x in k.expanded(k.trace)]))
    out += ".globl %s\n.p2align 8\n.type %s,@function\n%s:\n%s" % (KNAME, KNAME, KNAME, t)
    out += "mha_code_end:\n" + fb.text()
    out += '.section .rodata,"a"\n.p2align 6\n' + kernel_desc(KNAME, 512, 102, 256)
    return out

if __name__ == "__main__":
    if "--stamps" in sys.argv:
        sys.argv.remove("--stamps"); STAMPS = True
    dst = sys.argv[1] if len(sys.argv) > 1 else "standalone__mha_block_cached__near_ridge.s"
    open(dst, "w").write(build())
```
